```python
import torch

def _softmax(x, axis=-1):
    return torch.softmax(x, dim=axis)
def _gelu(x):
    return torch.nn.functional.gelu(x, approximate="tanh")
def _silu(x):
    return torch.nn.functional.silu(x)
def _sigmoid(x):
    return torch.sigmoid(x)
def _layernorm(x, axis=-1, eps=1e-5):
    m = x.mean(dim=axis, keepdim=True)
    v = x.var(dim=axis, keepdim=True, unbiased=False)
    return (x - m) / torch.sqrt(v + eps)
def _scatter_add(tgt, idx, src, axis=0):
    return tgt.clone().index_add_(axis, idx, src)
def _segment_sum(src, seg, n):
    out = torch.zeros((n,) + src.shape[1:], dtype=src.dtype)
    return out.index_add_(0, seg, src)
def _pad(x, pw):
    flat = tuple(v for pair in reversed(pw) for v in pair)
    return torch.nn.functional.pad(x, flat)

kernel_name = 'sequential_preLN__sliding_block__dense_activation_squared_relu__prompt'

def setup_inputs():

    _w = (lambda a: (lambda t: t.to(torch.bfloat16) if t.is_floating_point() else t)(torch.as_tensor(a)))
    def _A_setup():
        B, S, D = 1, 2048, 640
        return {
            "x": _w((lambda *s: torch.randn(*s, dtype=torch.bfloat16) * 0.05)(B, S, D)),
            "wqkv": _w((lambda *s: torch.randn(*s, dtype=torch.bfloat16) * 0.05)(D, 3 * D)),
            "wo": _w((lambda *s: torch.randn(*s, dtype=torch.bfloat16) * 0.05)(D, D)),
        }
    _A_in = _A_setup()

    def _B_setup():
        B, S, D, F = 1, 2048, 640, 1728
        return {
            "x": _w((lambda *s: torch.randn(*s, dtype=torch.bfloat16) * 0.05)(B, S, D)),
            "w1": _w((lambda *s: torch.randn(*s, dtype=torch.bfloat16) * 0.05)(D, F)),
            "b1": _w((lambda *s: torch.randn(*s, dtype=torch.bfloat16) * 0.4)(F)),
            "w2": _w((lambda *s: torch.randn(*s, dtype=torch.bfloat16) * 0.05)(F, D)),
            "b2": _w((lambda *s: torch.randn(*s, dtype=torch.bfloat16) * 3.2)(D)),
        }
    _B_in = _B_setup()

    return {
        "A_x": _A_in["x"],
        "A_wqkv": _A_in["wqkv"],
        "A_wo": _A_in["wo"],
        "B_x": _B_in["x"],
        "B_w1": _B_in["w1"],
        "B_b1": _B_in["b1"],
        "B_w2": _B_in["w2"],
        "B_b2": _B_in["b2"],
    }

def reference(A_x, A_wqkv, A_wo, B_x, B_w1, B_b1, B_w2, B_b2):
    def _A_ref(x, wqkv, wo):
        B, S, D = x.shape
        H = 32; Dh = D // H; W = 256
        qkv = (lambda x, *d: x.permute(*d))((x @ wqkv).reshape(B, S, 3, H, Dh), 2, 0, 3, 1, 4)
        q, k, v = qkv[0], qkv[1], qkv[2]
        scores = torch.einsum("bhqd,bhkd->bhqk", q, k) * (Dh ** -0.5)
        idx = torch.arange(S)
        mask = (idx[:, None] - idx[None, :] >= 0) & (idx[:, None] - idx[None, :] < W)
        scores = torch.where(mask[None, None], scores, -1e9)
        p = _softmax(scores, axis=-1)
        o = torch.einsum("bhqk,bhkd->bhqd", p, v)
        return (lambda x, *d: x.permute(*d))(o, 0, 2, 1, 3).reshape(B, S, D) @ wo

    def _B_ref(x, w1, b1, w2, b2):
        h = torch.einsum("bsd,df->bsf", x, w1) + b1
        zero = torch.zeros_like(h)
        r = torch.where(h > zero, h, zero)
        h = r * r
        out = torch.einsum("bsf,fd->bsd", h, w2) + b2
        return out

    x = A_x
    h = x + _A_ref(_layernorm(x, axis=-1), A_wqkv, A_wo)
    h2 = h + _B_ref(_layernorm(h, axis=-1), B_w1, B_b1, B_w2, B_b2)
    return h2
```

```python
class Alloc:
    def __init__(self, prefix, start, limit):
        self.prefix, self.next, self.limit = prefix, start, limit
        self.names = {}
        self.high = start
    def get(self, name, n=1, align=1):
        if n >= 2 and align < 2 and self.prefix == 'v':
            align = 2
        b = (self.next + align - 1) // align * align
        self.next = b + n
        assert self.next <= self.limit, f"out of {self.prefix} regs at {name}: {self.next}"
        self.high = max(self.high, self.next)
        self.names[name] = (b, n)
        return b
    def mark(self):
        return self.next
    def reset(self, m):
        self.next = m

def vr(b, n=1):
    return f"v{b}" if n == 1 else f"v[{b}:{b+n-1}]"
def sr(b, n=1):
    return f"s{b}" if n == 1 else f"s[{b}:{b+n-1}]"

class Asm:
    def __init__(self):
        self.lines = []
        self.uid = 0
    def __call__(self, s):
        for l in s.strip("\n").split("\n"):
            l = l.strip()
            if l:
                self.lines.append("    " + l)
    def c(self, s):
        self.lines.append("    ; " + s)
    def raw(self, s):
        self.lines.append(s)
    def label(self, name):
        self.lines.append(name + ":")
    def newlabel(self, base="L"):
        self.uid += 1
        return f"{base}_{self.uid}"
    def text(self):
        return "\n".join(self.lines) + "\n"

def kernel_begin(a, name):
    a.raw(".text")
    a.raw(f".globl {name}")
    a.raw(".p2align 8")
    a.raw(f".type {name},@function")
    a.raw(f"{name}:")

def kernel_desc(a, name, vgpr=256, sgpr=102, accum=None, kernarg=88):
    if accum is None:
        accum = min(256, (vgpr + 3) // 4 * 4)
    a.raw('.section .rodata,"a"')
    a.raw(".p2align 6")
    a.raw(f".amdhsa_kernel {name}")
    a.raw(f"  .amdhsa_next_free_vgpr {vgpr}")
    a.raw(f"  .amdhsa_next_free_sgpr {sgpr}")
    a.raw(f"  .amdhsa_accum_offset {accum}")
    a.raw("  .amdhsa_group_segment_fixed_size 0")
    a.raw(f"  .amdhsa_kernarg_size {kernarg}")
    a.raw("  .amdhsa_user_sgpr_count 2")
    a.raw("  .amdhsa_user_sgpr_kernarg_segment_ptr 1")
    a.raw("  .amdhsa_system_sgpr_workgroup_id_x 1")
    a.raw(".end_amdhsa_kernel")

def srd(a, s, base, nbytes, off=0):
    if off:
        a(f"s_add_u32 s{s}, s{base}, {off}")
        a(f"s_addc_u32 s{s+1}, s{base+1}, 0")
        a(f"s_and_b32 s{s+1}, s{s+1}, 0xffff")
    else:
        a(f"s_mov_b32 s{s}, s{base}")
        a(f"s_and_b32 s{s+1}, s{base+1}, 0xffff")
    a(f"s_mov_b32 s{s+2}, {nbytes}")
    a(f"s_mov_b32 s{s+3}, 0x20000")
```

```python
import sys
from lib2 import *

KNAME = "sequential_preLN__sliding_block__dense_activation_squared_relu__prompt"
S, D, NQKV, F = 2048, 640, 1920, 1728
QK_OFF = 0
QK_SZ = 160 * 32768
VT_OFF = QK_OFF + QK_SZ
VT_SZ = 256 * 10240
O_OFF = VT_OFF + VT_SZ
O_SZ = 80 * 32768
H_OFF = O_OFF + O_SZ
H_SZ = 80 * 32768
H1_OFF = H_OFF + H_SZ
H1_SZ = 216 * 32768
ONES = 0x3F803F80

PROF = False
PROF_OFF = 32 << 20
P_X, P_WQKV, P_WO, P_BX, P_W1, P_B1, P_W2, P_B2, P_OUT, P_DBG, P_WS = range(11)


class Ctx:
    count = 0
    def __init__(self, a, name):
        self.kidx = Ctx.count; Ctx.count += 1
        self.a, self.name = a, name
        self.v = Alloc('v', 1, 256)
        self.s = Alloc('s', 3, 76 if PROF else 100)


def stamp(c, idx):
    if not PROF: return
    a = c.a
    if not hasattr(c, 'sprof'):
        c.sprof = 76
    a("s_waitcnt lgkmcnt(0)")
    a(f"s_memtime s[{76+2*idx}:{77+2*idx}]")
    a("s_waitcnt lgkmcnt(0)")

def prof_store(c, n, pws, role):
    if not PROF: return
    a = c.a
    lab = a.newlabel("prof_skip")
    a(f"s_cmp_lg_u32 s{c.swave}, {4*role}")
    a(f"s_cbranch_scc1 {lab}")
    srd(a, 92, pws, 65536, PROF_OFF + c.kidx * 65536)
    a(f"s_lshl_b32 s96, s2, 7")
    a(f"s_add_u32 s96, s96, {64*role}")
    a("v_mov_b32 v1, s96")
    a("s_mov_b64 exec, 1")
    for i in range(n):
        a(f"v_mov_b32 v2, s{76+2*i}")
        a(f"buffer_store_dword v2, v1, s[92:95], 0 offen offset:{4*i}")
        a("s_nop 1")
    a("s_mov_b64 exec, -1")
    a.label(lab)

def load_ptrs(c, slots):
    a = c.a
    r = {}
    for sl in slots:
        b = c.s.get(f"ptr{sl}", 2, 2)
        a(f"s_load_dwordx2 s[{b}:{b+1}], s[0:1], {sl*8}")
        r[sl] = b
    return r


def wave_lane(c):
    a = c.a
    c.lane = c.v.get("lane")
    c.swave = c.s.get("wave")
    a(f"v_lshrrev_b32 v{c.lane}, 6, v0")
    a("s_nop 0")
    a(f"v_readfirstlane_b32 s{c.swave}, v{c.lane}")
    a(f"v_and_b32 v{c.lane}, 63, v0")


class Gemm:
    def __init__(self, c, BN, xmode, nst, NS, stats):
        self.c, self.BN, self.xmode, self.nst, self.NS, self.stats = c, BN, xmode, nst, NS, stats
        self.SLOT = 16384 + 64 * BN * 2
        self.per_base = 65536 // self.SLOT
        self.nbase = (NS + self.per_base - 1) // self.per_base
        self.NT_T = 2 if BN == 128 else 1
        self.RING0 = 2048
        self.LDS_END = self.RING0 + self.SLOT * NS

    def slot_base(self, st):
        slot = st % self.NS
        return slot // self.per_base, (slot % self.per_base) * self.SLOT

    def loader(self, srdX, srdW, s_tok0, s_col0b, xpitch_stage, wpitch, rb_roles=None):
        c, a = self.c, self.c.a
        lane = c.lane
        lw = c.s.get("lw")
        a(f"s_sub_u32 s{lw}, s{c.swave}, 4")
        t0 = c.v.get("lt0"); t1 = c.v.get("lt1"); t2 = c.v.get("lt2")
        stmp = c.s.get("ltmp")
        if self.xmode == 'T8':
            vx = [c.v.get("lvx")]
            a(f"v_add_u32 v{t0}, s{s_tok0}, v{lane}")
            a(f"v_lshlrev_b32 v{t0}, 4, v{t0}")
            a(f"s_lshl_b32 s{stmp}, s{lw}, 16")
            a(f"v_add_u32 v{vx[0]}, s{stmp}, v{t0}")
        else:
            vx = [c.v.get("lvx0"), c.v.get("lvx1")]
            a(f"v_lshrrev_b32 v{t0}, 3, v{lane}")
            a(f"s_lshl_b32 s{stmp}, s{lw}, 5")
            a(f"s_add_u32 s{stmp}, s{stmp}, s{s_tok0}")
            a(f"v_add_u32 v{t0}, s{stmp}, v{t0}")
            a(f"v_mul_u32_u24 v{t0}, {D*2}, v{t0}")
            a(f"v_and_b32 v{t1}, 7, v{lane}")
            a(f"v_lshrrev_b32 v{t2}, 4, v{lane}")
            a(f"v_xor_b32 v{t1}, v{t1}, v{t2}")
            a(f"v_lshl_add_u32 v{vx[0]}, v{t1}, 4, v{t0}")
            a(f"v_xor_b32 v{t1}, 4, v{t1}")
            a(f"v_lshl_add_u32 v{vx[1]}, v{t1}, 4, v{t0}")
        vw = c.v.get("lvw")
        if self.BN == 128:
            a(f"v_lshrrev_b32 v{t0}, 4, v{lane}")
            a(f"v_and_b32 v{t1}, 15, v{lane}")
            a(f"v_lshlrev_b32 v{t2}, 2, v{t0}")
            a(f"v_xor_b32 v{t1}, v{t1}, v{t2}")
        else:
            a(f"v_lshrrev_b32 v{t0}, 3, v{lane}")
            a(f"v_and_b32 v{t1}, 7, v{lane}")
            a(f"v_bfe_u32 v{t2}, v{lane}, 4, 1")
            a(f"v_lshlrev_b32 v{t2}, 2, v{t2}")
            a(f"v_xor_b32 v{t1}, v{t1}, v{t2}")
        a(f"s_lshl_b32 s{stmp}, s{lw}, 4")
        a(f"v_add_u32 v{t0}, s{stmp}, v{t0}")
        a(f"v_mul_u32_u24 v{t0}, {wpitch}, v{t0}")
        a(f"v_lshl_add_u32 v{t0}, v{t1}, 4, v{t0}")
        a(f"v_add_u32 v{vw}, s{s_col0b}, v{t0}")
        swx = c.s.get("swx"); sww = c.s.get("sww"); soff = c.s.get("soff")
        a(f"s_lshl_b32 s{swx}, s{lw}, 12")
        a(f"s_lshl_b32 s{sww}, s{lw}, {12 if self.BN == 128 else 11}")
        nw = 4 if self.BN == 128 else 2
        n = 4 + nw

        def issue(st):
            sb = self.RING0 + (st % self.NS) * self.SLOT
            for j in range(4):
                a(f"s_add_u32 m0, s{swx}, {sb + j*1024}")
                if self.xmode == 'T8':
                    a(f"s_mov_b32 s{soff}, {st*8*32768 + (j>>1)*32768 + (j&1)*1024}")
                    a(f"buffer_load_dwordx4 v{vx[0]}, s[{srdX}:{srdX+3}], s{soff} offen lds")
                else:
                    a(f"s_mov_b32 s{soff}, {st*128 + j*8*D*2}")
                    a(f"buffer_load_dwordx4 v{vx[j&1]}, s[{srdX}:{srdX+3}], s{soff} offen lds")
            rows = 4 if self.BN == 128 else 8
            for j in range(nw):
                a(f"s_add_u32 m0, s{sww}, {sb + 16384 + j*1024}")
                a(f"s_mov_b32 s{soff}, {st*64*wpitch + j*rows*wpitch}")
                a(f"buffer_load_dwordx4 v{vw}, s[{srdW}:{srdW+3}], s{soff} offen lds")

        NS, nst = self.NS, self.nst
        stamp(c, 1)
        for st in range(min(NS, nst)):
            issue(st)
        stamp(c, 2)
        issued = min(NS, nst)
        for st in range(nst):
            a(f"s_waitcnt vmcnt({min(63, (issued - 1 - st) * n)})")
            a("s_barrier")
            if st == 0: stamp(c, 3)
            if st == 4: stamp(c, 4)
            if st == nst - 1: stamp(c, 5)
            if st >= 1 and issued < nst:
                issue(issued)
                issued += 1

    def compute_setup(self):
        c, a = self.c, self.c.a
        lane = c.lane
        BN = self.BN
        t0 = c.v.get("ct0"); t1 = c.v.get("ct1"); t2 = c.v.get("ct2"); t3 = c.v.get("ct3")
        self.tmp = [t0, t1, t2, t3]
        self.vt = c.v.get("vt")
        self.vh = c.v.get("vh")
        a(f"v_and_b32 v{self.vt}, 31, v{lane}")
        a(f"v_lshrrev_b32 v{self.vh}, 5, v{lane}")
        self.s_tt = [c.s.get(f"s_tt{i}") for i in range(self.NT_T)]
        self.s_ft = [c.s.get(f"s_ft{i}") for i in range(2)]
        st = c.s.get("cs_tmp"); st2 = c.s.get("cs_tmp2")
        self.stmp = [st, st2]
        w = c.swave
        if BN == 128:
            a(f"s_lshr_b32 s{st}, s{w}, 1")
            a(f"s_and_b32 s{st2}, s{w}, 1")
            a(f"s_lshl_b32 s{self.s_tt[0]}, s{st}, 1")
            a(f"s_add_u32 s{self.s_tt[0]}, s{self.s_tt[0]}, s{st2}")
            a(f"s_xor_b32 s{self.s_tt[1]}, s{self.s_tt[0]}, 1")
            a(f"s_lshl_b32 s{self.s_ft[0]}, s{st2}, 1")
            a(f"s_add_u32 s{self.s_ft[0]}, s{self.s_ft[0]}, s{st}")
            a(f"s_xor_b32 s{self.s_ft[1]}, s{self.s_ft[0]}, 1")
        else:
            a(f"s_mov_b32 s{self.s_tt[0]}, s{w}")
            a(f"s_mov_b32 s{self.s_ft[0]}, 0")
            a(f"s_mov_b32 s{self.s_ft[1]}, 1")
        self.ax = {}
        for tt in range(self.NT_T):
            if self.xmode == 'T8':
                r = [c.v.get(f"ax{tt}_{b}") for b in range(self.nbase)]
                a(f"s_lshl_b32 s{st}, s{self.s_tt[tt]}, 9")
                a(f"v_lshlrev_b32 v{t0}, 4, v{self.vt}")
                a(f"v_lshl_add_u32 v{t0}, v{self.vh}, 11, v{t0}")
                a(f"v_add_u32 v{r[0]}, s{st}, v{t0}")
                a(f"v_add_u32 v{r[0]}, {self.RING0}, v{r[0]}")
                for b in range(1, self.nbase):
                    a(f"v_add_u32 v{r[b]}, {b*self.per_base*self.SLOT}, v{r[0]}")
                for s in range(4):
                    self.ax[(tt, s)] = (r, s * 4096)
            else:
                for s in range(4):
                    r = [c.v.get(f"ax{tt}_{s}_{b}") for b in range(self.nbase)]
                    a(f"s_lshl_b32 s{st}, s{self.s_tt[tt]}, 12")
                    a(f"v_bfe_u32 v{t0}, v{self.vt}, 1, 3")
                    a(f"v_add_u32 v{t1}, {2*s}, v{self.vh}")
                    a(f"v_xor_b32 v{t0}, v{t0}, v{t1}")
                    a(f"v_lshlrev_b32 v{t0}, 4, v{t0}")
                    a(f"v_lshl_add_u32 v{t0}, v{self.vt}, 7, v{t0}")
                    a(f"v_add_u32 v{r[0]}, s{st}, v{t0}")
                    a(f"v_add_u32 v{r[0]}, {self.RING0}, v{r[0]}")
                    for b in range(1, self.nbase):
                        a(f"v_add_u32 v{r[b]}, {b*self.per_base*self.SLOT}, v{r[0]}")
                    self.ax[(tt, s)] = (r, 0)
        self.aw = {}
        rowb = BN * 2
        for ft in range(2):
            r = [c.v.get(f"aw{ft}_{b}") for b in range(self.nbase)]
            a(f"v_bfe_u32 v{t0}, v{lane}, 2, 2")
            if BN == 128:
                a(f"v_xor_b32 v{t1}, s{self.s_ft[ft]}, v{t0}")
            else:
                a(f"v_lshrrev_b32 v{t1}, 1, v{t0}")
                a(f"v_xor_b32 v{t1}, s{self.s_ft[ft]}, v{t1}")
            a(f"v_lshlrev_b32 v{t1}, 2, v{t1}")
            a(f"v_bfe_u32 v{t2}, v{lane}, 4, 1")
            a(f"v_lshl_add_u32 v{t1}, v{t2}, 1, v{t1}")
            a(f"v_bfe_u32 v{t2}, v{lane}, 1, 1")
            a(f"v_add_u32 v{t1}, v{t1}, v{t2}")
            a(f"v_lshlrev_b32 v{t1}, 4, v{t1}")
            a(f"v_and_b32 v{t2}, 1, v{lane}")
            a(f"v_lshl_add_u32 v{t1}, v{t2}, 3, v{t1}")
            a(f"v_lshl_add_u32 v{t0}, v{self.vh}, 3, v{t0}")
            a(f"v_mul_u32_u24 v{t0}, {rowb}, v{t0}")
            a(f"v_add_u32 v{t0}, v{t0}, v{t1}")
            a(f"v_add_u32 v{r[0]}, {16384 + self.RING0}, v{t0}")
            for b in range(1, self.nbase):
                a(f"v_add_u32 v{r[b]}, {b*self.per_base*self.SLOT}, v{r[0]}")
            self.aw[ft] = r
        self.XA = [[c.v.get(f"xa{s}{tt}", 4, 2) for tt in range(self.NT_T)] for s in range(2)]
        self.WA = [[c.v.get(f"wa{s}{ft}", 4, 2) for ft in range(2)] for s in range(2)]
        self.ACC = [[c.v.get(f"acc{tt}{ft}", 16, 2) for ft in range(2)] for tt in range(self.NT_T)]
        if self.stats:
            self.xs = [c.v.get("xs0"), c.v.get("xs1")]
            self.xq = [c.v.get("xq0"), c.v.get("xq1")]
            self.cs = [c.v.get("cs0"), c.v.get("cs1")]
            self.sones = c.s.get("ones")
            a(f"s_mov_b32 s{self.sones}, {ONES:#x}")
            for r in self.xs + self.xq + self.cs:
                a(f"v_mov_b32 v{r}, 0")

    def reads(self, q):
        st, s = divmod(q, 4)
        b, so = self.slot_base(st)
        setn = q & 1
        out = []
        rowb = self.BN * 2
        for tt in range(self.NT_T):
            r, off = self.ax[(tt, s)]
            out.append(f"ds_read_b128 {vr(self.XA[setn][tt],4)}, v{r[b]} offset:{so + off}")
        for ft in range(2):
            for u in range(2):
                out.append(f"ds_read_b64_tr_b16 {vr(self.WA[setn][ft] + 2*u, 2)}, v{self.aw[ft][b]} offset:{so + (16*s + 4*u)*rowb}")
        return out

    def mainloop(self, orient):
        c, a = self.c, self.c.a
        Q = self.nst * 4
        stamp(c, 1)
        a("s_barrier")
        stamp(c, 2)
        for r in self.reads(0):
            a(r)
        for q in range(Q):
            setn = q & 1
            a("s_waitcnt lgkmcnt(0)")
            if q % 4 == 3 and q + 1 < Q:
                a("s_barrier")
            rd = self.reads(q + 1) if q + 1 < Q else []
            mf = []
            for tt in range(self.NT_T):
                for ft in range(2):
                    acc = vr(self.ACC[tt][ft], 16)
                    cc = "0" if q == 0 else acc
                    x, w = vr(self.XA[setn][tt], 4), vr(self.WA[setn][ft], 4)
                    if orient == 'TN':
                        mf.append(f"v_mfma_f32_32x32x16_bf16 {acc}, {w}, {x}, {cc}")
                    else:
                        mf.append(f"v_mfma_f32_32x32x16_bf16 {acc}, {x}, {w}, {cc}")
            dots = []
            if self.stats:
                for j in range(4):
                    x = self.XA[setn][0] + j
                    dots.append(f"v_dot2c_f32_bf16 v{self.xs[j&1]}, s{self.sones}, v{x}")
                    dots.append(f"v_dot2c_f32_bf16 v{self.xq[j&1]}, v{x}, v{x}")
                    dots.append(f"v_dot2c_f32_bf16 v{self.cs[j&1]}, s{self.sones}, v{self.WA[setn][0]+j}")
            nm = len(mf)
            fill = [[] for _ in range(nm)]
            half = (len(rd) + 1) // 2
            if nm == 4:
                fill[0] += rd[:half]; fill[1] += rd[half:]
                fill[1] += dots[:2]; fill[2] += dots[2:7]; fill[3] += dots[7:]
            else:
                fill[0] += rd[:half]; fill[1] += rd[half:]
            for m, f in zip(mf, fill):
                a(m)
                for x in f:
                    a(x)

    def stats_finalize(self, STAT, eps=1e-5):
        c, a = self.c, self.c.a
        t0, t1, t2, t3 = self.tmp
        xs, xq, cs = self.xs, self.xq, self.cs
        a("s_nop 3")
        a(f"v_add_f32 v{xs[0]}, v{xs[0]}, v{xs[1]}")
        a(f"v_add_f32 v{xq[0]}, v{xq[0]}, v{xq[1]}")
        a(f"v_add_f32 v{cs[0]}, v{cs[0]}, v{cs[1]}")
        a(f"v_mov_b32 v{t0}, v{xs[0]}")
        a(f"v_mov_b32 v{t1}, v{xq[0]}")
        a(f"v_mov_b32 v{t2}, v{cs[0]}")
        a("s_nop 1")
        a(f"v_permlane32_swap_b32 v{t0}, v{xs[0]}")
        a(f"v_permlane32_swap_b32 v{t1}, v{xq[0]}")
        a(f"v_permlane32_swap_b32 v{t2}, v{cs[0]}")
        a("s_nop 1")
        a(f"v_add_f32 v{xs[0]}, v{xs[0]}, v{t0}")
        a(f"v_add_f32 v{xq[0]}, v{xq[0]}, v{t1}")
        a(f"v_add_f32 v{cs[0]}, v{cs[0]}, v{t2}")
        import struct
        inv = struct.unpack("<I", struct.pack("<f", 1.0 / D))[0]
        epsb = struct.unpack("<I", struct.pack("<f", eps))[0]
        a(f"v_mul_f32 v{xs[0]}, {inv:#x}, v{xs[0]}")
        a(f"v_mul_f32 v{xq[0]}, {inv:#x}, v{xq[0]}")
        a(f"v_fma_f32 v{xq[0]}, -v{xs[0]}, v{xs[0]}, v{xq[0]}")
        a(f"v_max_f32 v{xq[0]}, 0, v{xq[0]}")
        a(f"v_add_f32 v{xq[0]}, {epsb:#x}, v{xq[0]}")
        a(f"v_rsq_f32 v{xq[0]}, v{xq[0]}")
        st = self.stmp[0]
        a(f"s_lshl_b32 s{st}, s{self.s_tt[0]}, 7")
        a(f"v_lshl_add_u32 v{t0}, v{self.vt}, 2, s{st}")
        a(f"v_mul_f32 v{xs[0]}, v{xs[0]}, v{xq[0]}")
        a(f"v_sub_f32 v{xs[0]}, 0, v{xs[0]}")
        a(f"s_lshl_b32 s{st}, s{self.s_ft[0]}, 7")
        a(f"v_lshl_add_u32 v{t1}, v{self.vt}, 2, s{st}")
        a(f"ds_write_b32 v{t0}, v{xq[0]} offset:{STAT}")
        a(f"ds_write_b32 v{t0}, v{xs[0]} offset:{STAT+512}")
        a(f"ds_write_b32 v{t1}, v{cs[0]} offset:{STAT+1024}")
        a("s_waitcnt lgkmcnt(0)")
        a("s_barrier")


def swap_pack_store(a, vals, P, addr, srd_, soffs):
    for g in range(4):
        a(f"v_cvt_pk_bf16_f32 v{P+2*g}, v{vals+4*g}, v{vals+4*g+1}")
        a(f"v_cvt_pk_bf16_f32 v{P+2*g+1}, v{vals+4*g+2}, v{vals+4*g+3}")
    a("s_nop 1")
    for g in (0, 2):
        a(f"v_permlane32_swap_b32 v{P+2*g}, v{P+2*g+2}")
        a(f"v_permlane32_swap_b32 v{P+2*g+1}, v{P+2*g+3}")
    for i, g in enumerate((0, 2)):
        a(f"buffer_store_dwordx4 {vr(P+2*g,4)}, v{addr}, s[{srd_}:{srd_+3}], s{soffs[i]} offen")


def gen_qkv(a, name):
    c = Ctx(a, name)
    kernel_begin(a, name)
    done = f"{name}_done"
    a("s_cmp_ge_u32 s2, 256")
    a(f"s_cbranch_scc1 {done}")
    stamp(c, 0)
    p = load_ptrs(c, [P_X, P_WQKV, P_WS])
    wave_lane(c)
    s_rb = c.s.get("rb"); s_ct = c.s.get("ct"); t = c.s.get("t"); t2 = c.s.get("t2")
    a(f"s_and_b32 s{t}, s2, 7")
    a(f"s_lshr_b32 s{t2}, s2, 3")
    a(f"s_lshr_b32 s{s_rb}, s{t}, 1")
    a(f"s_lshl_b32 s{s_rb}, s{s_rb}, 2")
    a(f"s_and_b32 s{s_ct}, s{t2}, 3")
    a(f"s_add_u32 s{s_rb}, s{s_rb}, s{s_ct}")
    a(f"s_and_b32 s{t}, s{t}, 1")
    a(f"s_lshl_b32 s{t}, s{t}, 3")
    a(f"s_lshr_b32 s{s_ct}, s{t2}, 2")
    a(f"s_add_u32 s{s_ct}, s{s_ct}, s{t}")
    a(f"s_cmp_ge_u32 s{s_ct}, 15")
    a(f"s_cbranch_scc1 {done}")
    s_tok0 = c.s.get("tok0"); s_colb = c.s.get("colb")
    a(f"s_lshl_b32 s{s_tok0}, s{s_rb}, 7")
    a(f"s_lshl_b32 s{s_colb}, s{s_ct}, 8")
    sX = c.s.get("srdX", 4, 4); sW = c.s.get("srdW", 4, 4); sQK = c.s.get("srdQK", 4, 4); sVT = c.s.get("srdVT", 4, 4)
    a("s_waitcnt lgkmcnt(0)")
    srd(a, sX, p[P_X], S * D * 2)
    srd(a, sW, p[P_WQKV], D * NQKV * 2)
    srd(a, sQK, p[P_WS], QK_SZ, QK_OFF)
    srd(a, sVT, p[P_WS], VT_SZ, VT_OFF)
    g = Gemm(c, 128, 'row', 10, 4, True)
    STAT = 0
    lload = f"{name}_loader"
    a(f"s_cmp_ge_u32 s{c.swave}, 4")
    a(f"s_cbranch_scc1 {lload}")
    vm = c.v.mark(); sm = c.s.mark()
    g.compute_setup()
    lnt = f"{name}_nt"
    a(f"s_cmp_ge_u32 s{s_ct}, 10")
    a(f"s_cbranch_scc1 {lnt}")
    P = c.v.get("P", 8, 2); CSV = c.v.get("csv", 16, 2); NMV = c.v.get("nmv", 16, 2)
    vR = [c.v.get("vR0"), c.v.get("vR1")]; vN = [c.v.get("vN0"), c.v.get("vN1")]
    vad = c.v.get("vad"); vad2 = c.v.get("vad2")
    so = [c.s.get("so0"), c.s.get("so1")]
    t0, t1, t2v, t3 = g.tmp
    st = g.stmp[0]
    g.mainloop('TN')
    stamp(c, 3)
    g.stats_finalize(STAT)
    stamp(c, 4)
    for tt in range(2):
        a(f"s_lshl_b32 s{st}, s{g.s_tt[tt]}, 7")
        a(f"v_lshl_add_u32 v{t0}, v{g.vt}, 2, s{st}")
        a(f"ds_read_b32 v{vR[tt]}, v{t0} offset:{STAT}")
        a(f"ds_read_b32 v{vN[tt]}, v{t0} offset:{STAT+512}")
    for ft in range(2):
        a(f"s_lshl_b32 s{st}, s{g.s_ft[ft]}, 7")
        a(f"v_lshl_add_u32 v{t0}, v{g.vh}, 4, s{st}")
        for gg in range(4):
            a(f"ds_read_b128 {vr(CSV+4*gg,4)}, v{t0} offset:{STAT+1024+32*gg}")
        a("s_waitcnt lgkmcnt(0)")
        for tt in range(2):
            acc = g.ACC[tt][ft]
            for i in range(16):
                a(f"v_mul_f32 v{acc+i}, v{acc+i}, v{vR[tt]}")
                a(f"v_fmac_f32 v{acc+i}, v{vN[tt]}, v{CSV+i}")
            a(f"s_lshl_b32 s{st}, s{g.s_tt[tt]}, 5")
            a(f"s_add_u32 s{st}, s{st}, s{s_tok0}")
            a(f"v_add_u32 v{vad}, s{st}, v{g.vt}")
            a(f"v_lshlrev_b32 v{vad}, 4, v{vad}")
            a(f"v_lshl_add_u32 v{vad}, v{g.vh}, 15, v{vad}")
            a(f"s_lshl_b32 s{so[0]}, s{s_ct}, 2")
            a(f"s_add_u32 s{so[0]}, s{so[0]}, s{g.s_ft[ft]}")
            a(f"s_lshl_b32 s{so[0]}, s{so[0]}, 17")
            a(f"s_add_u32 s{so[1]}, s{so[0]}, {2*32768}")
            swap_pack_store(a, acc, P, vad, sQK, so)
            a("s_nop 1")
    stamp(c, 5)
    if PROF: a("s_waitcnt vmcnt(0)")
    stamp(c, 6)
    prof_store(c, 7, p[P_WS], 0)
    a("s_endpgm")
    a.label(lnt)
    g.mainloop('NT')
    g.stats_finalize(STAT)
    vC = [vR[0], vR[1]]
    for ft in range(2):
        a(f"s_lshl_b32 s{st}, s{g.s_ft[ft]}, 7")
        a(f"v_lshl_add_u32 v{t0}, v{g.vt}, 2, s{st}")
        a(f"ds_read_b32 v{vC[ft]}, v{t0} offset:{STAT+1024}")
    for tt in range(2):
        a(f"s_lshl_b32 s{st}, s{g.s_tt[tt]}, 7")
        a(f"v_lshl_add_u32 v{t0}, v{g.vh}, 4, s{st}")
        for gg in range(4):
            a(f"ds_read_b128 {vr(CSV+4*gg,4)}, v{t0} offset:{STAT+32*gg}")
            a(f"ds_read_b128 {vr(NMV+4*gg,4)}, v{t0} offset:{STAT+512+32*gg}")
        a("s_waitcnt lgkmcnt(0)")
        for ft in range(2):
            acc = g.ACC[tt][ft]
            for i in range(16):
                a(f"v_mul_f32 v{acc+i}, v{acc+i}, v{CSV+i}")
                a(f"v_fmac_f32 v{acc+i}, v{NMV+i}, v{vC[ft]}")
            a(f"s_sub_u32 s{st}, s{s_ct}, 10")
            a(f"s_lshl_b32 s{st}, s{st}, 2")
            a(f"s_add_u32 s{st}, s{st}, s{g.s_ft[ft]}")
            a(f"s_lshl_b32 s{st}, s{st}, 5")
            a(f"v_add_u32 v{vad}, s{st}, v{g.vt}")
            a(f"v_lshlrev_b32 v{vad}, 4, v{vad}")
            a(f"v_mul_u32_u24 v{vad2}, 10240, v{g.vh}")
            a(f"v_add_u32 v{vad}, v{vad}, v{vad2}")
            a(f"s_lshl_b32 s{st}, s{g.s_tt[tt]}, 2")
            a(f"s_lshr_b32 s{so[0]}, s{s_tok0}, 3")
            a(f"s_add_u32 s{so[0]}, s{so[0]}, s{st}")
            a(f"s_mul_i32 s{so[0]}, s{so[0]}, 10240")
            a(f"s_add_u32 s{so[1]}, s{so[0]}, {2*10240}")
            swap_pack_store(a, acc, P, vad, sVT, so)
            a("s_nop 1")
    a("s_endpgm")
    vhigh = c.v.high
    c.v.reset(vm); c.s.reset(sm)
    a.label(lload)
    g.loader(sX, sW, s_tok0, s_colb, 128, NQKV * 2)
    stamp(c, 6)
    prof_store(c, 7, p[P_WS], 1)
    a.label(done)
    a("s_endpgm")
    return dict(name=name, grid=256, block=512, lds=g.LDS_END, vgpr=max(vhigh, c.v.high), sgpr=c.s.high)


def fbits(x):
    import struct
    return struct.unpack("<I", struct.pack("<f", x))[0]

def gen_att(a, name):
    import math
    c = Ctx(a, name)
    kernel_begin(a, name)
    done = f"{name}_done"
    KOFF, QOFF, VOFF, LDS_END = 0, 30720, 40960, 71680
    a("s_cmp_ge_u32 s2, 256")
    a(f"s_cbranch_scc1 {done}")
    stamp(c, 0)
    p = load_ptrs(c, [P_WS])
    wave_lane(c)
    lane = c.lane
    s_rb = c.s.get("rb"); s_p = c.s.get("p"); t = c.s.get("t"); t2 = c.s.get("t2")
    a(f"s_and_b32 s{t}, s2, 7")
    a(f"s_lshr_b32 s{t2}, s2, 3")
    a(f"s_and_b32 s{s_rb}, s{t2}, 15")
    a(f"s_lshr_b32 s{t2}, s{t2}, 4")
    a(f"s_lshl_b32 s{s_p}, s{t}, 1")
    a(f"s_add_u32 s{s_p}, s{s_p}, s{t2}")
    sQK = c.s.get("srdQK", 4, 4); sVT = c.s.get("srdVT", 4, 4); sO = c.s.get("srdO", 4, 4)
    a("s_waitcnt lgkmcnt(0)")
    srd(a, sQK, p[P_WS], QK_SZ, QK_OFF)
    srd(a, sVT, p[P_WS], VT_SZ, VT_OFF)
    srd(a, sO, p[P_WS], O_SZ, O_OFF)
    w = c.swave
    v0_, v1_, v2_, v3_ = [c.v.get(f"t{i}") for i in range(4)]
    s_tokb = c.s.get("tokb"); s_col8 = c.s.get("col8"); s_ldsb = c.s.get("ldsb"); s_gp = c.s.get("gp"); s_off = c.s.get("off")
    a(f"s_lshl_b32 s{s_tokb}, s{s_rb}, 7")
    a(f"s_lshl_b32 s{t}, s{w}, 6")
    a(f"s_add_u32 s{s_tokb}, s{s_tokb}, s{t}")
    a(f"s_mul_i32 s{s_col8}, s{s_p}, 5")
    a(f"s_lshl_b32 s{s_ldsb}, s{w}, 10")
    a(f"s_cmp_lt_u32 s{w}, 6")
    a(f"s_cselect_b32 s{t}, 0, 128")
    a(f"s_add_u32 s{t}, s{t}, 256")
    a(f"s_sub_u32 s{s_tokb}, s{s_tokb}, s{t}")
    a(f"s_cmp_lt_u32 s{w}, 6")
    a(f"s_cselect_b32 s{t}, 80, 0")
    a(f"s_add_u32 s{s_col8}, s{s_col8}, s{t}")
    a(f"s_cmp_lt_u32 s{w}, 6")
    a(f"s_cselect_b32 s{t}, {KOFF}, {QOFF - 6*1024}")
    a(f"s_add_u32 s{s_ldsb}, s{s_ldsb}, s{t}")
    a(f"s_cmp_lt_u32 s{w}, 6")
    a(f"s_cselect_b32 s{s_gp}, 4096, 0")
    a(f"s_add_u32 s{s_gp}, s{s_gp}, 2048")
    a(f"v_add_u32 v{v0_}, s{s_tokb}, v{lane}")
    a(f"v_max_i32 v{v0_}, 0, v{v0_}")
    a(f"v_lshlrev_b32 v{v0_}, 4, v{v0_}")
    a(f"s_lshl_b32 s{s_col8}, s{s_col8}, 15")
    for G in range(5):
        a(f"s_mov_b32 m0, s{s_ldsb}")
        a(f"s_add_u32 s{s_off}, s{s_col8}, {G*32768}")
        a(f"buffer_load_dwordx4 v{v0_}, s[{sQK}:{sQK+3}], s{s_off} offen lds")
        a(f"s_add_u32 s{s_ldsb}, s{s_ldsb}, s{s_gp}")
    s_t80 = c.s.get("t80")
    a(f"s_lshl_b32 s{s_t80}, s{s_rb}, 4")
    a(f"s_sub_u32 s{s_t80}, s{s_t80}, 32")
    a(f"s_mul_i32 s{s_off}, s{s_p}, 640")
    lv = a.newlabel("vskip")
    for i in range(4):
        if i == 3:
            a(f"s_cmp_ge_u32 s{w}, 6")
            a(f"s_cbranch_scc1 {lv}")
        a(f"s_lshl_b32 s{t}, s{w}, 6")
        a(f"s_add_u32 s{t}, s{t}, {512*i}")
        a(f"v_add_u32 v{v0_}, s{t}, v{lane}")
        a(f"v_mul_u32_u24 v{v1_}, 52429, v{v0_}")
        a(f"v_lshrrev_b32 v{v1_}, 21, v{v1_}")
        a(f"v_mul_u32_u24 v{v2_}, 40, v{v1_}")
        a(f"v_sub_u32 v{v2_}, v{v0_}, v{v2_}")
        a(f"v_add_u32 v{v1_}, s{s_t80}, v{v1_}")
        a(f"v_max_i32 v{v1_}, 0, v{v1_}")
        a(f"v_mul_u32_u24 v{v1_}, 10240, v{v1_}")
        a(f"v_lshl_add_u32 v{v1_}, v{v2_}, 4, v{v1_}")
        a(f"s_lshl_b32 s{t}, s{t}, 4")
        a(f"s_add_u32 m0, s{t}, {VOFF}")
        a("s_nop 0")
        a(f"buffer_load_dwordx4 v{v1_}, s[{sVT}:{sVT+3}], s{s_off} offen lds")
    a.label(lv)
    s_qt = c.s.get("qt"); s_hs = c.s.get("hs")
    a(f"s_and_b32 s{s_qt}, s{w}, 3")
    a(f"s_lshr_b32 s{s_hs}, s{w}, 2")
    vt = c.v.get("vt"); vh = c.v.get("vh")
    a(f"v_and_b32 v{vt}, 31, v{lane}")
    a(f"v_lshrrev_b32 v{vh}, 5, v{lane}")
    aQ1 = c.v.get("aQ1"); aQ2 = c.v.get("aQ2"); aK1 = c.v.get("aK1"); aK2 = c.v.get("aK2"); aV = c.v.get("aV")
    s_g0 = c.s.get("g0")
    a(f"s_mul_i32 s{s_g0}, s{s_hs}, 3")
    a(f"s_lshl_b32 s{t}, s{s_qt}, 9")
    a(f"v_lshl_add_u32 v{v0_}, v{vt}, 4, s{t}")
    a(f"v_add_u32 v{v1_}, s{s_g0}, v{vh}")
    a(f"v_lshl_add_u32 v{aQ1}, v{v1_}, 11, v{v0_}")
    a(f"v_add_u32 v{aQ1}, {QOFF}, v{aQ1}")
    a(f"v_lshl_add_u32 v{aQ2}, v{vh}, 3, v{v0_}")
    a(f"v_add_u32 v{aQ2}, {QOFF + 2*2048}, v{aQ2}")
    a(f"v_and_b32 v{v0_}, 0x13, v{vt}")
    a(f"v_bfe_u32 v{v2_}, v{vt}, 2, 1")
    a(f"v_lshl_or_b32 v{v0_}, v{v2_}, 3, v{v0_}")
    a(f"v_bfe_u32 v{v2_}, v{vt}, 3, 1")
    a(f"v_lshl_or_b32 v{v0_}, v{v2_}, 2, v{v0_}")
    a(f"v_lshl_add_u32 v{v0_}, v{v0_}, 4, s{t}")
    a(f"v_mul_u32_u24 v{v1_}, 6144, v{v1_}")
    a(f"v_add_u32 v{aK1}, v{v1_}, v{v0_}")
    a(f"v_lshl_add_u32 v{aK2}, v{vh}, 3, v{v0_}")
    a(f"v_add_u32 v{aK2}, {KOFF + 2*6144}, v{aK2}")
    if KOFF: a(f"v_add_u32 v{aK1}, {KOFF}, v{aK1}")
    a(f"s_lshl_b32 s{t}, s{s_hs}, 4")
    a(f"v_add_u32 v{v0_}, s{t}, v{vt}")
    a(f"v_lshlrev_b32 v{v0_}, 4, v{v0_}")
    a(f"s_lshl_b32 s{t}, s{s_qt}, 2")
    a(f"v_add_u32 v{v1_}, s{t}, v{vh}")
    a(f"v_mul_u32_u24 v{v1_}, 640, v{v1_}")
    a(f"v_add3_u32 v{aV}, v{v0_}, v{v1_}, 0")
    a(f"v_add_u32 v{aV}, {VOFF}, v{aV}")
    s_vm = c.s.get("vmask", 2, 2)
    a(f"s_lshl_b32 s{t}, s{s_hs}, 2")
    a(f"v_subrev_u32 v{v0_}, s{t}, v{vt}")
    a(f"v_cmp_gt_u32 s[{s_vm}:{s_vm+1}], 20, v{v0_}")
    s_mk = c.s.get("mk", 32, 2)
    a(f"v_lshlrev_b32 v{v0_}, 3, v{vh}")
    a(f"v_sub_u32 v{v0_}, v{vt}, v{v0_}")
    for i in range(16):
        g, r = divmod(i, 4)
        cr = 16 * (g >> 1) + 4 * (g & 1) + r
        a(f"v_cmp_le_i32 s[{s_mk+2*i}:{s_mk+2*i+1}], {cr}, v{v0_}")
    s_hm = c.s.get("hm", 2, 2)
    a(f"v_cmp_eq_u32 s[{s_hm}:{s_hm+1}], s{s_hs}, v{vh}")
    Q1 = c.v.get("Q1", 4, 2); Q2 = c.v.get("Q2", 2, 2)
    K1 = [c.v.get(f"K1{i}", 4, 2) for i in range(3)]; K2 = [c.v.get(f"K2{i}", 2, 2) for i in range(3)]
    VF = [c.v.get(f"VF{i}", 4, 2) for i in range(4)]
    O = c.v.get("O", 16, 2)
    Sr = [c.v.get(f"S{i}", 16, 2) for i in range(9)]
    vneg = c.v.get("neg"); vm = [c.v.get(f"m{i}") for i in range(4)]
    a(f"v_mov_b32 v{vneg}, {fbits(-1e30):#x}")
    for i in range(4):
        for j in range(4):
            a(f"v_mov_b32 v{VF[i]+j}, {ONES:#x}")
    stamp(c, 1)
    a("s_waitcnt vmcnt(3)")
    a("s_barrier")
    stamp(c, 2)
    a(f"ds_read_b128 {vr(Q1,4)}, v{aQ1}")
    a(f"ds_read_b64 {vr(Q2,2)}, v{aQ2}")
    def kread(i):
        a(f"ds_read_b128 {vr(K1[i%3],4)}, v{aK1} offset:{i*512}")
        a(f"ds_read_b64 {vr(K2[i%3],2)}, v{aK2} offset:{i*512}")
    kread(0); kread(1)
    a("s_waitcnt lgkmcnt(4)")
    a(f"v_cndmask_b32 v{Q2}, 0, v{Q2}, s[{s_hm}:{s_hm+1}]")
    a(f"v_cndmask_b32 v{Q2+1}, 0, v{Q2+1}, s[{s_hm}:{s_hm+1}]")
    for i in range(9):
        if i + 2 < 9:
            kread(i + 2)
            a("s_waitcnt lgkmcnt(4)")
        elif i + 1 < 9:
            a("s_waitcnt lgkmcnt(2)")
        else:
            a("s_waitcnt lgkmcnt(0)")
        a(f"v_mfma_f32_32x32x16_bf16 {vr(Sr[i],16)}, {vr(K1[i%3],4)}, {vr(Q1,4)}, 0")
        a(f"v_mfma_f32_32x32x8_bf16 {vr(Sr[i],16)}, {vr(K2[i%3],2)}, {vr(Q2,2)}, {vr(Sr[i],16)}")
    stamp(c, 3)
    a("s_nop 15")
    for i in range(16):
        mk = f"s[{s_mk+2*i}:{s_mk+2*i+1}]"
        a(f"v_cndmask_b32 v{Sr[0]+i}, v{Sr[0]+i}, v{vneg}, {mk}")
        a(f"v_cndmask_b32 v{Sr[8]+i}, v{vneg}, v{Sr[8]+i}, {mk}")
    lz = a.newlabel("nozero")
    s_g = c.s.get("gt0")
    a(f"s_cmp_ge_u32 s{s_rb}, 2")
    a(f"s_cbranch_scc1 {lz}")
    a(f"s_lshl_b32 s{s_g}, s{s_rb}, 2")
    a(f"s_add_u32 s{s_g}, s{s_g}, s{s_qt}")
    for i in range(8):
        a(f"s_cmp_ge_u32 s{s_g}, {8 - i}")
        a(f"s_cbranch_scc1 {lz}")
        for j in range(16):
            a(f"v_mov_b32 v{Sr[i]+j}, v{vneg}")
    a.label(lz)
    allS = [Sr[i] + j for i in range(9) for j in range(16)]
    for k in range(4):
        a(f"v_max_f32 v{vm[k]}, v{allS[2*k]}, v{allS[2*k+1]}")
    for n in range(8, 144, 2):
        k = (n // 2) % 4
        a(f"v_max3_f32 v{vm[k]}, v{allS[n]}, v{allS[n+1]}, v{vm[k]}")
    a(f"v_max3_f32 v{vm[0]}, v{vm[0]}, v{vm[1]}, v{vm[2]}")
    a(f"v_max_f32 v{vm[0]}, v{vm[0]}, v{vm[3]}")
    a(f"v_mov_b32 v{vm[1]}, v{vm[0]}")
    a("s_nop 1")
    a(f"v_permlane32_swap_b32 v{vm[0]}, v{vm[1]}")
    a("s_nop 1")
    a(f"v_max_f32 v{vm[0]}, v{vm[0]}, v{vm[1]}")
    s_c = c.s.get("c")
    a(f"s_mov_b32 s{s_c}, {fbits(20 ** -0.5 * math.log2(math.e)):#x}")
    a(f"v_mul_f32 v{vm[0]}, s{s_c}, v{vm[0]}")
    stamp(c, 4)
    a("s_waitcnt vmcnt(0)")
    a("s_barrier")
    def vread(i):
        a(f"s_mov_b64 exec, s[{s_vm}:{s_vm+1}]")
        for tt in range(2):
            a(f"ds_read_b128 {vr(VF[(2*i+tt)%4],4)}, v{aV} offset:{(4*i+2*tt)*640}")
        a("s_mov_b64 exec, -1")
    vread(0)
    for i in range(9):
        S_ = Sr[i]
        for j in range(16):
            a(f"v_fma_f32 v{S_+j}, v{S_+j}, s{s_c}, -v{vm[0]}")
        for j in range(16):
            a(f"v_exp_f32 v{S_+j}, v{S_+j}")
        if i + 1 < 9:
            vread(i + 1)
        else:
            a("s_nop 0")
        for j in range(8):
            a(f"v_cvt_pk_bf16_f32 v{S_+j}, v{S_+2*j}, v{S_+2*j+1}")
        a(f"s_waitcnt lgkmcnt({2 if i + 1 < 9 else 0})")
        for tt in range(2):
            cc = "0" if (i == 0 and tt == 0) else vr(O, 16)
            a(f"v_mfma_f32_32x32x16_bf16 {vr(O,16)}, {vr(VF[(2*i+tt)%4],4)}, {vr(S_+4*tt,4)}, {cc}")
    stamp(c, 5)
    a("s_nop 15")
    rinv = vm[1]
    a(f"v_rcp_f32 v{rinv}, v{O+12}")
    a("s_nop 0")
    for j in range(12):
        a(f"v_mul_f32 v{O+j}, v{O+j}, v{rinv}")
    P = K1[0]
    PP = c.v.get("PP", 6, 2)
    for g in range(3):
        a(f"v_cvt_pk_bf16_f32 v{PP+2*g}, v{O+4*g}, v{O+4*g+1}")
        a(f"v_cvt_pk_bf16_f32 v{PP+2*g+1}, v{O+4*g+2}, v{O+4*g+3}")
    vad = v0_; vad2 = v1_
    a(f"s_lshl_b32 s{t}, s{s_rb}, 7")
    a(f"s_lshl_b32 s{t2}, s{s_qt}, 5")
    a(f"s_add_u32 s{t}, s{t}, s{t2}")
    a(f"v_add_u32 v{vad}, s{t}, v{vt}")
    a(f"v_lshlrev_b32 v{vad}, 4, v{vad}")
    a(f"v_lshl_add_u32 v{vad2}, v{vh}, 3, v{vad}")
    a(f"v_lshl_add_u32 v{vad}, v{vh}, 15, v{vad}")
    a(f"s_mul_i32 s{t}, s{s_p}, 5")
    a(f"s_add_u32 s{t2}, s{t}, 2")
    a(f"s_lshl_b32 s{t2}, s{t2}, 15")
    a(f"s_add_u32 s{t}, s{t}, s{s_g0}")
    a(f"s_lshl_b32 s{t}, s{t}, 15")
    lb = a.newlabel("headB"); le = a.newlabel("headE")
    a(f"s_cmp_eq_u32 s{s_hs}, 1")
    a(f"s_cbranch_scc1 {lb}")
    a(f"v_permlane32_swap_b32 v{PP}, v{PP+2}")
    a(f"v_permlane32_swap_b32 v{PP+1}, v{PP+3}")
    a(f"buffer_store_dwordx4 {vr(PP,4)}, v{vad}, s[{sO}:{sO+3}], s{t} offen")
    a(f"s_mov_b64 exec, s[{s_hm}:{s_hm+1}]")
    a(f"buffer_store_dwordx2 {vr(PP+4,2)}, v{vad2}, s[{sO}:{sO+3}], s{t2} offen")
    a(f"s_branch {le}")
    a.label(lb)
    a(f"v_permlane32_swap_b32 v{PP+2}, v{PP+4}")
    a(f"v_permlane32_swap_b32 v{PP+3}, v{PP+5}")
    a(f"buffer_store_dwordx4 {vr(PP+2,4)}, v{vad}, s[{sO}:{sO+3}], s{t} offen")
    a(f"s_mov_b64 exec, s[{s_hm}:{s_hm+1}]")
    a(f"buffer_store_dwordx2 {vr(PP,2)}, v{vad2}, s[{sO}:{sO+3}], s{t2} offen")
    a.label(le)
    a("s_mov_b64 exec, -1")
    stamp(c, 6)
    prof_store(c, 7, p[P_WS], 0)
    a.label(done)
    a("s_endpgm")
    return dict(name=name, grid=256, block=512, lds=LDS_END, vgpr=c.v.high, sgpr=c.s.high)


def tile_map(c, nct_half, done):
    a = c.a
    s_rb = c.s.get("rb"); s_ct = c.s.get("ct"); t = c.s.get("t"); t2 = c.s.get("t2")
    a(f"s_and_b32 s{t}, s2, 7")
    a(f"s_lshr_b32 s{t2}, s2, 3")
    a(f"s_lshr_b32 s{s_rb}, s{t}, 1")
    a(f"s_lshl_b32 s{s_rb}, s{s_rb}, 2")
    a(f"s_and_b32 s{s_ct}, s{t2}, 3")
    a(f"s_add_u32 s{s_rb}, s{s_rb}, s{s_ct}")
    a(f"s_lshr_b32 s{s_ct}, s{t2}, 2")
    a(f"s_cmp_ge_u32 s{s_ct}, {nct_half}")
    a(f"s_cbranch_scc1 {done}")
    a(f"s_and_b32 s{t}, s{t}, 1")
    a(f"s_mul_i32 s{t}, s{t}, {nct_half}")
    a(f"s_add_u32 s{s_ct}, s{s_ct}, s{t}")
    return s_rb, s_ct


def row_tile_addr(c, g, base, regs):
    a = c.a
    t0, t1 = g.tmp[0], g.tmp[1]
    st = g.stmp[0]
    a(f"s_lshl_b32 s{st}, s{c.swave}, 12")
    a(f"s_add_u32 s{st}, s{st}, {base}")
    a(f"v_lshl_add_u32 v{t0}, v{g.vt}, 7, s{st}")
    a(f"v_lshl_add_u32 v{t0}, v{g.vh}, 3, v{t0}")
    a(f"v_bfe_u32 v{t1}, v{g.vt}, 1, 3")
    for k in range(8):
        a(f"v_xor_b32 v{regs+k}, {k}, v{t1}")
        a(f"v_lshl_add_u32 v{regs+k}, v{regs+k}, 4, v{t0}")


def row_tile_goff(c, g, s_tok0, s_ct, vq):
    a = c.a
    lane = c.lane
    t0, t1, t2 = g.tmp[0], g.tmp[1], g.tmp[2]
    st = g.stmp[0]
    a(f"s_lshl_b32 s{st}, s{c.swave}, 5")
    a(f"s_add_u32 s{st}, s{st}, s{s_tok0}")
    a(f"v_lshrrev_b32 v{t0}, 3, v{lane}")
    a(f"v_add_u32 v{t0}, s{st}, v{t0}")
    a(f"v_mul_u32_u24 v{t0}, {D*2}, v{t0}")
    a(f"s_lshl_b32 s{st}, s{s_ct}, 7")
    a(f"v_add_u32 v{t0}, s{st}, v{t0}")
    a(f"v_and_b32 v{t1}, 7, v{lane}")
    a(f"v_lshrrev_b32 v{t2}, 4, v{lane}")
    a(f"v_xor_b32 v{t1}, v{t1}, v{t2}")
    a(f"v_lshl_add_u32 v{vq[0]}, v{t1}, 4, v{t0}")
    a(f"v_xor_b32 v{t1}, 4, v{t1}")
    a(f"v_lshl_add_u32 v{vq[1]}, v{t1}, 4, v{t0}")


def gen_wo(a, name):
    c = Ctx(a, name)
    kernel_begin(a, name)
    done = f"{name}_done"
    a("s_cmp_ge_u32 s2, 256")
    a(f"s_cbranch_scc1 {done}")
    stamp(c, 0)
    p = load_ptrs(c, [P_X, P_WO, P_WS])
    wave_lane(c)
    s_rb, s_ct = tile_map(c, 5, done)
    s_tok0 = c.s.get("tok0"); s_colb = c.s.get("colb")
    a(f"s_lshl_b32 s{s_tok0}, s{s_rb}, 7")
    a(f"s_lshl_b32 s{s_colb}, s{s_ct}, 7")
    sX = c.s.get("srdX", 4, 4); sW = c.s.get("srdW", 4, 4); sO = c.s.get("srdO", 4, 4); sH = c.s.get("srdH", 4, 4)
    a("s_waitcnt lgkmcnt(0)")
    srd(a, sX, p[P_X], S * D * 2)
    srd(a, sW, p[P_WO], D * D * 2)
    srd(a, sO, p[P_WS], O_SZ, O_OFF)
    srd(a, sH, p[P_WS], H_SZ, H_OFF)
    g = Gemm(c, 64, 'T8', 10, 5, False)
    RES = g.LDS_END
    lload = f"{name}_loader"
    a(f"s_cmp_ge_u32 s{c.swave}, 4")
    a(f"s_cbranch_scc1 {lload}")
    vm = c.v.mark(); sm = c.s.mark()
    g.compute_setup()
    vq = [c.v.get("vq0"), c.v.get("vq1")]
    row_tile_goff(c, g, s_tok0, s_ct, vq)
    st, st2 = g.stmp
    for q in range(4):
        a(f"s_lshl_b32 s{st}, s{c.swave}, 12")
        a(f"s_add_u32 m0, s{st}, {RES + q*1024}")
        a(f"s_mov_b32 s{st2}, {q*8*D*2}")
        a(f"buffer_load_dwordx4 v{vq[q&1]}, s[{sX}:{sX+3}], s{st2} offen lds")
    ra = c.v.get("ra", 8)
    row_tile_addr(c, g, RES, ra)
    R = c.v.get("R", 16, 2); P = c.v.get("P", 8, 2); vad = c.v.get("vad")
    so = [c.s.get("so0"), c.s.get("so1")]
    g.mainloop('TN')
    stamp(c, 3)
    a("s_waitcnt vmcnt(0)")
    for k in range(8):
        a(f"ds_read_b64 {vr(R+2*k,2)}, v{ra+k}")
    a(f"s_lshl_b32 s{st}, s{c.swave}, 5")
    a(f"s_add_u32 s{st}, s{st}, s{s_tok0}")
    a(f"v_add_u32 v{vad}, s{st}, v{g.vt}")
    a(f"v_lshlrev_b32 v{vad}, 4, v{vad}")
    a(f"v_lshl_add_u32 v{vad}, v{g.vh}, 15, v{vad}")
    a("s_nop 7")
    a("s_waitcnt lgkmcnt(0)")
    t0, t1 = g.tmp[0], g.tmp[1]
    for ft in range(2):
        acc = g.ACC[0][ft]
        for gg in range(4):
            for d in range(2):
                r = R + 2 * (4 * ft + gg) + d
                a(f"v_lshlrev_b32 v{t0}, 16, v{r}")
                a(f"v_and_b32 v{t1}, 0xffff0000, v{r}")
                a(f"v_add_f32 v{acc+4*gg+2*d}, v{acc+4*gg+2*d}, v{t0}")
                a(f"v_add_f32 v{acc+4*gg+2*d+1}, v{acc+4*gg+2*d+1}, v{t1}")
        a(f"s_lshl_b32 s{so[0]}, s{s_ct}, 3")
        a(f"s_add_u32 s{so[0]}, s{so[0]}, {4*ft}")
        a(f"s_lshl_b32 s{so[0]}, s{so[0]}, 15")
        a(f"s_add_u32 s{so[1]}, s{so[0]}, {2*32768}")
        swap_pack_store(a, acc, P, vad, sH, so)
        a("s_nop 1")
    stamp(c, 4)
    if PROF: a("s_waitcnt vmcnt(0)")
    stamp(c, 5); stamp(c, 6)
    prof_store(c, 7, p[P_WS], 0)
    a("s_endpgm")
    vhigh = c.v.high
    c.v.reset(vm); c.s.reset(sm)
    a.label(lload)
    g.loader(sO, sW, s_tok0, s_colb, 0, D * 2)
    stamp(c, 6)
    prof_store(c, 7, p[P_WS], 1)
    a.label(done)
    a("s_endpgm")
    return dict(name=name, grid=256, block=512, lds=RES + 16384, vgpr=max(vhigh, c.v.high), sgpr=c.s.high)


def gen_ffn1(a, name):
    c = Ctx(a, name)
    kernel_begin(a, name)
    done = f"{name}_done"
    a("s_cmp_ge_u32 s2, 256")
    a(f"s_cbranch_scc1 {done}")
    stamp(c, 0)
    p = load_ptrs(c, [P_W1, P_B1, P_WS])
    wave_lane(c)
    s_rb, s_ct = tile_map(c, 7, done)
    s_tok0 = c.s.get("tok0"); s_colb = c.s.get("colb")
    a(f"s_lshl_b32 s{s_tok0}, s{s_rb}, 7")
    a(f"s_lshl_b32 s{s_colb}, s{s_ct}, 8")
    sW = c.s.get("srdW", 4, 4); sB = c.s.get("srdB", 4, 4); sH = c.s.get("srdH", 4, 4); sH1 = c.s.get("srdH1", 4, 4)
    a("s_waitcnt lgkmcnt(0)")
    srd(a, sW, p[P_W1], D * F * 2)
    srd(a, sB, p[P_B1], F * 2)
    srd(a, sH, p[P_WS], H_SZ, H_OFF)
    srd(a, sH1, p[P_WS], H1_SZ, H1_OFF)
    g = Gemm(c, 128, 'T8', 10, 4, True)
    STAT = 0
    lload = f"{name}_loader"
    a(f"s_cmp_ge_u32 s{c.swave}, 4")
    a(f"s_cbranch_scc1 {lload}")
    vm = c.v.mark(); sm = c.s.mark()
    g.compute_setup()
    P = c.v.get("P", 8, 2); CSV = c.v.get("csv", 16, 2); BR = c.v.get("br", 16, 2); BV = c.v.get("bv", 16, 2)
    vR = [c.v.get("vR0"), c.v.get("vR1")]; vN = [c.v.get("vN0"), c.v.get("vN1")]
    vad = c.v.get("vad"); vb = c.v.get("vb")
    so = [c.s.get("so0"), c.s.get("so1")]
    t0, t1, t2v, t3 = g.tmp
    st = g.stmp[0]
    for ft in range(2):
        a(f"s_lshl_b32 s{st}, s{g.s_ft[ft]}, 6")
        a(f"s_add_u32 s{st}, s{st}, s{s_colb}")
        a(f"v_lshl_add_u32 v{vb}, v{g.vh}, 3, s{st}")
        for gg in range(4):
            a(f"buffer_load_dwordx2 {vr(BR+8*ft+2*gg,2)}, v{vb}, s[{sB}:{sB+3}], 0 offen offset:{16*gg}")
    g.mainloop('TN')
    stamp(c, 3)
    g.stats_finalize(STAT)
    stamp(c, 4)
    for tt in range(2):
        a(f"s_lshl_b32 s{st}, s{g.s_tt[tt]}, 7")
        a(f"v_lshl_add_u32 v{t0}, v{g.vt}, 2, s{st}")
        a(f"ds_read_b32 v{vR[tt]}, v{t0} offset:{STAT}")
        a(f"ds_read_b32 v{vN[tt]}, v{t0} offset:{STAT+512}")
    a("s_waitcnt vmcnt(0)")
    for ft in range(2):
        a(f"s_lshl_b32 s{st}, s{g.s_ft[ft]}, 7")
        a(f"v_lshl_add_u32 v{t0}, v{g.vh}, 4, s{st}")
        for gg in range(4):
            a(f"ds_read_b128 {vr(CSV+4*gg,4)}, v{t0} offset:{STAT+1024+32*gg}")
        for k in range(8):
            a(f"v_lshlrev_b32 v{BV+2*k}, 16, v{BR+8*ft+k}")
            a(f"v_and_b32 v{BV+2*k+1}, 0xffff0000, v{BR+8*ft+k}")
        a("s_waitcnt lgkmcnt(0)")
        for tt in range(2):
            acc = g.ACC[tt][ft]
            for i in range(16):
                a(f"v_fma_f32 v{t1}, v{vN[tt]}, v{CSV+i}, v{BV+i}")
                a(f"v_fma_f32 v{acc+i}, v{acc+i}, v{vR[tt]}, v{t1}")
                a(f"v_max_f32 v{acc+i}, 0, v{acc+i}")
                a(f"v_mul_f32 v{acc+i}, v{acc+i}, v{acc+i}")
            a(f"s_lshl_b32 s{st}, s{g.s_tt[tt]}, 5")
            a(f"s_add_u32 s{st}, s{st}, s{s_tok0}")
            a(f"v_add_u32 v{vad}, s{st}, v{g.vt}")
            a(f"v_lshlrev_b32 v{vad}, 4, v{vad}")
            a(f"v_lshl_add_u32 v{vad}, v{g.vh}, 15, v{vad}")
            a(f"s_lshl_b32 s{so[0]}, s{s_ct}, 2")
            a(f"s_add_u32 s{so[0]}, s{so[0]}, s{g.s_ft[ft]}")
            a(f"s_lshl_b32 s{so[0]}, s{so[0]}, 17")
            a(f"s_add_u32 s{so[1]}, s{so[0]}, {2*32768}")
            swap_pack_store(a, acc, P, vad, sH1, so)
            a("s_nop 1")
    stamp(c, 5)
    if PROF: a("s_waitcnt vmcnt(0)")
    stamp(c, 6)
    prof_store(c, 7, p[P_WS], 0)
    a("s_endpgm")
    vhigh = c.v.high
    c.v.reset(vm); c.s.reset(sm)
    a.label(lload)
    g.loader(sH, sW, s_tok0, s_colb, 0, F * 2)
    stamp(c, 6)
    prof_store(c, 7, p[P_WS], 1)
    a.label(done)
    a("s_endpgm")
    return dict(name=name, grid=256, block=512, lds=g.LDS_END, vgpr=max(vhigh, c.v.high), sgpr=c.s.high)


def gen_ffn2(a, name):
    c = Ctx(a, name)
    kernel_begin(a, name)
    done = f"{name}_done"
    a("s_cmp_ge_u32 s2, 256")
    a(f"s_cbranch_scc1 {done}")
    stamp(c, 0)
    p = load_ptrs(c, [P_W2, P_B2, P_OUT, P_WS])
    wave_lane(c)
    s_rb, s_ct = tile_map(c, 5, done)
    s_tok0 = c.s.get("tok0"); s_colb = c.s.get("colb")
    a(f"s_lshl_b32 s{s_tok0}, s{s_rb}, 7")
    a(f"s_lshl_b32 s{s_colb}, s{s_ct}, 7")
    sW = c.s.get("srdW", 4, 4); sB = c.s.get("srdB", 4, 4); sH = c.s.get("srdH", 4, 4); sH1 = c.s.get("srdH1", 4, 4)
    sOut = c.s.get("srdOut", 4, 4)
    a("s_waitcnt lgkmcnt(0)")
    srd(a, sW, p[P_W2], F * D * 2)
    srd(a, sB, p[P_B2], D * 2)
    srd(a, sH, p[P_WS], H_SZ, H_OFF)
    srd(a, sH1, p[P_WS], H1_SZ, H1_OFF)
    srd(a, sOut, p[P_OUT], S * D * 2)
    g = Gemm(c, 64, 'T8', 27, 5, False)
    OUTB = g.LDS_END
    lload = f"{name}_loader"
    a(f"s_cmp_ge_u32 s{c.swave}, 4")
    a(f"s_cbranch_scc1 {lload}")
    vm = c.v.mark(); sm = c.s.mark()
    g.compute_setup()
    st, st2 = g.stmp
    t0, t1 = g.tmp[0], g.tmp[1]
    R = c.v.get("R", 16, 2); B = c.v.get("B", 16, 2); P = c.v.get("P", 16, 2); vad = c.v.get("vad"); vb = c.v.get("vb")
    a(f"s_lshl_b32 s{st}, s{c.swave}, 5")
    a(f"s_add_u32 s{st}, s{st}, s{s_tok0}")
    a(f"v_add_u32 v{vad}, s{st}, v{g.vt}")
    a(f"v_lshlrev_b32 v{vad}, 4, v{vad}")
    a(f"v_lshl_add_u32 v{vad}, v{g.vh}, 3, v{vad}")
    a(f"v_lshl_add_u32 v{vb}, v{g.vh}, 3, s{s_colb}")
    for k in range(8):
        a(f"s_lshl_b32 s{st}, s{s_ct}, 3")
        a(f"s_add_u32 s{st}, s{st}, {k}")
        a(f"s_lshl_b32 s{st}, s{st}, 15")
        a(f"buffer_load_dwordx2 {vr(R+2*k,2)}, v{vad}, s[{sH}:{sH+3}], s{st} offen")
        a(f"buffer_load_dwordx2 {vr(B+2*k,2)}, v{vb}, s[{sB}:{sB+3}], 0 offen offset:{16*k}")
    ra = c.v.get("ra", 8)
    row_tile_addr(c, g, OUTB, ra)
    vq = [c.v.get("vq0"), c.v.get("vq1")]
    row_tile_goff(c, g, s_tok0, s_ct, vq)
    vl = c.v.get("vl")
    a(f"s_lshl_b32 s{st}, s{c.swave}, 12")
    a(f"s_add_u32 s{st}, s{st}, {OUTB}")
    a(f"v_lshl_add_u32 v{vl}, v{c.lane}, 4, s{st}")
    g.mainloop('TN')
    stamp(c, 3)
    a("s_waitcnt vmcnt(0)")
    a("s_nop 7")
    for ft in range(2):
        acc = g.ACC[0][ft]
        for gg in range(4):
            k = 4 * ft + gg
            for d in range(2):
                i = 4 * gg + 2 * d
                a(f"v_lshlrev_b32 v{t0}, 16, v{R+2*k+d}")
                a(f"v_and_b32 v{t1}, 0xffff0000, v{R+2*k+d}")
                a(f"v_add_f32 v{acc+i}, v{acc+i}, v{t0}")
                a(f"v_add_f32 v{acc+i+1}, v{acc+i+1}, v{t1}")
                a(f"v_lshlrev_b32 v{t0}, 16, v{B+2*k+d}")
                a(f"v_and_b32 v{t1}, 0xffff0000, v{B+2*k+d}")
                a(f"v_add_f32 v{acc+i}, v{acc+i}, v{t0}")
                a(f"v_add_f32 v{acc+i+1}, v{acc+i+1}, v{t1}")
                a(f"v_cvt_pk_bf16_f32 v{P+2*k+d}, v{acc+i}, v{acc+i+1}")
            a(f"ds_write_b64 v{ra+k}, {vr(P+2*k,2)}")
    a("s_waitcnt lgkmcnt(0)")
    for q in range(4):
        a(f"ds_read_b128 {vr(R+4*q,4)}, v{vl} offset:{q*1024}")
    for q in range(4):
        a(f"s_waitcnt lgkmcnt({3-q})")
        a(f"s_mov_b32 s{st2}, {q*8*D*2}")
        a(f"buffer_store_dwordx4 {vr(R+4*q,4)}, v{vq[q&1]}, s[{sOut}:{sOut+3}], s{st2} offen")
    stamp(c, 4)
    if PROF: a("s_waitcnt vmcnt(0)")
    stamp(c, 5); stamp(c, 6)
    prof_store(c, 7, p[P_WS], 0)
    a("s_endpgm")
    vhigh = c.v.high
    c.v.reset(vm); c.s.reset(sm)
    a.label(lload)
    g.loader(sH1, sW, s_tok0, s_colb, 0, D * 2)
    stamp(c, 6)
    prof_store(c, 7, p[P_WS], 1)
    a.label(done)
    a("s_endpgm")
    return dict(name=name, grid=256, block=512, lds=OUTB + 16384, vgpr=max(vhigh, c.v.high), sgpr=c.s.high)


def build(kernels, path):
    a = Asm()
    body = Asm()
    infos = []
    for fn, nm in kernels:
        infos.append(fn(body, nm))
    hdr = open("cdna_kernels/" + KNAME + ".s.ref").read().split("; Override launch")[0]
    a.raw(hdr.rstrip())
    for i in infos:
        a.raw(f"; @launch kernel={i['name']} grid=({i['grid']},1,1) block=({i['block']},1,1) lds={i['lds']}")
    a.raw('.amdgcn_target "amdgcn-amd-amdhsa--gfx950"')
    a.lines += body.lines
    for i in infos:
        vg = (i['vgpr'] + 7) // 8 * 8
        kernel_desc(a, i['name'], vgpr=vg, sgpr=102 if PROF else min(102, max(i['sgpr'], 16)))
    open(path, "w").write(a.text())
    return infos

KERNELS = [(gen_qkv, "qkv_kernel"), (gen_att, "att_kernel"), (gen_wo, "wo_kernel"), (gen_ffn1, "ffn1_kernel"), (gen_ffn2, "ffn2_kernel")]

if __name__ == "__main__":
    if "prof" in sys.argv: PROF = True
    infos = build(KERNELS, sys.argv[1] if len(sys.argv) > 1 else "k.s")
    print(infos)
```

```python
class Alloc:
    def __init__(self, prefix, start, limit):
        self.prefix, self.next, self.limit = prefix, start, limit
        self.names = {}
        self.high = start
    def get(self, name, n=1, align=1):
        if n >= 2 and align < 2 and self.prefix == 'v':
            align = 2
        b = (self.next + align - 1) // align * align
        self.next = b + n
        assert self.next <= self.limit, f"out of {self.prefix} regs at {name}: {self.next}"
        self.high = max(self.high, self.next)
        self.names[name] = (b, n)
        return b
    def mark(self):
        return self.next
    def reset(self, m):
        self.next = m

def vr(b, n=1):
    return f"v{b}" if n == 1 else f"v[{b}:{b+n-1}]"
def sr(b, n=1):
    return f"s{b}" if n == 1 else f"s[{b}:{b+n-1}]"

class Asm:
    def __init__(self):
        self.lines = []
        self.uid = 0
    def __call__(self, s):
        for l in s.strip("\n").split("\n"):
            l = l.strip()
            if l:
                self.lines.append("    " + l)
    def pos(self):
        return sum(1 for l in self.lines if l.startswith("    ") and not l.strip().startswith(";"))
    def need(self, producer_pos, n):
        have = 0
        cnt = 0
        for l in self.lines:
            if l.startswith("    ") and not l.strip().startswith(";"):
                cnt += 1
                if cnt > producer_pos:
                    t = l.split()
                    have += int(t[1]) + 1 if t[0] == "s_nop" else 1
        k = n - have
        while k > 0:
            m = min(k, 16)
            self(f"s_nop {m-1}")
            k -= m
    def c(self, s):
        self.lines.append("    ; " + s)
    def raw(self, s):
        self.lines.append(s)
    def label(self, name):
        self.lines.append(name + ":")
    def newlabel(self, base="L"):
        self.uid += 1
        return f"{base}_{self.uid}"
    def text(self):
        return "\n".join(self.lines) + "\n"

def kernel_begin(a, name):
    a.raw(".text")
    a.raw(f".globl {name}")
    a.raw(".p2align 8")
    a.raw(f".type {name},@function")
    a.raw(f"{name}:")

def kernel_desc(a, name, vgpr=256, sgpr=102, accum=None, kernarg=88):
    if accum is None:
        accum = min(256, (vgpr + 3) // 4 * 4)
    a.raw('.section .rodata,"a"')
    a.raw(".p2align 6")
    a.raw(f".amdhsa_kernel {name}")
    a.raw(f"  .amdhsa_next_free_vgpr {vgpr}")
    a.raw(f"  .amdhsa_next_free_sgpr {sgpr}")
    a.raw(f"  .amdhsa_accum_offset {accum}")
    a.raw("  .amdhsa_group_segment_fixed_size 0")
    a.raw(f"  .amdhsa_kernarg_size {kernarg}")
    a.raw("  .amdhsa_user_sgpr_count 2")
    a.raw("  .amdhsa_user_sgpr_kernarg_segment_ptr 1")
    a.raw("  .amdhsa_system_sgpr_workgroup_id_x 1")
    a.raw(".end_amdhsa_kernel")

def srd(a, s, base, nbytes, off=0):
    if off:
        a(f"s_add_u32 s{s}, s{base}, {off}")
        a(f"s_addc_u32 s{s+1}, s{base+1}, 0")
        a(f"s_and_b32 s{s+1}, s{s+1}, 0xffff")
    else:
        a(f"s_mov_b32 s{s}, s{base}")
        a(f"s_and_b32 s{s+1}, s{base+1}, 0xffff")
    a(f"s_mov_b32 s{s+2}, {nbytes}")
    a(f"s_mov_b32 s{s+3}, 0x20000")
```

```python
import sys, struct, math
from lib2 import *

KNAME = "sequential_preLN__sliding_block__dense_activation_squared_relu__prompt"
S, D, NQKV, F = 2048, 640, 1920, 1728
QK_OFF = 0;                 QK_SZ = 160 * 32768
VT_OFF = QK_OFF + QK_SZ;    VT_SZ = 256 * 10240
O_OFF = VT_OFF + VT_SZ;     O_SZ = 80 * 32768
H_OFF = O_OFF + O_SZ;       H_SZ = 80 * 32768
H1_OFF = H_OFF + H_SZ;      H1_SZ = 216 * 32768
PX_SZ = 16 * 10 * 128 * 16
PW_SZ = 16 * 10 * 128 * 8
ST_OFF = H1_OFF + H1_SZ
ST_SZ = 2 * (PX_SZ + PW_SZ)
FL_OFF = ST_OFF + ST_SZ
FL_QKV, FL_ATT, FL_WO, FL_F1, FL_SA1, FL_SB1, FL_SA2, FL_SB2, FL_GEN = 0, 16, 32, 48, 64, 80, 96, 112, 128
FL_SZ = 129 * 256
PROF_OFF = 32 << 20
ONES = 0x3F803F80
XBASE = 4096
WBASE = 75776
LDS_TOTAL = WBASE + 81920
CNT_OFF = 3072 + 768
SPIN_MAX = 400000

PROF = False
PROFTAG = 'q'
REALTIME = False
TOG = set()
P_X, P_WQKV, P_WO, P_BX, P_W1, P_B1, P_W2, P_B2, P_OUT, P_DBG, P_WS = range(11)
PTR = {P_X: 4, P_WQKV: 6, P_WO: 8, P_W1: 12, P_B1: 14, P_W2: 16, P_B2: 18, P_OUT: 20, P_WS: 22}
S_WAVE, S_XCD, S_J = 24, 25, 26
SRD_A, SRD_B, SRD_C, SRD_D, SRD_E, SRD_F = 28, 32, 36, 40, 44, 48
V_LANE, V_GEN, V_PROF = 1, 2, 3


def fbits(x):
    return struct.unpack("<I", struct.pack("<f", x))[0]


class Ctx:
    def __init__(self, a):
        self.a = a
        self.v = Alloc('v', 4, 256)
        self.s = Alloc('s', 52, 100)
        self.lane = V_LANE
        self.swave = S_WAVE
        self.bar = []
        self.nstamp = 0

    def barrier(self, tag):
        self.bar.append(tag)
        self.a("s_barrier")

    def stamp(self, idx):
        if not PROF: return
        a = self.a
        a("s_waitcnt lgkmcnt(0)")
        a("s_memrealtime s[100:101]" if REALTIME else "s_memtime s[100:101]")
        a("s_waitcnt lgkmcnt(0)")
        a(f"v_writelane_b32 v{V_PROF}, s100, {idx}")


def flag_line(c, sdst, line_base, s_idx):
    c.a(f"s_add_u32 s{sdst}, s{s_idx}, {line_base}")
    c.a(f"s_lshl_b32 s{sdst}, s{sdst}, 8")


def poll(c, vaddr, smask, vtmp, scnt, nloads=1, vaddr2=None, vtmp2=None):
    a = c.a
    lp = a.newlabel("poll"); ld = a.newlabel("polled")
    a("s_waitcnt vmcnt(0)")
    a(f"s_mov_b32 s{scnt}, {SPIN_MAX}")
    a(f"s_mov_b64 exec, s[{smask}:{smask+1}]")
    a.label(lp)
    a(f"buffer_load_dword v{vtmp}, v{vaddr}, s[{SRD_F}:{SRD_F+3}], 0 offen sc1")
    if vaddr2 is not None:
        a(f"buffer_load_dword v{vtmp2}, v{vaddr2}, s[{SRD_F}:{SRD_F+3}], 0 offen sc1")
    a("s_waitcnt vmcnt(0)")
    a(f"v_subrev_u32 v{vtmp}, v{V_GEN}, v{vtmp}")
    if vaddr2 is not None:
        a(f"v_subrev_u32 v{vtmp2}, v{V_GEN}, v{vtmp2}")
        a(f"v_cmp_ne_u32 vcc, 1, v{vtmp2}")
        a(f"s_mov_b64 s[{scnt+2}:{scnt+3}], vcc")
    a(f"v_cmp_ne_u32 vcc, 1, v{vtmp}")
    if vaddr2 is not None:
        a(f"s_or_b64 vcc, vcc, s[{scnt+2}:{scnt+3}]")
    a("s_cmp_eq_u64 vcc, 0")
    a(f"s_cbranch_scc1 {ld}")
    a(f"s_sub_u32 s{scnt}, s{scnt}, 1")
    a(f"s_cmp_eq_u32 s{scnt}, 0")
    a(f"s_cbranch_scc1 {ld}")
    a("s_sleep 1")
    a(f"s_branch {lp}")
    a.label(ld)
    a("s_mov_b64 exec, -1")


def publish(c, cnt_idx, narrive, s_flagoff, v0, v1):
    a = c.a
    ls = a.newlabel("nopub")
    a("s_waitcnt vmcnt(0)")
    a(f"v_mov_b32 v{v0}, {CNT_OFF + 4*cnt_idx}")
    a(f"v_mov_b32 v{v1}, 1")
    a("s_mov_b64 exec, 1")
    a(f"ds_add_rtn_u32 v{v1}, v{v0}, v{v1}")
    a("s_waitcnt lgkmcnt(0)")
    a(f"v_cmp_eq_u32 vcc, {narrive-1}, v{v1}")
    a("s_cmp_eq_u64 vcc, 0")
    a(f"s_cbranch_scc1 {ls}")
    a(f"v_add_u32 v{v1}, 1, v{V_GEN}")
    a(f"v_mov_b32 v{v0}, s{s_flagoff}")
    a(f"buffer_store_dword v{v1}, v{v0}, s[{SRD_F}:{SRD_F+3}], 0 offen sc1")
    a.label(ls)
    a("s_mov_b64 exec, -1")


class Gemm:
    def __init__(self, c, BN, xmode, nst, NX, NW, stats=False, rotate=False, xsc="", LA=None):
        self.LA = LA if LA is not None else (1 if BN == 128 else 2)
        self.c, self.BN, self.xmode, self.nst, self.NX, self.NW = c, BN, xmode, nst, NX, NW
        self.stats, self.rotate, self.xsc = stats, rotate, xsc
        self.WSLOT = 64 * BN * 2
        self.wper = 65536 // self.WSLOT
        self.nwb = (NW + self.wper - 1) // self.wper
        self.NT_T = 2 if BN == 128 else 1
        self.ops = []

    def loader_setup(self, srdX, srdW, s_tok0, s_col0b, wpitch, s_sigma=None, w_only=False):
        c, a = self.c, self.c.a
        self.srdX, self.srdW, self.wpitch = srdX, srdW, wpitch
        lane = c.lane
        lw = c.s.get("lw")
        a(f"s_sub_u32 s{lw}, s{c.swave}, 4")
        t0 = c.v.get("lt0"); t1 = c.v.get("lt1"); t2 = c.v.get("lt2")
        stmp = c.s.get("ltmp")
        self.soff = c.s.get("soff")
        vw = self.vw = c.v.get("lvw")
        if self.BN == 128:
            a(f"v_lshrrev_b32 v{t0}, 4, v{lane}")
            a(f"v_and_b32 v{t1}, 15, v{lane}")
            a(f"v_lshlrev_b32 v{t2}, 2, v{t0}")
            a(f"v_xor_b32 v{t1}, v{t1}, v{t2}")
        else:
            a(f"v_lshrrev_b32 v{t0}, 3, v{lane}")
            a(f"v_and_b32 v{t1}, 7, v{lane}")
            a(f"v_bfe_u32 v{t2}, v{lane}, 4, 1")
            a(f"v_lshlrev_b32 v{t2}, 2, v{t2}")
            a(f"v_xor_b32 v{t1}, v{t1}, v{t2}")
        a(f"s_lshl_b32 s{stmp}, s{lw}, 4")
        a(f"v_add_u32 v{t0}, s{stmp}, v{t0}")
        a(f"v_mul_u32_u24 v{t0}, {wpitch}, v{t0}")
        a(f"v_lshl_add_u32 v{t0}, v{t1}, 4, v{t0}")
        a(f"v_add_u32 v{vw}, s{s_col0b}, v{t0}")
        self.sww = c.s.get("sww")
        a(f"s_lshl_b32 s{self.sww}, s{lw}, {12 if self.BN == 128 else 11}")
        self.swx = c.s.get("swx")
        a(f"s_lshl_b32 s{self.swx}, s{lw}, 12")
        if self.xmode == 'T8':
            vx = self.vx = [c.v.get("lvx")]
            a(f"v_add_u32 v{t0}, s{s_tok0}, v{lane}")
            a(f"v_lshlrev_b32 v{t0}, 4, v{t0}")
            a(f"s_lshl_b32 s{stmp}, s{lw}, 16")
            a(f"v_add_u32 v{vx[0]}, s{stmp}, v{t0}")
        else:
            vx = self.vx = [c.v.get("lvx0"), c.v.get("lvx1")]
            self.row_goff(vx, s_tok0, lw, None, t0, t1, t2, stmp)
        self.xstride = 8 * 32768 if self.xmode == 'T8' else 128
        self.wstride = 64 * wpitch
        if self.rotate:
            self.sxk = c.s.get("sxk"); self.swk = c.s.get("swk")
            a(f"s_mul_i32 s{self.sxk}, s{s_sigma}, {self.xstride}")
            a(f"s_mul_i32 s{self.swk}, s{s_sigma}, {self.wstride}")

    def row_goff(self, vq, s_tok0, s_w, s_colb, t0, t1, t2, stmp):
        c, a = self.c, self.c.a
        lane = c.lane
        a(f"v_lshrrev_b32 v{t0}, 3, v{lane}")
        a(f"s_lshl_b32 s{stmp}, s{s_w}, 5")
        a(f"s_add_u32 s{stmp}, s{stmp}, s{s_tok0}")
        a(f"v_add_u32 v{t0}, s{stmp}, v{t0}")
        a(f"v_mul_u32_u24 v{t0}, {D*2}, v{t0}")
        if s_colb is not None:
            a(f"v_add_u32 v{t0}, s{s_colb}, v{t0}")
        a(f"v_and_b32 v{t1}, 7, v{lane}")
        a(f"v_lshrrev_b32 v{t2}, 4, v{lane}")
        a(f"v_xor_b32 v{t1}, v{t1}, v{t2}")
        a(f"v_lshl_add_u32 v{vq[0]}, v{t1}, 4, v{t0}")
        a(f"v_xor_b32 v{t1}, 4, v{t1}")
        a(f"v_lshl_add_u32 v{vq[1]}, v{t1}, 4, v{t0}")

    def _advance(self, sreg, stride):
        a = self.c.a
        a(f"s_add_u32 s{sreg}, s{sreg}, {stride}")
        a(f"s_cmp_ge_u32 s{sreg}, {stride * self.nst}")
        a(f"s_cselect_b32 s{self.soff}, {stride * self.nst}, 0")
        a(f"s_sub_u32 s{sreg}, s{sreg}, s{self.soff}")

    def issue_x(self, st):
        a = self.c.a
        sb = XBASE + (st % self.NX) * 16384
        for j in range(4):
            a(f"s_add_u32 m0, s{self.swx}, {sb + j*1024}")
            off = ((j >> 1) * 32768 + (j & 1) * 1024) if self.xmode == 'T8' else j * 8 * D * 2
            if self.rotate:
                a(f"s_add_u32 s{self.soff}, s{self.sxk}, {off}")
            else:
                a(f"s_mov_b32 s{self.soff}, {st * self.xstride + off}")
            vx = self.vx[0] if self.xmode == 'T8' else self.vx[j & 1]
            a(f"buffer_load_dwordx4 v{vx}, s[{self.srdX}:{self.srdX+3}], s{self.soff} offen {self.xsc} lds")
            self.ops.append(('x', st))
        if self.rotate: self._advance(self.sxk, self.xstride)

    def issue_w(self, st):
        a = self.c.a
        sb = WBASE + (st % self.NW) * self.WSLOT
        nw, rows = (4, 4) if self.BN == 128 else (2, 8)
        for j in range(nw):
            a(f"s_add_u32 m0, s{self.sww}, {sb + j*1024}")
            off = j * rows * self.wpitch
            if self.rotate:
                a(f"s_add_u32 s{self.soff}, s{self.swk}, {off}")
            else:
                a(f"s_mov_b32 s{self.soff}, {st * self.wstride + off}")
            a(f"buffer_load_dwordx4 v{self.vw}, s[{self.srdW}:{self.srdW+3}], s{self.soff} offen lds")
            self.ops.append(('w', st))
        if self.rotate: self._advance(self.swk, self.wstride)

    def wait_stage(self, st):
        idx = [i for i, o in enumerate(self.ops) if o[1] == st and o[0] in 'xw']
        last = max(idx)
        n = len(self.ops) - 1 - last
        self.c.a(f"s_waitcnt vmcnt({min(n, 63)})")

    def prefetch_w(self):
        for st in range(min(self.NW, self.nst)):
            self.issue_w(st)
        self.nw_issued = min(self.NW, self.nst)

    def loader_main(self, tag, both_at_start=False, extra=None):
        c = self.c
        nst, NX, NW = self.nst, self.NX, self.NW
        if both_at_start:
            for st in range(2):
                self.issue_w(st); self.issue_x(st)
            nxi, nwi = 2, 2
        else:
            nwi = self.nw_issued
            for st in range(2):
                self.issue_x(st)
            nxi = 2
        for st in range(nst):
            if extra is not None and extra[2] == st:
                c.a("s_waitcnt vmcnt(0)")
            else:
                self.wait_stage(st)
            c.barrier(f"{tag}B{st}")
            if PROF and tag == PROFTAG and st < 12: c.stamp(41 + st)
            while nxi < nst and nxi - NX < st:
                if nwi < nst and nwi <= nxi and nwi - NW < st:
                    self.issue_w(nwi); nwi += 1
                self.issue_x(nxi); nxi += 1
            while nwi < nst and nwi - NW < st:
                self.issue_w(nwi); nwi += 1
            if extra is not None and extra[0] == st:
                assert nxi == nst and nwi == nst
                extra[1]()
        if extra is not None and extra[2] == 'end':
            c.a("s_waitcnt vmcnt(0)")
        c.barrier(f"{tag}Bend")

    def stats_lds(self):
        return XBASE + (6 % self.NX) * 16384, WBASE + (6 % self.NW) * self.WSLOT

    def stats_dma(self, srdS, px_off, pw_off, s_rb, s_ct):
        c, a = self.c, self.c.a
        XS, WS = self.stats_lds()
        v = c.v.get("sdv"); sp = c.s.get("sdp"); sq = c.s.get("sdq"); lw = c.s.get("sdw")
        a(f"s_sub_u32 s{lw}, s{c.swave}, 4")
        a(f"s_lshl_b32 s{lw}, s{lw}, 10")
        a(f"v_lshl_add_u32 v{v}, v{c.lane}, 4, s{lw}")
        a(f"s_mul_i32 s{sp}, s{s_rb}, {10*128*16}")
        a(f"s_add_u32 s{sp}, s{sp}, {px_off}")
        a(f"s_mul_i32 s{sq}, s{s_ct}, {10*128*8}")
        a(f"s_add_u32 s{sq}, s{sq}, {pw_off}")
        def fn():
            for i in range(5):
                dst = XS + 4096 * i if i < 4 else WS
                a(f"s_add_u32 m0, s{lw}, {dst}")
                a(f"s_add_u32 s{self.soff}, s{sp}, {4096*i}")
                a(f"buffer_load_dwordx4 v{v}, s[{srdS}:{srdS+3}], s{self.soff} offen sc1 lds")
            lab = a.newlabel("sd_skip")
            for i in range(3):
                if i == 2:
                    a(f"s_cmp_ge_u32 s{lw}, 2048")
                    a(f"s_cbranch_scc1 {lab}")
                a(f"s_add_u32 m0, s{lw}, {WS + 4096 + 4096*i}")
                a(f"s_add_u32 s{self.soff}, s{sq}, {4096*i}")
                a(f"buffer_load_dwordx4 v{v}, s[{srdS}:{srdS+3}], s{self.soff} offen sc1 lds")
            a.label(lab)
        return (7, fn, 9)

    def compute_setup(self):
        c, a = self.c, self.c.a
        lane = c.lane
        BN = self.BN
        t0 = c.v.get("ct0"); t1 = c.v.get("ct1"); t2 = c.v.get("ct2"); t3 = c.v.get("ct3")
        self.tmp = [t0, t1, t2, t3]
        self.vt = c.v.get("vt"); self.vh = c.v.get("vh")
        a(f"v_and_b32 v{self.vt}, 31, v{lane}")
        a(f"v_lshrrev_b32 v{self.vh}, 5, v{lane}")
        self.s_tt = [c.s.get(f"s_tt{i}") for i in range(self.NT_T)]
        self.s_ft = [c.s.get(f"s_ft{i}") for i in range(2)]
        st = c.s.get("cs_tmp"); st2 = c.s.get("cs_tmp2")
        self.stmp = [st, st2]
        w = c.swave
        if BN == 128:
            a(f"s_lshr_b32 s{st}, s{w}, 1")
            a(f"s_and_b32 s{st2}, s{w}, 1")
            a(f"s_lshl_b32 s{self.s_tt[0]}, s{st}, 1")
            a(f"s_add_u32 s{self.s_tt[0]}, s{self.s_tt[0]}, s{st2}")
            a(f"s_xor_b32 s{self.s_tt[1]}, s{self.s_tt[0]}, 1")
            a(f"s_lshl_b32 s{self.s_ft[0]}, s{st2}, 1")
            a(f"s_add_u32 s{self.s_ft[0]}, s{self.s_ft[0]}, s{st}")
            a(f"s_xor_b32 s{self.s_ft[1]}, s{self.s_ft[0]}, 1")
        else:
            a(f"s_mov_b32 s{self.s_tt[0]}, s{w}")
            a(f"s_mov_b32 s{self.s_ft[0]}, 0")
            a(f"s_mov_b32 s{self.s_ft[1]}, 1")
        self.ax = {}
        for tt in range(self.NT_T):
            if self.xmode == 'T8':
                r = c.v.get(f"ax{tt}")
                a(f"s_lshl_b32 s{st}, s{self.s_tt[tt]}, 9")
                a(f"s_add_u32 s{st}, s{st}, {XBASE}")
                a(f"v_lshlrev_b32 v{t0}, 4, v{self.vt}")
                a(f"v_lshl_add_u32 v{t0}, v{self.vh}, 11, v{t0}")
                a(f"v_add_u32 v{r}, s{st}, v{t0}")
                for s in range(4):
                    self.ax[(tt, s)] = (r, s * 4096)
            else:
                for s in range(4):
                    r = c.v.get(f"ax{tt}_{s}")
                    a(f"s_lshl_b32 s{st}, s{self.s_tt[tt]}, 12")
                    a(f"s_add_u32 s{st}, s{st}, {XBASE}")
                    a(f"v_bfe_u32 v{t0}, v{self.vt}, 1, 3")
                    a(f"v_add_u32 v{t1}, {2*s}, v{self.vh}")
                    a(f"v_xor_b32 v{t0}, v{t0}, v{t1}")
                    a(f"v_lshlrev_b32 v{t0}, 4, v{t0}")
                    a(f"v_lshl_add_u32 v{t0}, v{self.vt}, 7, v{t0}")
                    a(f"v_add_u32 v{r}, s{st}, v{t0}")
                    self.ax[(tt, s)] = (r, 0)
        self.aw = {}
        rowb = BN * 2
        for ft in range(2):
            r = [c.v.get(f"aw{ft}_{b}") for b in range(self.nwb)]
            a(f"v_bfe_u32 v{t0}, v{lane}, 2, 2")
            if BN == 128:
                a(f"v_xor_b32 v{t1}, s{self.s_ft[ft]}, v{t0}")
            else:
                a(f"v_lshrrev_b32 v{t1}, 1, v{t0}")
                a(f"v_xor_b32 v{t1}, s{self.s_ft[ft]}, v{t1}")
            a(f"v_lshlrev_b32 v{t1}, 2, v{t1}")
            a(f"v_bfe_u32 v{t2}, v{lane}, 4, 1")
            a(f"v_lshl_add_u32 v{t1}, v{t2}, 1, v{t1}")
            a(f"v_bfe_u32 v{t2}, v{lane}, 1, 1")
            a(f"v_add_u32 v{t1}, v{t1}, v{t2}")
            a(f"v_lshlrev_b32 v{t1}, 4, v{t1}")
            a(f"v_and_b32 v{t2}, 1, v{lane}")
            a(f"v_lshl_add_u32 v{t1}, v{t2}, 3, v{t1}")
            a(f"v_lshl_add_u32 v{t0}, v{self.vh}, 3, v{t0}")
            a(f"v_mul_u32_u24 v{t0}, {rowb}, v{t0}")
            a(f"v_add_u32 v{t0}, v{t0}, v{t1}")
            a(f"v_add_u32 v{r[0]}, {WBASE}, v{t0}")
            for b in range(1, self.nwb):
                a(f"v_add_u32 v{r[b]}, {b*self.wper*self.WSLOT}, v{r[0]}")
            self.aw[ft] = r
        self.XA = [[c.v.get(f"xa{s}{tt}", 4, 2) for tt in range(self.NT_T)] for s in range(self.LA + 1)]
        self.WA = [[c.v.get(f"wa{s}{ft}", 4, 2) for ft in range(2)] for s in range(self.LA + 1)]
        self.ACC = [[c.v.get(f"acc{tt}{ft}", 16, 2) for ft in range(2)] for tt in range(self.NT_T)]
        if self.stats:
            self.xs = [c.v.get("xs0"), c.v.get("xs1")]
            self.xq = [c.v.get("xq0"), c.v.get("xq1")]
            self.cs = [c.v.get("cs0"), c.v.get("cs1")]
            self.sones = c.s.get("ones")
            a(f"s_mov_b32 s{self.sones}, {ONES:#x}")
            for r in self.xs + self.xq + self.cs:
                a(f"v_mov_b32 v{r}, 0")

    def reads(self, q):
        st, s = divmod(q, 4)
        setn = q % (self.LA + 1)
        out = []
        rowb = self.BN * 2
        xo = (st % self.NX) * 16384
        wslot = st % self.NW
        wb, wo = wslot // self.wper, (wslot % self.wper) * self.WSLOT
        for tt in range(self.NT_T):
            r, off = self.ax[(tt, s)]
            out.append(f"ds_read_b128 {vr(self.XA[setn][tt],4)}, v{r} offset:{xo + off}")
        for ft in range(2):
            for u in range(2):
                out.append(f"ds_read_b64_tr_b16 {vr(self.WA[setn][ft] + 2*u, 2)}, v{self.aw[ft][wb]} offset:{wo + (16*s + 4*u)*rowb}")
        return out

    def mainloop(self, tag, orient, hooks=None, pre=None, fillers=None):
        c, a = self.c, self.c.a
        hooks = hooks or {}; pre = pre or {}; fillers = fillers or {}
        Q = self.nst * 4
        LA = self.LA
        nset = LA + 1
        c.barrier(f"{tag}B0")
        for q0 in range(LA):
            for r in self.reads(q0):
                a(r)
        nrd = len(self.reads(0))
        for q in range(Q):
            setn = q % nset
            nxt = q + LA
            opens_stage = nxt < Q and nxt % 4 == 0
            last_of_ring = (q == Q - LA)
            if opens_stage or last_of_ring:
                a("s_waitcnt lgkmcnt(0)")
                c.barrier(f"{tag}B{nxt//4}" if nxt < Q else f"{tag}Bend")
            else:
                pending = min(LA - 1, Q - 1 - q)
                a(f"s_waitcnt lgkmcnt({min(15, pending * nrd)})")
            if q in pre: pre[q]()
            rd = self.reads(nxt) if nxt < Q else []
            mf = []
            for tt in range(self.NT_T):
                for ft in range(2):
                    acc = vr(self.ACC[tt][ft], 16)
                    cc = "0" if q == 0 else acc
                    x, w = vr(self.XA[setn][tt], 4), vr(self.WA[setn][ft], 4)
                    if orient == 'TN':
                        mf.append(f"v_mfma_f32_32x32x16_bf16 {acc}, {w}, {x}, {cc}")
                    else:
                        mf.append(f"v_mfma_f32_32x32x16_bf16 {acc}, {x}, {w}, {cc}")
            dots = []
            if self.stats and q < 4:
                for j in range(4):
                    x = self.XA[setn][0] + j
                    dots.append(f"v_dot2c_f32_bf16 v{self.xs[j&1]}, s{self.sones}, v{x}")
                    dots.append(f"v_dot2c_f32_bf16 v{self.xq[j&1]}, v{x}, v{x}")
                    dots.append(f"v_dot2c_f32_bf16 v{self.cs[j&1]}, s{self.sones}, v{self.WA[setn][0]+j}")
            nm = len(mf)
            fill = [[] for _ in range(nm)]
            half = (len(rd) + 1) // 2
            fill[0] += rd[:half]; fill[1] += rd[half:]
            fl = fillers.get(q, [])
            if fl:
                wts = [1, 1] + [3] * (nm - 2) if nm > 2 else [1] * nm
                tot = sum(wts); pos = 0
                for i in range(nm):
                    n = len(fl) - pos if i == nm - 1 else (len(fl) * wts[i] + tot - 1) // tot
                    fill[i] += fl[pos:pos + n]; pos = min(len(fl), pos + n)
            if dots:
                fill[nm - 1] += dots
            for i, (m, f) in enumerate(zip(mf, fill)):
                a(m)
                for x in f:
                    a(x)
                if i == nm - 1 and q in hooks:
                    hooks[q]()
            if PROF and tag == PROFTAG and q % 4 == 3 and q // 4 < 12:
                c.stamp(27 + q // 4)

    def stats_setup(self, srdS, px_off, pw_off, s_rb, s_ct, s_sigma):
        c, a = self.c, self.c.a
        self.srdS = srdS
        t0, t1, t2, t3 = self.tmp
        st, st2 = self.stmp
        vt, vh = self.vt, self.vh
        BIG = 0x40000000
        self.vpx = c.v.get("vpx"); self.vpw = c.v.get("vpw")
        a(f"s_mul_i32 s{st}, s{s_rb}, 10")
        a(f"s_add_u32 s{st}, s{st}, s{s_sigma}")
        a(f"s_lshl_b32 s{st}, s{st}, 2")
        a(f"s_add_u32 s{st}, s{st}, s{self.s_tt[0]}")
        a(f"s_lshl_b32 s{st}, s{st}, 9")
        a(f"s_add_u32 s{st}, s{st}, {px_off}")
        a(f"s_cmp_lt_u32 s{s_ct}, 10")
        a(f"s_cselect_b32 s{st2}, 0, {BIG}")
        a(f"s_add_u32 s{st}, s{st}, s{st2}")
        a(f"v_lshl_add_u32 v{t0}, v{vt}, 4, s{st}")
        a(f"v_lshl_add_u32 v{self.vpx}, v{vh}, 3, v{t0}")
        a(f"s_mul_i32 s{st}, s{s_ct}, 10")
        a(f"s_add_u32 s{st}, s{st}, s{s_sigma}")
        a(f"s_lshl_b32 s{st}, s{st}, 2")
        a(f"s_add_u32 s{st}, s{st}, s{self.s_ft[0]}")
        a(f"s_lshl_b32 s{st}, s{st}, 8")
        a(f"s_add_u32 s{st}, s{st}, {pw_off}")
        a(f"s_cmp_lt_u32 s{s_rb}, 10")
        a(f"s_cselect_b32 s{st2}, 0, {BIG}")
        a(f"s_add_u32 s{st}, s{st}, s{st2}")
        a(f"v_lshl_add_u32 v{t0}, v{vt}, 3, s{st}")
        a(f"v_lshl_add_u32 v{self.vpw}, v{vh}, 30, v{t0}")
        self.vgx = c.v.get("vgx"); self.vgw = c.v.get("vgw")
        a(f"s_mul_i32 s{st}, s{s_rb}, {10*128*16}")
        a(f"s_add_u32 s{st}, s{st}, {px_off}")
        a(f"v_mov_b32 v{t0}, s{self.s_tt[0]}")
        a(f"v_xor_b32 v{t0}, v{t0}, v{vh}")
        a(f"v_lshl_add_u32 v{t0}, v{t0}, 5, v{vt}")
        a(f"v_lshl_add_u32 v{self.vgx}, v{t0}, 4, s{st}")
        a(f"s_mul_i32 s{st}, s{s_ct}, {10*128*8}")
        a(f"s_add_u32 s{st}, s{st}, {pw_off}")
        a(f"v_mov_b32 v{t0}, s{self.s_ft[0]}")
        a(f"v_xor_b32 v{t0}, v{t0}, v{vh}")
        a(f"v_lshl_add_u32 v{t0}, v{t0}, 5, v{vt}")
        a(f"v_lshl_add_u32 v{self.vgw}, v{t0}, 3, s{st}")
        XS, WS = self.stats_lds()
        self.vlx = c.v.get("vlx"); self.vlx2 = c.v.get("vlx2"); self.vlw = c.v.get("vlw")
        a(f"v_mov_b32 v{t0}, s{self.s_tt[0]}")
        a(f"v_xor_b32 v{t0}, v{t0}, v{vh}")
        a(f"v_lshl_add_u32 v{t0}, v{t0}, 5, v{vt}")
        a(f"v_lshlrev_b32 v{t0}, 4, v{t0}")
        a(f"v_add_u32 v{self.vlx}, {XS}, v{t0}")
        a(f"v_add_u32 v{self.vlx2}, {WS}, v{t0}")
        a(f"v_mov_b32 v{t0}, s{self.s_ft[0]}")
        a(f"v_xor_b32 v{t0}, v{t0}, v{vh}")
        a(f"v_lshl_add_u32 v{t0}, v{t0}, 5, v{vt}")
        a(f"v_lshlrev_b32 v{t0}, 3, v{t0}")
        a(f"v_add_u32 v{self.vlw}, {WS + 4096}, v{t0}")
        self.GX = c.v.get("gx", 40, 2); self.GW = c.v.get("gw", 20, 2)
        self.vtag = c.v.get("vtag"); self.vbadlo = c.v.get("vlo"); self.vbadhi = c.v.get("vhi")
        self.PK = c.v.get("pk", 4, 2)
        self.sg = c.s.get("sg"); self.scnt = c.s.get("scnt")

    def gather_loads(self):
        a = self.c.a
        srdS = self.srdS
        for z in range(10):
            a(f"s_mov_b32 s{self.sg}, {z*2048}")
            a(f"buffer_load_dwordx4 {vr(self.GX+4*z,4)}, v{self.vgx}, s[{srdS}:{srdS+3}], s{self.sg} offen sc1")
            a(f"s_mov_b32 s{self.sg}, {z*1024}")
            a(f"buffer_load_dwordx2 {vr(self.GW+2*z,2)}, v{self.vgw}, s[{srdS}:{srdS+3}], s{self.sg} offen sc1")

    def finish_list(self, eps=1e-5):
        GX, GW = self.GX, self.GW
        lo, hi = self.vbadlo, self.vbadhi
        L = []
        tags = [GX + 4*z + 1 for z in range(10)] + [GX + 4*z + 3 for z in range(10)] + [GW + 2*z + 1 for z in range(10)]
        L.append(f"v_min_u32 v{lo}, v{tags[0]}, v{tags[1]}")
        L.append(f"v_max_u32 v{hi}, v{tags[0]}, v{tags[1]}")
        rest = tags[2:]
        adds = []
        for z in range(1, 10):
            adds.append(f"v_add_f32 v{GX}, v{GX}, v{GX+4*z}")
            adds.append(f"v_add_f32 v{GX+2}, v{GX+2}, v{GX+4*z+2}")
            adds.append(f"v_add_f32 v{GW}, v{GW}, v{GW+2*z}")
        chk = []
        for i in range(0, len(rest), 2):
            chk.append(f"v_min3_u32 v{lo}, v{rest[i]}, v{rest[i+1]}, v{lo}")
            chk.append(f"v_max3_u32 v{hi}, v{rest[i]}, v{rest[i+1]}, v{hi}")
        while adds or chk:
            if adds: L.append(adds.pop(0))
            if chk: L.append(chk.pop(0))
        L.append(f"v_mul_f32 v{GX}, {fbits(1.0/D):#x}, v{GX}")
        L.append(f"v_mul_f32 v{GX+2}, {fbits(1.0/D):#x}, v{GX+2}")
        L.append(f"v_fma_f32 v{GX+2}, -v{GX}, v{GX}, v{GX+2}")
        L.append(f"v_max_f32 v{GX+2}, 0, v{GX+2}")
        L.append(f"v_add_f32 v{GX+2}, {fbits(eps):#x}, v{GX+2}")
        L.append(f"v_rsq_f32 v{GX+2}, v{GX+2}")
        L.append(f"v_xor_b32 v{lo}, v{lo}, v{self.vtag}")
        L.append(f"v_xor_b32 v{hi}, v{hi}, v{self.vtag}")
        L.append(f"v_mul_f32 v{GX}, v{GX}, v{GX+2}")
        L.append(f"v_or_b32 v{lo}, v{lo}, v{hi}")
        L.append(f"v_sub_f32 v{GX}, 0, v{GX}")
        return L

    def stats_plan(self):
        c, a = self.c, self.c.a
        t0, t1, t2, t3 = self.tmp
        xs, xq, cs = self.xs, self.xq, self.cs
        srdS = self.srdS
        PK = self.PK
        def publish_partials():
            a("s_waitcnt vmcnt(0)")
            a(f"v_add_u32 v{self.vtag}, 1, v{V_GEN}")
            a(f"v_add_f32 v{xs[0]}, v{xs[0]}, v{xs[1]}")
            a(f"v_add_f32 v{xq[0]}, v{xq[0]}, v{xq[1]}")
            a(f"v_add_f32 v{cs[0]}, v{cs[0]}, v{cs[1]}")
            a(f"v_mov_b32 v{t0}, v{xs[0]}")
            a(f"v_mov_b32 v{t1}, v{xq[0]}")
            a(f"v_mov_b32 v{t2}, v{cs[0]}")
            a("s_nop 1")
            a(f"v_permlane32_swap_b32 v{t0}, v{xs[0]}")
            a(f"v_permlane32_swap_b32 v{t1}, v{xq[0]}")
            a(f"v_permlane32_swap_b32 v{t2}, v{cs[0]}")
            a(f"v_cmp_eq_u32 vcc, 0, v{self.vh}")
            a(f"v_mov_b32 v{PK+1}, v{self.vtag}")
            a(f"v_mov_b32 v{PK+3}, v{self.vtag}")
            a(f"v_add_f32 v{xs[0]}, v{xs[0]}, v{t0}")
            a(f"v_add_f32 v{xq[0]}, v{xq[0]}, v{t1}")
            a(f"v_add_f32 v{PK+2}, v{cs[0]}, v{t2}")
            a(f"v_cndmask_b32 v{PK}, v{xq[0]}, v{xs[0]}, vcc")
            a(f"buffer_store_dwordx2 {vr(PK+2,2)}, v{self.vpw}, s[{srdS}:{srdS+3}], 0 offen sc1")
            a(f"buffer_store_dwordx2 {vr(PK,2)}, v{self.vpx}, s[{srdS}:{srdS+3}], 0 offen sc1")
        Q = self.nst * 4
        L = self.finish_list()
        n = (len(L) + 2) // 3
        fillers = {Q - 3 + i: L[i*n:(i+1)*n] for i in range(3)}
        fillers[Q - 5] = [f"ds_read_b128 {vr(self.GX+4*z,4)}, v{self.vlx if z < 8 else self.vlx2} offset:{(z % 8)*2048}" for z in range(10)]
        fillers[Q - 4] = [f"ds_read_b64 {vr(self.GW+2*z,2)}, v{self.vlw} offset:{z*1024}" for z in range(10)]
        hooks = {4: publish_partials}
        return hooks, {}, fillers

    def stats_check(self):
        c, a = self.c, self.c.a
        lo = self.vbadlo
        lok = a.newlabel("st_ok"); lp = a.newlabel("st_retry")
        a(f"v_cmp_ne_u32 vcc, 0, v{lo}")
        a("s_cmp_eq_u64 vcc, 0")
        a(f"s_cbranch_scc1 {lok}")
        a(f"s_mov_b32 s{self.scnt}, {SPIN_MAX // 8}")
        a.label(lp)
        self.gather_loads()
        a("s_waitcnt vmcnt(0)")
        for l in self.finish_list():
            if l.startswith("v_xor_b32 v%d," % lo): a("s_nop 0")
            a(l)
        a(f"v_cmp_ne_u32 vcc, 0, v{lo}")
        a("s_cmp_eq_u64 vcc, 0")
        a(f"s_cbranch_scc1 {lok}")
        a(f"s_sub_u32 s{self.scnt}, s{self.scnt}, 1")
        a(f"s_cmp_lg_u32 s{self.scnt}, 0")
        a(f"s_cbranch_scc1 {lp}")
        a.label(lok)


def both_halves(a, src, d0, d1):
    a(f"v_mov_b32 v{d0}, v{src}")
    a(f"v_mov_b32 v{d1}, v{src}")
    a("s_nop 1")
    a(f"v_permlane32_swap_b32 v{d0}, v{d1}")


def swap_pack_store(a, vals, P, addr, srd_, soffs, sc="sc1"):
    for g in range(4):
        a(f"v_cvt_pk_bf16_f32 v{P+2*g}, v{vals+4*g}, v{vals+4*g+1}")
        a(f"v_cvt_pk_bf16_f32 v{P+2*g+1}, v{vals+4*g+2}, v{vals+4*g+3}")
    a("s_nop 1")
    for g in (0, 2):
        a(f"v_permlane32_swap_b32 v{P+2*g}, v{P+2*g+2}")
        a(f"v_permlane32_swap_b32 v{P+2*g+1}, v{P+2*g+3}")
    for i, g in enumerate((0, 2)):
        a(f"buffer_store_dwordx4 {vr(P+2*g,4)}, v{addr}, s[{srd_}:{srd_+3}], s{soffs[i]} offen {sc}")


def map_gemm(c, nhalf, s_rb, s_ct, t):
    a = c.a
    a(f"s_lshr_b32 s{s_rb}, s{S_XCD}, 1")
    a(f"s_lshl_b32 s{s_rb}, s{s_rb}, 2")
    a(f"s_and_b32 s{t}, s{S_J}, 3")
    a(f"s_add_u32 s{s_rb}, s{s_rb}, s{t}")
    a(f"s_and_b32 s{t}, s{S_XCD}, 1")
    a(f"s_mul_i32 s{t}, s{t}, {nhalf}")
    a(f"s_lshr_b32 s{s_ct}, s{S_J}, 2")
    a(f"s_add_u32 s{s_ct}, s{s_ct}, s{t}")


def sigma_of(c, s_sig, s_rb, s_ct, t):
    a = c.a
    a(f"s_add_u32 s{s_sig}, s{s_rb}, s{s_ct}")
    a(f"s_mul_i32 s{t}, s{s_sig}, 26")
    a(f"s_lshr_b32 s{t}, s{t}, 8")
    a(f"s_mul_i32 s{t}, s{t}, 10")
    a(f"s_sub_u32 s{s_sig}, s{s_sig}, s{t}")
    if "nosig" in sys.argv: a(f"s_mov_b32 s{s_sig}, 0")


def ws_srd(a, s, off, size):
    srd(a, s, PTR[P_WS], size, off)


def wave0_poll(c, line_base, s_idx, nwords, first_line_delta=0):
    a = c.a
    lab = a.newlabel("nopoll")
    m = c.v.mark(); ms = c.s.mark()
    va = c.v.get("pa"); vtmp = c.v.get("pt"); st = c.s.get("pst"); sm = c.s.get("pm", 2, 2); sc = c.s.get("pc", 4, 2)
    a(f"s_cmp_lg_u32 s{S_WAVE}, 0")
    a(f"s_cbranch_scc1 {lab}")
    flag_line(c, st, line_base, s_idx)
    a(f"v_lshl_add_u32 v{va}, v{c.lane}, 2, s{st}")
    a(f"s_mov_b32 s{sm}, {(1 << nwords) - 1:#x}")
    a(f"s_mov_b32 s{sm+1}, 0")
    poll(c, va, sm, vtmp, sc)
    a.label(lab)
    c.v.reset(m); c.s.reset(ms)


def phase_qkv_compute(c, s_rb, s_ct):
    a = c.a
    vm, sm = c.v.mark(), c.s.mark()
    s_tok0 = c.s.get("tok0"); s_sig = c.s.get("sig"); t = c.s.get("t")
    a(f"s_lshl_b32 s{s_tok0}, s{s_rb}, 7")
    sigma_of(c, s_sig, s_rb, s_ct, t)
    sQK, sVT, sST = SRD_A, SRD_B, SRD_C
    ws_srd(a, sQK, QK_OFF, QK_SZ); ws_srd(a, sVT, VT_OFF, VT_SZ); ws_srd(a, sST, ST_OFF, ST_SZ)
    g = Gemm(c, 128, 'row', 10, 4, 4, stats=True, rotate=True)
    g.compute_setup()
    g.stats_setup(sST, 0, PX_SZ, s_rb, s_ct, s_sig)
    CSV = g.GX + 4; NMV = g.GX + 20; TP = g.GW + 2; P = g.GW + 10
    vR = [c.v.get("vR0", 2, 2), c.v.get("vR1", 2, 2)]
    vN = [c.v.get("vN0", 2, 2), c.v.get("vN1", 2, 2)]
    vad = c.v.get("vad"); vad2 = c.v.get("vad2"); vl = c.v.get("vl")
    so = [c.s.get("so0"), c.s.get("so1")]
    t0, t1, t2v, t3 = g.tmp
    st = g.stmp[0]
    s_priv = c.s.get("priv")
    a(f"s_mul_i32 s{s_priv}, s{S_WAVE}, 768")
    lnt = a.newlabel("qkv_nt"); lend = a.newlabel("qkv_end")
    a(f"s_cmp_ge_u32 s{s_ct}, 10")
    a(f"s_cbranch_scc1 {lnt}")
    bar0 = list(c.bar)
    c.stamp(1)
    g.mainloop("q", 'TN', *g.stats_plan())
    c.stamp(2)
    g.stats_check()
    a(f"s_cmp_lt_u32 s{s_ct}, 5")
    a(f"s_cselect_b32 s{st}, {fbits(20 ** -0.5 * math.log2(math.e)):#x}, 1.0")
    a(f"v_mul_f32 v{g.GX}, s{st}, v{g.GX}")
    a(f"v_mul_f32 v{g.GX+2}, s{st}, v{g.GX+2}")
    both_halves(a, g.GX + 2, vR[0], vR[1])
    both_halves(a, g.GX, vN[0], vN[1])
    a(f"v_lshl_add_u32 v{vl}, v{c.lane}, 2, s{s_priv}")
    a(f"ds_write_b32 v{vl}, v{g.GW}")
    a(f"v_lshl_add_u32 v{vl}, v{g.vh}, 4, s{s_priv}")
    a("s_waitcnt lgkmcnt(0)")
    for ft in range(2):
        for gg in range(4):
            a(f"ds_read_b128 {vr(CSV+4*gg,4)}, v{vl} offset:{128*ft+32*gg}")
        a("s_waitcnt lgkmcnt(0)")
        for tt in range(2):
            acc = g.ACC[tt][ft]
            for i in range(0, 16, 2):
                a(f"v_pk_mul_f32 {vr(TP+i%8,2)}, {vr(CSV+i,2)}, {vr(vN[tt],2)} op_sel_hi:[1,0]")
                if i >= 4:
                    j = i - 4
                    a(f"v_pk_fma_f32 {vr(acc+j,2)}, {vr(acc+j,2)}, {vr(vR[tt],2)}, {vr(TP+j%8,2)} op_sel_hi:[1,0,1]")
            for j in (12, 14):
                a(f"v_pk_fma_f32 {vr(acc+j,2)}, {vr(acc+j,2)}, {vr(vR[tt],2)}, {vr(TP+j%8,2)} op_sel_hi:[1,0,1]")
            a(f"s_lshl_b32 s{st}, s{g.s_tt[tt]}, 5")
            a(f"s_add_u32 s{st}, s{st}, s{s_tok0}")
            a(f"v_add_u32 v{vad}, s{st}, v{g.vt}")
            a(f"v_lshlrev_b32 v{vad}, 4, v{vad}")
            a(f"v_lshl_add_u32 v{vad}, v{g.vh}, 15, v{vad}")
            a(f"s_lshl_b32 s{so[0]}, s{s_ct}, 2")
            a(f"s_add_u32 s{so[0]}, s{so[0]}, s{g.s_ft[ft]}")
            a(f"s_lshl_b32 s{so[0]}, s{so[0]}, 17")
            a(f"s_add_u32 s{so[1]}, s{so[0]}, {2*32768}")
            swap_pack_store(a, acc, P, vad, sQK, so)
            a("s_nop 1")
    a(f"s_branch {lend}")
    barT = list(c.bar)
    c.bar = list(bar0)
    a.label(lnt)
    c.stamp(1)
    g.mainloop("q", 'NT', *g.stats_plan())
    c.stamp(2)
    g.stats_check()
    vC = vR
    both_halves(a, g.GW, vC[0], vC[1])
    a(f"v_lshl_add_u32 v{vl}, v{c.lane}, 2, s{s_priv}")
    a(f"ds_write_b32 v{vl}, v{g.GX+2}")
    a(f"ds_write_b32 v{vl}, v{g.GX} offset:256")
    a(f"v_lshl_add_u32 v{vl}, v{g.vh}, 4, s{s_priv}")
    a("s_waitcnt lgkmcnt(0)")
    for tt in range(2):
        for gg in range(4):
            a(f"ds_read_b128 {vr(CSV+4*gg,4)}, v{vl} offset:{128*tt+32*gg}")
            a(f"ds_read_b128 {vr(NMV+4*gg,4)}, v{vl} offset:{256+128*tt+32*gg}")
        a("s_waitcnt lgkmcnt(0)")
        for ft in range(2):
            acc = g.ACC[tt][ft]
            for i in range(0, 16, 2):
                a(f"v_pk_mul_f32 {vr(TP+i%8,2)}, {vr(NMV+i,2)}, {vr(vC[ft],2)} op_sel_hi:[1,0]")
                if i >= 4:
                    j = i - 4
                    a(f"v_pk_fma_f32 {vr(acc+j,2)}, {vr(acc+j,2)}, {vr(CSV+j,2)}, {vr(TP+j%8,2)}")
            for j in (12, 14):
                a(f"v_pk_fma_f32 {vr(acc+j,2)}, {vr(acc+j,2)}, {vr(CSV+j,2)}, {vr(TP+j%8,2)}")
            a(f"s_sub_u32 s{st}, s{s_ct}, 10")
            a(f"s_lshl_b32 s{st}, s{st}, 2")
            a(f"s_add_u32 s{st}, s{st}, s{g.s_ft[ft]}")
            a(f"s_lshl_b32 s{st}, s{st}, 5")
            a(f"v_add_u32 v{vad}, s{st}, v{g.vt}")
            a(f"v_lshlrev_b32 v{vad}, 4, v{vad}")
            a(f"v_mul_u32_u24 v{vad2}, 10240, v{g.vh}")
            a(f"v_add_u32 v{vad}, v{vad}, v{vad2}")
            a(f"s_lshl_b32 s{st}, s{g.s_tt[tt]}, 2")
            a(f"s_lshr_b32 s{so[0]}, s{s_tok0}, 3")
            a(f"s_add_u32 s{so[0]}, s{so[0]}, s{st}")
            a(f"s_mul_i32 s{so[0]}, s{so[0]}, 10240")
            a(f"s_add_u32 s{so[1]}, s{so[0]}, {2*10240}")
            swap_pack_store(a, acc, P, vad, sVT, so)
            a("s_nop 1")
    assert c.bar == barT
    a.label(lend)
    c.stamp(3)
    flag_line(c, st, FL_QKV, s_rb)
    a(f"s_lshl_b32 s{t}, s{s_ct}, 2")
    a(f"s_add_u32 s{st}, s{st}, s{t}")
    publish(c, 0, 4, st, t0, t1)
    c.stamp(4)
    c.v.reset(vm); c.s.reset(sm)


def phase_qkv_loader(c, s_rb, s_ct):
    a = c.a
    vm, sm = c.v.mark(), c.s.mark()
    s_tok0 = c.s.get("tok0"); s_colb = c.s.get("colb"); s_sig = c.s.get("sig"); t = c.s.get("t")
    a(f"s_lshl_b32 s{s_tok0}, s{s_rb}, 7")
    a(f"s_lshl_b32 s{s_colb}, s{s_ct}, 8")
    sigma_of(c, s_sig, s_rb, s_ct, t)
    srd(a, SRD_A, PTR[P_X], S * D * 2)
    srd(a, SRD_B, PTR[P_WQKV], D * NQKV * 2)
    g = Gemm(c, 128, 'row', 10, 4, 4, rotate=True)
    g.loader_setup(SRD_A, SRD_B, s_tok0, s_colb, NQKV * 2, s_sig)
    ws_srd(a, SRD_C, ST_OFF, ST_SZ)
    ex = g.stats_dma(SRD_C, 0, PX_SZ, s_rb, s_ct)
    c.stamp(1)
    g.loader_main("q", both_at_start=True, extra=ex)
    c.stamp(2)
    c.v.reset(vm); c.s.reset(sm)


def phase_att(c, s_jj, rbw, ctw, ctf):
    a = c.a
    vm, sm = c.v.mark(), c.s.mark()
    KOFF, QOFF, VOFF = XBASE, XBASE + 30720, XBASE + 40960
    lane = c.lane
    w = S_WAVE
    s_rb = c.s.get("rb"); s_p = c.s.get("p"); t = c.s.get("t"); t2 = c.s.get("t2")
    a(f"s_and_b32 s{s_rb}, s{S_J}, 15")
    a(f"s_lshr_b32 s{t2}, s{S_J}, 4")
    a(f"s_lshl_b32 s{s_p}, s{S_XCD}, 1")
    a(f"s_add_u32 s{s_p}, s{s_p}, s{t2}")
    sQK, sVT, sO = SRD_C, SRD_D, SRD_E
    ws_srd(a, sQK, QK_OFF, QK_SZ); ws_srd(a, sVT, VT_OFF, VT_SZ); ws_srd(a, sO, O_OFF, O_SZ)
    v0_, v1_, v2_, v3_ = [c.v.get(f"t{i}") for i in range(4)]
    vkq = c.v.get("vkq"); vv = [c.v.get(f"vv{i}") for i in range(4)]
    s_col8 = c.s.get("col8"); s_ldsb = c.s.get("ldsb"); s_gp = c.s.get("gp"); s_off = c.s.get("off"); s_voff = c.s.get("voff")
    s_qt = c.s.get("qt"); s_hs = c.s.get("hs"); s_g0 = c.s.get("g0")
    s_vm = c.s.get("vmask", 2, 2); s_hm = c.s.get("hm", 2, 2)
    smk = c.s.mark()
    s_tokb = c.s.get("tokb"); s_t80 = c.s.get("t80")
    a(f"s_lshl_b32 s{s_tokb}, s{s_rb}, 7")
    a(f"s_lshl_b32 s{t}, s{w}, 6")
    a(f"s_add_u32 s{s_tokb}, s{s_tokb}, s{t}")
    a(f"s_cmp_lt_u32 s{w}, 6")
    a(f"s_cselect_b32 s{t}, 0, 128")
    a(f"s_add_u32 s{t}, s{t}, 256")
    a(f"s_sub_u32 s{s_tokb}, s{s_tokb}, s{t}")
    a(f"s_mul_i32 s{s_col8}, s{s_p}, 5")
    a(f"s_cmp_lt_u32 s{w}, 6")
    a(f"s_cselect_b32 s{t}, 80, 0")
    a(f"s_add_u32 s{s_col8}, s{s_col8}, s{t}")
    a(f"s_lshl_b32 s{s_ldsb}, s{w}, 10")
    a(f"s_cmp_lt_u32 s{w}, 6")
    a(f"s_cselect_b32 s{t}, 0, {QOFF - 6*1024 - KOFF}")
    a(f"s_add_u32 s{s_ldsb}, s{s_ldsb}, s{t}")
    a(f"s_add_u32 s{s_ldsb}, s{s_ldsb}, {KOFF}")
    a(f"s_cmp_lt_u32 s{w}, 6")
    a(f"s_cselect_b32 s{s_gp}, 4096, 0")
    a(f"s_add_u32 s{s_gp}, s{s_gp}, 2048")
    a(f"v_add_u32 v{vkq}, s{s_tokb}, v{lane}")
    a(f"v_max_i32 v{vkq}, 0, v{vkq}")
    a(f"v_lshlrev_b32 v{vkq}, 4, v{vkq}")
    a(f"s_lshl_b32 s{s_col8}, s{s_col8}, 15")
    a(f"s_lshl_b32 s{s_t80}, s{s_rb}, 4")
    a(f"s_sub_u32 s{s_t80}, s{s_t80}, 32")
    a(f"s_mul_i32 s{s_voff}, s{s_p}, 640")
    for i in range(4):
        a(f"s_lshl_b32 s{t}, s{w}, 6")
        a(f"s_add_u32 s{t}, s{t}, {512*i}")
        a(f"v_add_u32 v{v0_}, s{t}, v{lane}")
        a(f"v_mul_u32_u24 v{v1_}, 52429, v{v0_}")
        a(f"v_lshrrev_b32 v{v1_}, 21, v{v1_}")
        a(f"v_mul_u32_u24 v{v2_}, 40, v{v1_}")
        a(f"v_sub_u32 v{v2_}, v{v0_}, v{v2_}")
        a(f"v_add_u32 v{v1_}, s{s_t80}, v{v1_}")
        a(f"v_max_i32 v{v1_}, 0, v{v1_}")
        a(f"v_mul_u32_u24 v{v1_}, 10240, v{v1_}")
        a(f"v_lshl_add_u32 v{vv[i]}, v{v2_}, 4, v{v1_}")
    a(f"s_and_b32 s{s_qt}, s{w}, 3")
    a(f"s_lshr_b32 s{s_hs}, s{w}, 2")
    vt = c.v.get("vt"); vh = c.v.get("vh")
    a(f"v_and_b32 v{vt}, 31, v{lane}")
    a(f"v_lshrrev_b32 v{vh}, 5, v{lane}")
    aQ1 = c.v.get("aQ1"); aQ2 = c.v.get("aQ2"); aK1 = c.v.get("aK1"); aK2 = c.v.get("aK2"); aV = c.v.get("aV")
    a(f"s_mul_i32 s{s_g0}, s{s_hs}, 3")
    a(f"s_lshl_b32 s{t}, s{s_qt}, 9")
    a(f"v_lshl_add_u32 v{v0_}, v{vt}, 4, s{t}")
    a(f"v_add_u32 v{v1_}, s{s_g0}, v{vh}")
    a(f"v_lshl_add_u32 v{aQ1}, v{v1_}, 11, v{v0_}")
    a(f"v_add_u32 v{aQ1}, {QOFF}, v{aQ1}")
    a(f"v_lshl_add_u32 v{aQ2}, v{vh}, 3, v{v0_}")
    a(f"v_add_u32 v{aQ2}, {QOFF + 2*2048}, v{aQ2}")
    a(f"v_and_b32 v{v0_}, 0x13, v{vt}")
    a(f"v_bfe_u32 v{v2_}, v{vt}, 2, 1")
    a(f"v_lshl_or_b32 v{v0_}, v{v2_}, 3, v{v0_}")
    a(f"v_bfe_u32 v{v2_}, v{vt}, 3, 1")
    a(f"v_lshl_or_b32 v{v0_}, v{v2_}, 2, v{v0_}")
    a(f"v_lshl_add_u32 v{v0_}, v{v0_}, 4, s{t}")
    a(f"v_mul_u32_u24 v{v1_}, 6144, v{v1_}")
    a(f"v_add_u32 v{aK1}, v{v1_}, v{v0_}")
    a(f"v_add_u32 v{aK1}, {KOFF}, v{aK1}")
    a(f"v_lshl_add_u32 v{aK2}, v{vh}, 3, v{v0_}")
    a(f"v_add_u32 v{aK2}, {KOFF + 2*6144}, v{aK2}")
    a(f"s_lshl_b32 s{t}, s{s_hs}, 4")
    a(f"v_add_u32 v{v0_}, s{t}, v{vt}")
    a(f"v_lshlrev_b32 v{v0_}, 4, v{v0_}")
    a(f"s_lshl_b32 s{t}, s{s_qt}, 2")
    a(f"v_add_u32 v{v1_}, s{t}, v{vh}")
    a(f"v_mul_u32_u24 v{v1_}, 640, v{v1_}")
    a(f"v_add3_u32 v{aV}, v{v0_}, v{v1_}, 0")
    a(f"v_add_u32 v{aV}, {VOFF}, v{aV}")
    a(f"s_lshl_b32 s{t}, s{s_hs}, 2")
    a(f"v_subrev_u32 v{v0_}, s{t}, v{vt}")
    a(f"v_cmp_gt_u32 s[{s_vm}:{s_vm+1}], 20, v{v0_}")
    a(f"v_cmp_eq_u32 s[{s_hm}:{s_hm+1}], s{s_hs}, v{vh}")
    vd = c.v.get("vd")
    a(f"v_lshlrev_b32 v{v0_}, 3, v{vh}")
    a(f"v_sub_u32 v{vd}, v{vt}, v{v0_}")
    Q1 = c.v.get("Q1", 4, 2); Q2 = c.v.get("Q2", 2, 2)
    K1 = [c.v.get(f"K1{i}", 4, 2) for i in range(9)]; K2 = [c.v.get(f"K2{i}", 2, 2) for i in range(9)]
    VF = [c.v.get(f"VF{i}", 4, 2) for i in range(4)]
    O = c.v.get("O", 16, 2)
    SB = [c.v.get(f"S{i}", 16, 2) for i in range(3)]
    NEGM = c.v.get("negm", 16, 2)
    Z0 = c.v.get("z0", 16, 2); Z8 = c.v.get("z8", 16, 2)
    vneg = c.v.get("neg"); vmx = [c.v.get(f"m{i}") for i in range(4)]
    a(f"v_mov_b32 v{vneg}, {fbits(-1e30):#x}")
    for i in range(4):
        for j in range(4):
            a(f"v_mov_b32 v{VF[i]+j}, {ONES:#x}")
    vpf = c.v.get("vpf"); sPF = SRD_B
    s_src = c.s.get("psrc", 10); s_pd = c.s.get("pd"); s_dt = [c.s.get("pdt0"), c.s.get("pdt1")]
    lB = a.newlabel("pfB"); lE = a.newlabel("pfE"); lC = a.newlabel("pfC")
    a(f"s_cmp_ge_u32 s{s_jj}, 5")
    a(f"s_cbranch_scc1 {lB}")
    srd(a, sPF, PTR[P_WO], D * D * 2)
    a(f"v_lshrrev_b32 v{v0_}, 3, v{lane}")
    a(f"v_and_b32 v{v1_}, 7, v{lane}")
    a(f"v_bfe_u32 v{v2_}, v{lane}, 4, 1")
    a(f"v_lshlrev_b32 v{v2_}, 2, v{v2_}")
    a(f"v_xor_b32 v{v1_}, v{v1_}, v{v2_}")
    a(f"s_lshl_b32 s{t}, s{w}, 3")
    a(f"v_add_u32 v{v0_}, s{t}, v{v0_}")
    a(f"v_mul_u32_u24 v{v0_}, {D*2}, v{v0_}")
    a(f"v_lshl_add_u32 v{v0_}, v{v1_}, 4, v{v0_}")
    a(f"s_lshl_b32 s{t}, s{ctw}, 7")
    a(f"v_add_u32 v{vpf}, s{t}, v{v0_}")
    for n in range(10):
        a(f"s_mov_b32 s{s_src+n}, {n*64*D*2}")
    a(f"s_lshl_b32 s{s_pd}, s{w}, 10")
    a(f"s_add_u32 s{s_pd}, s{s_pd}, {WBASE}")
    a(f"s_mov_b32 s{s_dt[0]}, 8192"); a(f"s_mov_b32 s{s_dt[1]}, 8192")
    a(f"s_branch {lE}")
    a.label(lB)
    srd(a, sPF, PTR[P_W1], D * F * 2)
    a(f"s_cmp_ge_u32 s{s_jj}, 7")
    a(f"s_cselect_b32 s{sPF+2}, 0, s{sPF+2}")
    a(f"v_lshrrev_b32 v{v0_}, 4, v{lane}")
    a(f"v_and_b32 v{v1_}, 15, v{lane}")
    a(f"v_lshlrev_b32 v{v2_}, 2, v{v0_}")
    a(f"v_xor_b32 v{v1_}, v{v1_}, v{v2_}")
    a(f"s_lshl_b32 s{t}, s{w}, 3")
    a(f"v_add_u32 v{v0_}, s{t}, v{v0_}")
    a(f"v_mul_u32_u24 v{v0_}, {F*2}, v{v0_}")
    a(f"v_lshl_add_u32 v{v0_}, v{v1_}, 4, v{v0_}")
    a(f"s_lshl_b32 s{t}, s{ctf}, 8")
    a(f"v_add_u32 v{vpf}, s{t}, v{v0_}")
    sigma_of(c, s_pd, rbw, ctf, t)
    for st_ in range(5):
        a(f"s_add_u32 s{t}, s{s_pd}, {st_}")
        a(f"s_cmp_ge_u32 s{t}, 10")
        a(f"s_cselect_b32 s{t2}, 10, 0")
        a(f"s_sub_u32 s{t}, s{t}, s{t2}")
        a(f"s_mul_i32 s{s_src+2*st_}, s{t}, {64*F*2}")
        a(f"s_add_u32 s{s_src+2*st_+1}, s{s_src+2*st_}, {4*F*2}")
    a(f"s_lshl_b32 s{s_pd}, s{w}, 11")
    a(f"s_add_u32 s{s_pd}, s{s_pd}, {WBASE}")
    a(f"s_mov_b32 s{s_dt[0]}, 1024"); a(f"s_mov_b32 s{s_dt[1]}, {16384 - 1024}")
    a.label(lE)
    def prefetch_piece(n):
        if "nopf" in TOG: return
        if n == 0:
            a(f"s_mov_b32 m0, s{s_pd}")
            a("s_nop 0")
        a(f"buffer_load_dwordx4 v{vpf}, s[{sPF}:{sPF+3}], s{s_src+n} offen lds")
        if n < 9: a(f"s_add_u32 m0, m0, s{s_dt[n&1]}")
    lab = a.newlabel("att_nopoll")
    smk2 = c.s.mark()
    sm_ = c.s.get("pm", 2, 2); sc_ = c.s.get("pc", 4, 2)
    a(f"s_cmp_lg_u32 s{w}, 0")
    a(f"s_cbranch_scc1 {lab}")
    a(f"v_lshrrev_b32 v{v0_}, 4, v{lane}")
    a(f"v_add_u32 v{v0_}, s{s_rb}, v{v0_}")
    a(f"v_subrev_u32 v{v0_}, 2, v{v0_}")
    a(f"v_and_b32 v{v1_}, 15, v{lane}")
    a(f"v_cmp_le_i32 s[{sm_}:{sm_+1}], 0, v{v0_}")
    a(f"v_cmp_gt_u32 s[{sc_}:{sc_+1}], 15, v{v1_}")
    a(f"v_cmp_gt_u32 vcc, 48, v{lane}")
    a(f"v_add_u32 v{v0_}, {FL_QKV}, v{v0_}")
    a(f"v_lshlrev_b32 v{v0_}, 8, v{v0_}")
    a(f"v_lshl_add_u32 v{v0_}, v{v1_}, 2, v{v0_}")
    a(f"s_and_b64 s[{sm_}:{sm_+1}], s[{sm_}:{sm_+1}], s[{sc_}:{sc_+1}]")
    a(f"s_and_b64 s[{sm_}:{sm_+1}], s[{sm_}:{sm_+1}], vcc")
    poll(c, v0_, sm_, v2_, sc_)
    a.label(lab)
    c.stamp(5)
    c.barrier("aP")
    c.stamp(6)
    for G in range(5):
        a(f"s_mov_b32 m0, s{s_ldsb}")
        a(f"s_add_u32 s{s_off}, s{s_col8}, {G*32768}")
        a(f"buffer_load_dwordx4 v{vkq}, s[{sQK}:{sQK+3}], s{s_off} offen sc1 lds")
        a(f"s_add_u32 s{s_ldsb}, s{s_ldsb}, s{s_gp}")
    c.s.reset(smk2)
    s_mk = c.s.get("mk", 4, 2)
    s_g = s_col8
    a(f"s_lshl_b32 s{s_g}, s{s_rb}, 2")
    a(f"s_add_u32 s{s_g}, s{s_g}, s{s_qt}")
    def mkcmp(i):
        g_, r_ = divmod(i, 4)
        cr = 16 * (g_ >> 1) + 4 * (g_ & 1) + r_
        a(f"v_cmp_le_i32 s[{s_mk+2*(i&1)}:{s_mk+2*(i&1)+1}], {cr}, v{vd}")
    mkcmp(0); mkcmp(1)
    a("s_nop 0")
    for i in range(16):
        mk = f"s[{s_mk+2*(i&1)}:{s_mk+2*(i&1)+1}]"
        a(f"v_cndmask_b32 v{Z0+i}, 0, v{vneg}, {mk}")
        a(f"v_cndmask_b32 v{Z8+i}, v{vneg}, 0, {mk}")
        if i + 2 < 16: mkcmp(i + 2)
    a("s_waitcnt vmcnt(0)")
    c.barrier("aK")
    c.stamp(7)
    lv = a.newlabel("vskip")
    for i in range(4):
        if i == 3:
            a(f"s_cmp_ge_u32 s{w}, 6")
            a(f"s_cbranch_scc1 {lv}")
        a(f"s_lshl_b32 s{t}, s{w}, 10")
        a(f"s_add_u32 m0, s{t}, {VOFF + 8192*i}")
        a("s_nop 0")
        a(f"buffer_load_dwordx4 v{vv[i]}, s[{sVT}:{sVT+3}], s{s_voff} offen sc1 lds")
    a.label(lv)
    a(f"ds_read_b128 {vr(Q1,4)}, v{aQ1}")
    a(f"ds_read_b64 {vr(Q2,2)}, v{aQ2}")
    def kread(i):
        a(f"ds_read_b128 {vr(K1[i],4)}, v{aK1} offset:{i*512}")
        a(f"ds_read_b64 {vr(K2[i],2)}, v{aK2} offset:{i*512}")
    for i in range(4): kread(i)
    a("s_waitcnt lgkmcnt(8)")
    a(f"v_cndmask_b32 v{Q2}, 0, v{Q2}, s[{s_hm}:{s_hm+1}]")
    a(f"v_cndmask_b32 v{Q2+1}, 0, v{Q2+1}, s[{s_hm}:{s_hm+1}]")

    fixups = []
    def fix(i):
        if "nofix" in TOG or i == 8: return
        S_ = SB[i % 3]
        lab = a.newlabel("fixo"); back = a.newlabel("fixb")
        a(f"s_cmp_lt_u32 s{s_g}, {8 - i}")
        a(f"s_cbranch_scc1 {lab}")
        a.label(back)
        fixups.append((lab, back, S_))
    def cinit(i, plain):
        return vr(Z0, 16) if i == 0 else (vr(Z8, 16) if i == 8 else plain)
    done_at = {}
    PB = [c.v.get("PB0", 8, 2), c.v.get("PB1", 8, 2)]
    def qk1(i, cinit):
        a(f"v_mfma_f32_32x32x16_bf16 {vr(SB[i%3],16)}, {vr(K1[i],4)}, {vr(Q1,4)}, {cinit}")
    def qk2(i):
        a(f"v_mfma_f32_32x32x8_bf16 {vr(SB[i%3],16)}, {vr(K2[i],2)}, {vr(Q2,2)}, {vr(SB[i%3],16)}")
        done_at[i] = a.pos()
    def maxops(i):
        S_ = SB[i % 3]
        if i == 0:
            return [f"v_max3_f32 v{vmx[k]}, v{S_+4*k}, v{S_+4*k+1}, v{S_+4*k+2}" for k in range(4)] + \
                   [f"v_max_f32 v{vmx[k]}, v{vmx[k]}, v{S_+4*k+3}" for k in range(4)]
        return [f"v_max3_f32 v{vmx[k%4]}, v{S_+2*k}, v{S_+2*k+1}, v{vmx[k%4]}" for k in range(8)]
    for i in range(11):
        ops = []
        if i < 9:
            if i + 4 < 9:
                kread(i + 4)
                a("s_waitcnt lgkmcnt(8)")
            else:
                a(f"s_waitcnt lgkmcnt({2 * (8 - i)})")
            qk1(i, cinit(i, "0"))
        if i >= 2:
            a.need(done_at[i - 2], 12)
            fix(i - 2)
            ops = maxops(i - 2)
        for o in ops[:4]: a(o)
        if i < 9: qk2(i)
        for o in ops[4:]: a(o)
        if PROFTAG == 'a' and i < 9: c.stamp(41 + i)
    a(f"v_max3_f32 v{vmx[0]}, v{vmx[0]}, v{vmx[1]}, v{vmx[2]}")
    a(f"v_max_f32 v{vmx[0]}, v{vmx[0]}, v{vmx[3]}")
    a(f"v_mov_b32 v{vmx[1]}, v{vmx[0]}")
    a("s_nop 1")
    a(f"v_permlane32_swap_b32 v{vmx[0]}, v{vmx[1]}")
    a("s_nop 1")
    a(f"v_max_f32 v{vmx[0]}, v{vmx[0]}, v{vmx[1]}")
    for j in range(16):
        a(f"v_sub_f32 v{Z0+j}, v{Z0+j}, v{vmx[0]}")
    for j in range(16):
        a(f"v_sub_f32 v{NEGM+j}, 0, v{vmx[0]}")
    for j in range(16):
        a(f"v_sub_f32 v{Z8+j}, v{Z8+j}, v{vmx[0]}")
    c.stamp(9)
    negm = vr(NEGM, 16)
    a("s_nop 1")
    qk1(0, cinit(0, negm)); qk1(1, negm); qk2(0); qk2(1)
    a("s_waitcnt vmcnt(0)")
    c.barrier("aV")
    def vread(i):
        a(f"s_mov_b64 exec, s[{s_vm}:{s_vm+1}]")
        for tt in range(2):
            a(f"ds_read_b128 {vr(VF[(2*i+tt)%4],4)}, v{aV} offset:{(4*i+2*tt)*640}")
        a("s_mov_b64 exec, -1")
    def pv(i, tt):
        if "nopv" in TOG: return
        cc = "0" if (i == 0 and tt == 0) else vr(O, 16)
        a(f"v_mfma_f32_32x32x16_bf16 {vr(O,16)}, {vr(VF[(2*i+tt)%4],4)}, {vr(PB[i&1]+4*tt,4)}, {cc}")
    for i in range(9):
        S_ = SB[i % 3]
        vread(i)
        a.need(done_at[i], 12)
        fix(i)
        def exps(lo):
            for j in range(lo, lo + 4):
                if "noexp" in TOG: continue
                a(f"v_exp_f32 v{S_+j}, v{S_+j}" if "expmov" not in TOG else f"v_mov_b32 v{S_+j}, v{S_+j}")
        exps(0)
        if i + 2 < 9 and "noqk" not in TOG: qk1(i + 2, cinit(i + 2, negm))
        exps(4)
        if i >= 1:
            a("s_waitcnt lgkmcnt(2)")
            pv(i - 1, 0)
        exps(8)
        if i + 2 < 9 and "noqk" not in TOG: qk2(i + 2)
        exps(12)
        if i >= 1: pv(i - 1, 1)
        prefetch_piece(i)
        if i == 0: a("s_nop 0")
        for j in range(8):
            if "nocvt" in TOG: continue
            a(f"v_cvt_pk_bf16_f32 v{PB[i&1]+j}, v{S_+2*j}, v{S_+2*j+1}")
        if PROFTAG == 'a': c.stamp(27 + i)
    prefetch_piece(9)
    a("s_waitcnt lgkmcnt(0)")
    a("s_nop 1")
    pv(8, 0); pv(8, 1)
    c.stamp(10)
    a("s_nop 15")
    rinv = vmx[1]
    a(f"v_rcp_f32 v{rinv}, v{O+12}")
    a("s_nop 0")
    for j in range(12):
        a(f"v_mul_f32 v{O+j}, v{O+j}, v{rinv}")
    PP = c.v.get("PP", 6, 2)
    for g in range(3):
        a(f"v_cvt_pk_bf16_f32 v{PP+2*g}, v{O+4*g}, v{O+4*g+1}")
        a(f"v_cvt_pk_bf16_f32 v{PP+2*g+1}, v{O+4*g+2}, v{O+4*g+3}")
    vad = v0_; vad2 = v1_
    a(f"s_lshl_b32 s{t}, s{s_rb}, 7")
    a(f"s_lshl_b32 s{t2}, s{s_qt}, 5")
    a(f"s_add_u32 s{t}, s{t}, s{t2}")
    a(f"v_add_u32 v{vad}, s{t}, v{vt}")
    a(f"v_lshlrev_b32 v{vad}, 4, v{vad}")
    a(f"v_lshl_add_u32 v{vad2}, v{vh}, 3, v{vad}")
    a(f"v_lshl_add_u32 v{vad}, v{vh}, 15, v{vad}")
    a(f"s_mul_i32 s{t}, s{s_p}, 5")
    a(f"s_add_u32 s{t2}, s{t}, 2")
    a(f"s_lshl_b32 s{t2}, s{t2}, 15")
    a(f"s_add_u32 s{t}, s{t}, s{s_g0}")
    a(f"s_lshl_b32 s{t}, s{t}, 15")
    lb = a.newlabel("headB"); le = a.newlabel("headE")
    a(f"s_cmp_eq_u32 s{s_hs}, 1")
    a(f"s_cbranch_scc1 {lb}")
    a(f"v_permlane32_swap_b32 v{PP}, v{PP+2}")
    a(f"v_permlane32_swap_b32 v{PP+1}, v{PP+3}")
    a(f"buffer_store_dwordx4 {vr(PP,4)}, v{vad}, s[{sO}:{sO+3}], s{t} offen sc1")
    a(f"s_mov_b64 exec, s[{s_hm}:{s_hm+1}]")
    a(f"buffer_store_dwordx2 {vr(PP+4,2)}, v{vad2}, s[{sO}:{sO+3}], s{t2} offen sc1")
    a(f"s_branch {le}")
    a.label(lb)
    a(f"v_permlane32_swap_b32 v{PP+2}, v{PP+4}")
    a(f"v_permlane32_swap_b32 v{PP+3}, v{PP+5}")
    a(f"buffer_store_dwordx4 {vr(PP+2,4)}, v{vad}, s[{sO}:{sO+3}], s{t} offen sc1")
    a(f"s_mov_b64 exec, s[{s_hm}:{s_hm+1}]")
    a(f"buffer_store_dwordx2 {vr(PP,2)}, v{vad2}, s[{sO}:{sO+3}], s{t2} offen sc1")
    a.label(le)
    a("s_mov_b64 exec, -1")
    c.stamp(11)
    flag_line(c, t, FL_ATT, s_rb)
    a(f"s_lshl_b32 s{t2}, s{s_p}, 2")
    a(f"s_add_u32 s{t}, s{t}, s{t2}")
    publish(c, 1, 8, t, v2_, v3_)
    c.stamp(12)
    lskip = a.newlabel("att_done")
    a(f"s_branch {lskip}")
    for lab, back, S_ in fixups:
        a.label(lab)
        for j in range(16):
            a(f"v_mov_b32 v{S_+j}, v{vneg}")
        a(f"s_branch {back}")
    a.label(lskip)
    c.v.reset(vm); c.s.reset(sm)


def row_tile_addr(c, g, base, regs):
    a = c.a
    t0, t1 = g.tmp[0], g.tmp[1]
    st = g.stmp[0]
    a(f"s_lshl_b32 s{st}, s{c.swave}, 12")
    a(f"s_add_u32 s{st}, s{st}, {base}")
    a(f"v_lshl_add_u32 v{t0}, v{g.vt}, 7, s{st}")
    a(f"v_lshl_add_u32 v{t0}, v{g.vh}, 3, v{t0}")
    a(f"v_bfe_u32 v{t1}, v{g.vt}, 1, 3")
    for k in range(8):
        a(f"v_xor_b32 v{regs+k}, {k}, v{t1}")
        a(f"v_lshl_add_u32 v{regs+k}, v{regs+k}, 4, v{t0}")


RES_SLOT = XBASE + 2 * 16384


def wo_weights_loader(c, s_ct):
    a = c.a
    s_colb = c.s.get("colb"); s_tok0 = c.s.get("tok0"); s_rb = c.s.get("rb"); t = c.s.get("t")
    return s_colb


def phase_wo_compute(c, s_rb, s_ct):
    a = c.a
    vm, sm = c.v.mark(), c.s.mark()
    s_tok0 = c.s.get("tok0"); t = c.s.get("t")
    a(f"s_lshl_b32 s{s_tok0}, s{s_rb}, 7")
    sH = SRD_A
    ws_srd(a, sH, H_OFF, H_SZ)
    g = Gemm(c, 64, 'T8', 10, 4, 10)
    g.compute_setup()
    st, st2 = g.stmp
    ra = c.v.get("ra", 8)
    row_tile_addr(c, g, RES_SLOT, ra)
    R = c.v.get("R", 16, 2); P = c.v.get("P", 8, 2); vad = c.v.get("vad")
    so = [c.s.get("so0"), c.s.get("so1")]
    a(f"s_lshl_b32 s{st}, s{c.swave}, 5")
    a(f"s_add_u32 s{st}, s{st}, s{s_tok0}")
    a(f"v_add_u32 v{vad}, s{st}, v{g.vt}")
    a(f"v_lshlrev_b32 v{vad}, 4, v{vad}")
    a(f"v_lshl_add_u32 v{vad}, v{g.vh}, 15, v{vad}")
    wave0_poll(c, FL_ATT, s_rb, 16)
    c.stamp(13)
    c.barrier("wP")
    c.stamp(14)
    g.mainloop("w", 'TN')
    c.stamp(15)
    for k in range(8):
        a(f"ds_read_b64 {vr(R+2*k,2)}, v{ra+k}")
    a("s_nop 7")
    a("s_waitcnt lgkmcnt(0)")
    t0, t1 = g.tmp[0], g.tmp[1]
    for ft in range(2):
        acc = g.ACC[0][ft]
        for gg in range(4):
            for d in range(2):
                r = R + 2 * (4 * ft + gg) + d
                a(f"v_lshlrev_b32 v{t0}, 16, v{r}")
                a(f"v_and_b32 v{t1}, 0xffff0000, v{r}")
                a(f"v_add_f32 v{acc+4*gg+2*d}, v{acc+4*gg+2*d}, v{t0}")
                a(f"v_add_f32 v{acc+4*gg+2*d+1}, v{acc+4*gg+2*d+1}, v{t1}")
        a(f"s_lshl_b32 s{so[0]}, s{s_ct}, 3")
        a(f"s_add_u32 s{so[0]}, s{so[0]}, {4*ft}")
        a(f"s_lshl_b32 s{so[0]}, s{so[0]}, 15")
        a(f"s_add_u32 s{so[1]}, s{so[0]}, {2*32768}")
        swap_pack_store(a, acc, P, vad, sH, so)
        a("s_nop 1")
    c.stamp(16)
    flag_line(c, st, FL_WO, s_rb)
    a(f"s_lshl_b32 s{t}, s{s_ct}, 2")
    a(f"s_add_u32 s{st}, s{st}, s{t}")
    publish(c, 2, 4, st, t0, t1)
    c.barrier("wS")
    c.stamp(17)
    c.v.reset(vm); c.s.reset(sm)


class Loader:
    pass


def wo_loader_prefetch(c, s_rb, s_ct):
    a = c.a
    s_tok0 = c.s.get("tok0"); s_colb = c.s.get("colb")
    a(f"s_lshl_b32 s{s_tok0}, s{s_rb}, 7")
    a(f"s_lshl_b32 s{s_colb}, s{s_ct}, 7")
    srd(a, SRD_B, PTR[P_WO], D * D * 2)
    g = Gemm(c, 64, 'T8', 10, 4, 10, xsc="sc1")
    g.loader_setup(SRD_A, SRD_B, s_tok0, s_colb, D * 2)
    g.nw_issued = 10
    g.s_tok0, g.s_colb = s_tok0, s_colb
    return g


def wo_loader_main(c, g):
    a = c.a
    ws_srd(a, SRD_A, O_OFF, O_SZ)
    srd(a, SRD_C, PTR[P_X], S * D * 2)
    vq = [c.v.get("vq0"), c.v.get("vq1")]
    t0 = c.v.get("x0"); t1 = c.v.get("x1"); t2 = c.v.get("x2"); st = c.s.get("xs"); lw = c.s.get("xlw")
    a(f"s_sub_u32 s{lw}, s{S_WAVE}, 4")
    g.row_goff(vq, g.s_tok0, lw, g.s_colb, t0, t1, t2, st)
    def residual():
        for q in range(4):
            a(f"s_add_u32 m0, s{g.swx}, {RES_SLOT + q*1024}")
            a(f"s_mov_b32 s{g.soff}, {q*8*D*2}")
            a(f"buffer_load_dwordx4 v{vq[q&1]}, s[{SRD_C}:{SRD_C+3}], s{g.soff} offen lds")
            g.ops.append(('r', -1))
    c.barrier("wP")
    g.loader_main("w", extra=(7, residual, 'end'))
    c.barrier("wS")


def phase_f1_compute(c, s_rb, s_ct):
    a = c.a
    vm, sm = c.v.mark(), c.s.mark()
    s_tok0 = c.s.get("tok0"); s_colb = c.s.get("colb"); s_sig = c.s.get("sig"); t = c.s.get("t")
    a(f"s_lshl_b32 s{s_tok0}, s{s_rb}, 7")
    a(f"s_lshl_b32 s{s_colb}, s{s_ct}, 8")
    sigma_of(c, s_sig, s_rb, s_ct, t)
    sB, sH1, sST = SRD_A, SRD_B, SRD_C
    srd(a, sB, PTR[P_B1], F * 2)
    ws_srd(a, sH1, H1_OFF, H1_SZ); ws_srd(a, sST, ST_OFF, ST_SZ)
    g = Gemm(c, 128, 'T8', 10, 4, 5, stats=True, rotate=True)
    g.compute_setup()
    g.stats_setup(sST, PX_SZ + PW_SZ, 2 * PX_SZ + PW_SZ, s_rb, s_ct, s_sig)
    P = c.v.get("P", 8, 2); BR = c.v.get("br", 16, 2); CSV = g.GX + 4; BV = g.GX + 20
    vR = [c.v.get("vR0", 2, 2), c.v.get("vR1", 2, 2)]; vN = [c.v.get("vN0", 2, 2), c.v.get("vN1", 2, 2)]
    TP = g.GW + 2
    vad = c.v.get("vad"); vb = c.v.get("vb"); vl = c.v.get("vl")
    so = [c.s.get("so0"), c.s.get("so1")]
    t0, t1, t2v, t3 = g.tmp
    st = g.stmp[0]
    s_priv = c.s.get("priv")
    a(f"s_mul_i32 s{s_priv}, s{S_WAVE}, 768")
    for ft in range(2):
        a(f"s_lshl_b32 s{st}, s{g.s_ft[ft]}, 6")
        a(f"s_add_u32 s{st}, s{st}, s{s_colb}")
        a(f"v_lshl_add_u32 v{vb}, v{g.vh}, 3, s{st}")
        for gg in range(4):
            a(f"buffer_load_dwordx2 {vr(BR+8*ft+2*gg,2)}, v{vb}, s[{sB}:{sB+3}], 0 offen offset:{16*gg}")
    wave0_poll(c, FL_WO, s_rb, 10)
    c.stamp(18)
    c.barrier("fP")
    c.stamp(19)
    g.mainloop("f", 'TN', *g.stats_plan())
    c.stamp(20)
    g.stats_check()
    both_halves(a, g.GX + 2, vR[0], vR[1])
    both_halves(a, g.GX, vN[0], vN[1])
    a(f"v_lshl_add_u32 v{vl}, v{c.lane}, 2, s{s_priv}")
    a(f"ds_write_b32 v{vl}, v{g.GW}")
    a(f"v_lshl_add_u32 v{vl}, v{g.vh}, 4, s{s_priv}")
    a("s_waitcnt lgkmcnt(0)")
    for ft in range(2):
        for gg in range(4):
            a(f"ds_read_b128 {vr(CSV+4*gg,4)}, v{vl} offset:{128*ft+32*gg}")
        for k in range(8):
            a(f"v_lshlrev_b32 v{BV+2*k}, 16, v{BR+8*ft+k}")
            a(f"v_and_b32 v{BV+2*k+1}, 0xffff0000, v{BR+8*ft+k}")
        a("s_waitcnt lgkmcnt(0)")
        for tt in range(2):
            acc = g.ACC[tt][ft]
            for i in range(0, 16, 2):
                a(f"v_pk_fma_f32 {vr(TP+i,2)}, {vr(CSV+i,2)}, {vr(vN[tt],2)}, {vr(BV+i,2)} op_sel_hi:[1,0,1]")
            for i in range(0, 16, 2):
                a(f"v_pk_fma_f32 {vr(acc+i,2)}, {vr(acc+i,2)}, {vr(vR[tt],2)}, {vr(TP+i,2)} op_sel_hi:[1,0,1]")
            for i in range(16):
                a(f"v_max_f32 v{acc+i}, 0, v{acc+i}")
            for i in range(0, 16, 2):
                a(f"v_pk_mul_f32 {vr(acc+i,2)}, {vr(acc+i,2)}, {vr(acc+i,2)}")
            a(f"s_lshl_b32 s{st}, s{g.s_tt[tt]}, 5")
            a(f"s_add_u32 s{st}, s{st}, s{s_tok0}")
            a(f"v_add_u32 v{vad}, s{st}, v{g.vt}")
            a(f"v_lshlrev_b32 v{vad}, 4, v{vad}")
            a(f"v_lshl_add_u32 v{vad}, v{g.vh}, 15, v{vad}")
            a(f"s_lshl_b32 s{so[0]}, s{s_ct}, 2")
            a(f"s_add_u32 s{so[0]}, s{so[0]}, s{g.s_ft[ft]}")
            a(f"s_lshl_b32 s{so[0]}, s{so[0]}, 17")
            a(f"s_add_u32 s{so[1]}, s{so[0]}, {2*32768}")
            swap_pack_store(a, acc, P, vad, sH1, so)
            a("s_nop 1")
    c.stamp(21)
    flag_line(c, st, FL_F1, s_rb)
    a(f"s_lshl_b32 s{t}, s{s_ct}, 2")
    a(f"s_add_u32 s{st}, s{st}, s{t}")
    publish(c, 3, 4, st, t0, t1)
    c.barrier("fS")
    c.stamp(22)
    c.v.reset(vm); c.s.reset(sm)


def f1_loader_prefetch(c, s_rb, s_ct, resident=False):
    a = c.a
    s_tok0 = c.s.get("tok0"); s_colb = c.s.get("colb"); s_sig = c.s.get("sig"); t = c.s.get("t")
    a(f"s_lshl_b32 s{s_tok0}, s{s_rb}, 7")
    a(f"s_lshl_b32 s{s_colb}, s{s_ct}, 8")
    sigma_of(c, s_sig, s_rb, s_ct, t)
    srd(a, SRD_B, PTR[P_W1], D * F * 2)
    g = Gemm(c, 128, 'T8', 10, 4, 5, rotate=True, xsc="sc1")
    g.loader_setup(SRD_A, SRD_B, s_tok0, s_colb, F * 2, s_sig)
    if resident:
        g.nw_issued = 5
        for _ in range(5): g._advance(g.swk, g.wstride)
    else:
        g.prefetch_w()
    g.s_rb, g.s_ct = s_rb, s_ct
    return g


def f1_loader_main(c, g):
    ws_srd(c.a, SRD_A, H_OFF, H_SZ)
    ws_srd(c.a, SRD_C, ST_OFF, ST_SZ)
    ex = g.stats_dma(SRD_C, PX_SZ + PW_SZ, 2 * PX_SZ + PW_SZ, g.s_rb, g.s_ct)
    c.barrier("fP")
    g.loader_main("f", extra=ex)
    c.barrier("fS")


def phase_f2_compute(c, s_rb, s_ct):
    a = c.a
    vm, sm = c.v.mark(), c.s.mark()
    s_tok0 = c.s.get("tok0"); s_colb = c.s.get("colb")
    a(f"s_lshl_b32 s{s_tok0}, s{s_rb}, 7")
    a(f"s_lshl_b32 s{s_colb}, s{s_ct}, 7")
    sB, sH, sOut = SRD_A, SRD_B, SRD_C
    srd(a, sB, PTR[P_B2], D * 2)
    ws_srd(a, sH, H_OFF, H_SZ)
    srd(a, sOut, PTR[P_OUT], S * D * 2)
    g = Gemm(c, 64, 'T8', 27, 4, 10)
    OUTB = XBASE
    g.compute_setup()
    st, st2 = g.stmp
    t0, t1, t2 = g.tmp[0], g.tmp[1], g.tmp[2]
    R = c.v.get("R", 16, 2); B = c.v.get("B", 16, 2); P = c.v.get("P", 16, 2); vad = c.v.get("vad"); vb = c.v.get("vb")
    a(f"s_lshl_b32 s{st}, s{c.swave}, 5")
    a(f"s_add_u32 s{st}, s{st}, s{s_tok0}")
    a(f"v_add_u32 v{vad}, s{st}, v{g.vt}")
    a(f"v_lshlrev_b32 v{vad}, 4, v{vad}")
    a(f"v_lshl_add_u32 v{vad}, v{g.vh}, 3, v{vad}")
    a(f"v_lshl_add_u32 v{vb}, v{g.vh}, 3, s{s_colb}")
    for k in range(8):
        a(f"s_lshl_b32 s{st}, s{s_ct}, 3")
        a(f"s_add_u32 s{st}, s{st}, {k}")
        a(f"s_lshl_b32 s{st}, s{st}, 15")
        a(f"buffer_load_dwordx2 {vr(R+2*k,2)}, v{vad}, s[{sH}:{sH+3}], s{st} offen sc1")
        a(f"buffer_load_dwordx2 {vr(B+2*k,2)}, v{vb}, s[{sB}:{sB+3}], 0 offen offset:{16*k}")
    ra = c.v.get("ra", 8)
    row_tile_addr(c, g, OUTB, ra)
    vq = [c.v.get("vq0"), c.v.get("vq1")]
    g.row_goff(vq, s_tok0, c.swave, s_colb, t0, t1, t2, st)
    vl = c.v.get("vl")
    a(f"s_lshl_b32 s{st}, s{c.swave}, 12")
    a(f"s_add_u32 s{st}, s{st}, {OUTB}")
    a(f"v_lshl_add_u32 v{vl}, v{c.lane}, 4, s{st}")
    wave0_poll(c, FL_F1, s_rb, 14)
    c.stamp(23)
    c.barrier("gP")
    c.stamp(24)
    g.mainloop("g", 'TN')
    c.stamp(25)
    a("s_waitcnt vmcnt(0)")
    a("s_nop 11")
    for ft in range(2):
        acc = g.ACC[0][ft]
        for gg in range(4):
            k = 4 * ft + gg
            for d in range(2):
                i = 4 * gg + 2 * d
                a(f"v_lshlrev_b32 v{t0}, 16, v{R+2*k+d}")
                a(f"v_and_b32 v{t1}, 0xffff0000, v{R+2*k+d}")
                a(f"v_add_f32 v{acc+i}, v{acc+i}, v{t0}")
                a(f"v_add_f32 v{acc+i+1}, v{acc+i+1}, v{t1}")
                a(f"v_lshlrev_b32 v{t0}, 16, v{B+2*k+d}")
                a(f"v_and_b32 v{t1}, 0xffff0000, v{B+2*k+d}")
                a(f"v_add_f32 v{acc+i}, v{acc+i}, v{t0}")
                a(f"v_add_f32 v{acc+i+1}, v{acc+i+1}, v{t1}")
                a(f"v_cvt_pk_bf16_f32 v{P+2*k+d}, v{acc+i}, v{acc+i+1}")
            a(f"ds_write_b64 v{ra+k}, {vr(P+2*k,2)}")
    a("s_waitcnt lgkmcnt(0)")
    for q in range(4):
        a(f"ds_read_b128 {vr(R+4*q,4)}, v{vl} offset:{q*1024}")
    for q in range(4):
        a(f"s_waitcnt lgkmcnt({3-q})")
        a(f"s_mov_b32 s{st2}, {q*8*D*2}")
        a(f"buffer_store_dwordx4 {vr(R+4*q,4)}, v{vq[q&1]}, s[{sOut}:{sOut+3}], s{st2} offen")
    c.stamp(26)
    c.v.reset(vm); c.s.reset(sm)


def f2_loader_prefetch(c, s_rb, s_ct):
    a = c.a
    s_tok0 = c.s.get("tok0"); s_colb = c.s.get("colb")
    a(f"s_lshl_b32 s{s_tok0}, s{s_rb}, 7")
    a(f"s_lshl_b32 s{s_colb}, s{s_ct}, 7")
    srd(a, SRD_B, PTR[P_W2], F * D * 2)
    g = Gemm(c, 64, 'T8', 27, 4, 10, xsc="sc1")
    g.loader_setup(SRD_A, SRD_B, s_tok0, s_colb, D * 2)
    g.prefetch_w()
    return g


def f2_loader_main(c, g):
    ws_srd(c.a, SRD_A, H1_OFF, H1_SZ)
    c.barrier("gP")
    g.loader_main("g")


def prof_store(c, role):
    if not PROF: return
    a = c.a
    lab = a.newlabel("prof_skip")
    a(f"s_cmp_lg_u32 s{S_WAVE}, {4*role}")
    a(f"s_cbranch_scc1 {lab}")
    ws_srd(a, SRD_A, PROF_OFF, 1 << 20)
    a(f"s_lshl_b32 s96, s2, 9")
    a(f"s_add_u32 s96, s96, {256*role}")
    a(f"v_lshl_add_u32 v4, v{V_LANE}, 2, s96")
    a(f"buffer_store_dword v{V_PROF}, v4, s[{SRD_A}:{SRD_A+3}], 0 offen")
    a.label(lab)


def gen_kernel(a, name):
    c = Ctx(a)
    kernel_begin(a, name)
    done = f"{name}_done"
    a("s_cmp_ge_u32 s2, 256")
    a(f"s_cbranch_scc1 {done}")
    a("s_load_dwordx16 s[4:19], s[0:1], 0")
    a("s_load_dwordx2 s[20:21], s[0:1], 64")
    a("s_load_dwordx2 s[22:23], s[0:1], 80")
    if PROF: a(f"v_mov_b32 v{V_PROF}, 0")
    a(f"v_lshrrev_b32 v{V_LANE}, 6, v0")
    a(f"s_and_b32 s{S_XCD}, s2, 7")
    a(f"v_readfirstlane_b32 s{S_WAVE}, v{V_LANE}")
    a(f"s_lshr_b32 s{S_J}, s2, 3")
    a(f"v_and_b32 v{V_LANE}, 63, v0")
    a("s_waitcnt lgkmcnt(0)")
    c.stamp(0)
    if PROF:
        a("s_memrealtime s[100:101]")
        a("s_waitcnt lgkmcnt(0)")
        a(f"v_writelane_b32 v{V_PROF}, s100, 61")
    ws_srd(a, SRD_F, FL_OFF, FL_SZ)
    a(f"v_mov_b32 v{V_GEN}, {FL_GEN*256}")
    a(f"buffer_load_dword v{V_GEN}, v{V_GEN}, s[{SRD_F}:{SRD_F+3}], 0 offen sc1")
    rbq = c.s.get("rbq"); ctq = c.s.get("ctq"); rbw = c.s.get("rbw"); ctw = c.s.get("ctw"); ctf = c.s.get("ctf"); t = c.s.get("gt")
    map_gemm(c, 8, rbq, ctq, t)
    map_gemm(c, 5, rbw, ctw, t)
    map_gemm(c, 7, rbw, ctf, t)
    jj = c.s.get("jj")
    a(f"s_lshr_b32 s{jj}, s{S_J}, 2")
    lz = a.newlabel("nocnt")
    a(f"s_cmp_lg_u32 s{S_WAVE}, 0")
    a(f"s_cbranch_scc1 {lz}")
    a(f"v_lshlrev_b32 v4, 2, v{V_LANE}")
    a(f"v_add_u32 v4, {CNT_OFF}, v4")
    a("v_mov_b32 v5, 0")
    a("s_mov_b64 exec, 0xff")
    a("ds_write_b32 v4, v5")
    a("s_mov_b64 exec, -1")
    a("s_waitcnt lgkmcnt(0)")
    a.label(lz)
    lload = f"{name}_loader"; latt = f"{name}_att"; lrest = f"{name}_lrest"
    a(f"s_cmp_ge_u32 s{S_WAVE}, 4")
    a(f"s_cbranch_scc1 {lload}")
    c.bar = []
    a(f"s_cmp_ge_u32 s{ctq}, 15")
    a(f"s_cbranch_scc1 {latt}")
    phase_qkv_compute(c, rbq, ctq)
    a(f"s_branch {latt}")
    bq = list(c.bar)
    a.label(lload)
    c.bar = []
    a(f"s_cmp_ge_u32 s{ctq}, 15")
    a(f"s_cbranch_scc1 {latt}")
    phase_qkv_loader(c, rbq, ctq)
    assert c.bar == bq, (c.bar, bq)
    a.label(latt)
    phase_att(c, jj, rbw, ctw, ctf)
    a(f"s_cmp_ge_u32 s{S_WAVE}, 4")
    a(f"s_cbranch_scc1 {lrest}")
    c.bar = []
    l2 = a.newlabel("c_nowo"); l3 = a.newlabel("c_end")
    a(f"s_cmp_ge_u32 s{jj}, 5")
    a(f"s_cbranch_scc1 {l2}")
    phase_wo_compute(c, rbw, ctw)
    a.label(l2)
    a(f"s_cmp_ge_u32 s{jj}, 7")
    a(f"s_cbranch_scc1 {l3}")
    phase_f1_compute(c, rbw, ctf)
    a(f"s_cmp_ge_u32 s{jj}, 5")
    a(f"s_cbranch_scc1 {l3}")
    phase_f2_compute(c, rbw, ctw)
    a.label(l3)
    c.stamp(63)
    prof_store(c, 0)
    a("s_endpgm")
    bar_compute = list(c.bar)
    a.label(lrest)
    c.bar = []
    lB = a.newlabel("l_classB"); lend = a.newlabel("l_end")
    a(f"s_cmp_ge_u32 s{jj}, 7")
    a(f"s_cbranch_scc1 {lend}")
    a(f"s_cmp_ge_u32 s{jj}, 5")
    a(f"s_cbranch_scc1 {lB}")
    vm, sm = c.v.mark(), c.s.mark()
    g = wo_loader_prefetch(c, rbw, ctw)
    wo_loader_main(c, g)
    c.stamp(15)
    c.v.reset(vm); c.s.reset(sm)
    g = f1_loader_prefetch(c, rbw, ctf)
    c.stamp(16)
    f1_loader_main(c, g)
    c.stamp(20)
    c.v.reset(vm); c.s.reset(sm)
    g = f2_loader_prefetch(c, rbw, ctw)
    c.stamp(21)
    f2_loader_main(c, g)
    c.stamp(25)
    c.v.reset(vm); c.s.reset(sm)
    assert c.bar == bar_compute, (c.bar, bar_compute)
    lg = a.newlabel("nogen")
    a("s_cmp_lg_u32 s2, 0")
    a(f"s_cbranch_scc1 {lg}")
    a(f"s_cmp_lg_u32 s{S_WAVE}, 4")
    a(f"s_cbranch_scc1 {lg}")
    va = c.v.get("ga"); vb = c.v.get("gb"); smk = c.s.get("gm", 2, 2); scn = c.s.get("gc", 4, 2)
    a(f"s_mov_b64 s[{smk}:{smk+1}], -1")
    for r in range(4):
        a(f"v_lshrrev_b32 v{va}, 4, v{V_LANE}")
        a(f"v_add_u32 v{va}, {FL_ATT + 4*r}, v{va}")
        a(f"v_lshlrev_b32 v{va}, 8, v{va}")
        a(f"v_and_b32 v{vb}, 15, v{V_LANE}")
        a(f"v_lshl_add_u32 v{va}, v{vb}, 2, v{va}")
        poll(c, va, smk, vb, scn)
    a(f"v_add_u32 v{vb}, 1, v{V_GEN}")
    a(f"v_mov_b32 v{va}, {FL_GEN*256}")
    a("s_mov_b64 exec, 1")
    a(f"buffer_store_dword v{vb}, v{va}, s[{SRD_F}:{SRD_F+3}], 0 offen sc1")
    a("s_mov_b64 exec, -1")
    a.label(lg)
    c.v.reset(vm); c.s.reset(sm)
    a(f"s_branch {lend}")
    a.label(lB)
    c.bar = []
    g = f1_loader_prefetch(c, rbw, ctf, resident=True)
    f1_loader_main(c, g)
    assert c.bar == [b for b in bar_compute if b.startswith("f")], c.bar
    c.v.reset(vm); c.s.reset(sm)
    a.label(lend)
    c.stamp(63)
    prof_store(c, 1)
    a.label(done)
    a("s_endpgm")
    return dict(name=name, grid=256, block=512, lds=LDS_TOTAL, vgpr=c.v.high, sgpr=c.s.high)


def build(path):
    a = Asm(); body = Asm()
    name = KNAME + "_kernel"
    info = gen_kernel(body, name)
    hdr = open("cdna_kernels/" + KNAME + ".s.ref").read().split("; Override launch")[0]
    a.raw(hdr.rstrip())
    a.raw(f"; @launch grid=({info['grid']},1,1) block=({info['block']},1,1) lds={info['lds']}")
    a.raw('.amdgcn_target "amdgcn-amd-amdhsa--gfx950"')
    a.lines += body.lines
    vg = (info['vgpr'] + 7) // 8 * 8
    kernel_desc(a, name, vgpr=vg, sgpr=102)
    open(path, "w").write(a.text())
    return info


if __name__ == "__main__":
    if "prof" in sys.argv: PROF = True
    for x in sys.argv:
        if x.startswith("tag="): PROFTAG = x[4:]
        if x == "rt": REALTIME = True
        if x.startswith("tog="): TOG.update(x[4:].split(","))
    print(build(sys.argv[1] if len(sys.argv) > 1 else "k2.s"))
```

```python
import sys, struct, math
from lib2 import *

KNAME = "sequential_preLN__sliding_block__dense_activation_squared_relu__prompt"
S, D, NQKV, F = 2048, 640, 1920, 1728
QK_OFF = 0;                 QK_SZ = 160 * 32768
VT_OFF = QK_OFF + QK_SZ;    VT_SZ = 256 * 10240
O_OFF = VT_OFF + VT_SZ;     O_SZ = 80 * 32768
H_OFF = O_OFF + O_SZ;       H_SZ = 80 * 32768
H1_OFF = H_OFF + H_SZ;      H1_SZ = 216 * 32768
PX_SZ = 16 * 10 * 128 * 16
PW_SZ = 16 * 10 * 128 * 8
ST_OFF = H1_OFF + H1_SZ
ST_SZ = 2 * (PX_SZ + PW_SZ)
FL_OFF = ST_OFF + ST_SZ
FL_QKV, FL_ATT, FL_WO, FL_F1, FL_SA1, FL_SB1, FL_SA2, FL_SB2, FL_GEN = 0, 16, 32, 48, 64, 80, 96, 112, 128
FL_SZ = 129 * 256
PROF_OFF = 32 << 20
ONES = 0x3F803F80
XBASE = 4096
WBASE = 75776
LDS_TOTAL = WBASE + 81920
CNT_OFF = 3072 + 768
SPIN_MAX = 400000

PROF = False
PROFTAG = 'q'
REALTIME = False
TOG = set()
P_X, P_WQKV, P_WO, P_BX, P_W1, P_B1, P_W2, P_B2, P_OUT, P_DBG, P_WS = range(11)
PTR = {P_X: 4, P_WQKV: 6, P_WO: 8, P_W1: 12, P_B1: 14, P_W2: 16, P_B2: 18, P_OUT: 20, P_WS: 22}
S_WAVE, S_XCD, S_J = 24, 25, 26
SRD_A, SRD_B, SRD_C, SRD_D, SRD_E, SRD_F = 28, 32, 36, 40, 44, 48
V_LANE, V_GEN, V_PROF = 1, 2, 3


def fbits(x):
    return struct.unpack("<I", struct.pack("<f", x))[0]


class Ctx:
    def __init__(self, a):
        self.a = a
        self.v = Alloc('v', 4, 256)
        self.s = Alloc('s', 52, 100)
        self.lane = V_LANE
        self.swave = S_WAVE
        self.bar = []
        self.nstamp = 0

    def barrier(self, tag):
        self.bar.append(tag)
        self.a("s_barrier")

    def stamp(self, idx):
        if not PROF: return
        a = self.a
        a("s_waitcnt lgkmcnt(0)")
        a("s_memrealtime s[100:101]" if REALTIME else "s_memtime s[100:101]")
        a("s_waitcnt lgkmcnt(0)")
        a(f"v_writelane_b32 v{V_PROF}, s100, {idx}")


def flag_line(c, sdst, line_base, s_idx):
    c.a(f"s_add_u32 s{sdst}, s{s_idx}, {line_base}")
    c.a(f"s_lshl_b32 s{sdst}, s{sdst}, 8")


def poll(c, vaddr, smask, vtmp, scnt, nloads=1, vaddr2=None, vtmp2=None):
    a = c.a
    lp = a.newlabel("poll"); ld = a.newlabel("polled")
    a("s_waitcnt vmcnt(0)")
    a(f"s_mov_b32 s{scnt}, {SPIN_MAX}")
    a(f"s_mov_b64 exec, s[{smask}:{smask+1}]")
    a.label(lp)
    a(f"buffer_load_dword v{vtmp}, v{vaddr}, s[{SRD_F}:{SRD_F+3}], 0 offen sc1")
    if vaddr2 is not None:
        a(f"buffer_load_dword v{vtmp2}, v{vaddr2}, s[{SRD_F}:{SRD_F+3}], 0 offen sc1")
    a("s_waitcnt vmcnt(0)")
    a(f"v_subrev_u32 v{vtmp}, v{V_GEN}, v{vtmp}")
    if vaddr2 is not None:
        a(f"v_subrev_u32 v{vtmp2}, v{V_GEN}, v{vtmp2}")
        a(f"v_cmp_ne_u32 vcc, 1, v{vtmp2}")
        a(f"s_mov_b64 s[{scnt+2}:{scnt+3}], vcc")
    a(f"v_cmp_ne_u32 vcc, 1, v{vtmp}")
    if vaddr2 is not None:
        a(f"s_or_b64 vcc, vcc, s[{scnt+2}:{scnt+3}]")
    a("s_cmp_eq_u64 vcc, 0")
    a(f"s_cbranch_scc1 {ld}")
    a(f"s_sub_u32 s{scnt}, s{scnt}, 1")
    a(f"s_cmp_eq_u32 s{scnt}, 0")
    a(f"s_cbranch_scc1 {ld}")
    a("s_sleep 1")
    a(f"s_branch {lp}")
    a.label(ld)
    a("s_mov_b64 exec, -1")


def publish(c, cnt_idx, narrive, s_flagoff, v0, v1):
    a = c.a
    ls = a.newlabel("nopub")
    a("s_waitcnt vmcnt(0)")
    a(f"v_mov_b32 v{v0}, {CNT_OFF + 4*cnt_idx}")
    a(f"v_mov_b32 v{v1}, 1")
    a("s_mov_b64 exec, 1")
    a(f"ds_add_rtn_u32 v{v1}, v{v0}, v{v1}")
    a("s_waitcnt lgkmcnt(0)")
    a(f"v_cmp_eq_u32 vcc, {narrive-1}, v{v1}")
    a("s_cmp_eq_u64 vcc, 0")
    a(f"s_cbranch_scc1 {ls}")
    a(f"v_add_u32 v{v1}, 1, v{V_GEN}")
    a(f"v_mov_b32 v{v0}, s{s_flagoff}")
    a(f"buffer_store_dword v{v1}, v{v0}, s[{SRD_F}:{SRD_F+3}], 0 offen sc1")
    a.label(ls)
    a("s_mov_b64 exec, -1")


class Gemm:
    def __init__(self, c, BN, xmode, nst, NX, NW, stats=False, rotate=False, xsc="", LA=None):
        self.LA = LA if LA is not None else (1 if BN == 128 else 2)
        self.c, self.BN, self.xmode, self.nst, self.NX, self.NW = c, BN, xmode, nst, NX, NW
        self.stats, self.rotate, self.xsc = stats, rotate, xsc
        self.WSLOT = 64 * BN * 2
        self.wper = 65536 // self.WSLOT
        self.nwb = (NW + self.wper - 1) // self.wper
        self.NT_T = 2 if BN == 128 else 1
        self.ops = []

    def loader_setup(self, srdX, srdW, s_tok0, s_col0b, wpitch, s_sigma=None, w_only=False):
        c, a = self.c, self.c.a
        self.srdX, self.srdW, self.wpitch = srdX, srdW, wpitch
        lane = c.lane
        lw = c.s.get("lw")
        a(f"s_sub_u32 s{lw}, s{c.swave}, 4")
        t0 = c.v.get("lt0"); t1 = c.v.get("lt1"); t2 = c.v.get("lt2")
        stmp = c.s.get("ltmp")
        self.soff = c.s.get("soff")
        vw = self.vw = c.v.get("lvw")
        if self.BN == 128:
            a(f"v_lshrrev_b32 v{t0}, 4, v{lane}")
            a(f"v_and_b32 v{t1}, 15, v{lane}")
            a(f"v_lshlrev_b32 v{t2}, 2, v{t0}")
            a(f"v_xor_b32 v{t1}, v{t1}, v{t2}")
        else:
            a(f"v_lshrrev_b32 v{t0}, 3, v{lane}")
            a(f"v_and_b32 v{t1}, 7, v{lane}")
            a(f"v_bfe_u32 v{t2}, v{lane}, 4, 1")
            a(f"v_lshlrev_b32 v{t2}, 2, v{t2}")
            a(f"v_xor_b32 v{t1}, v{t1}, v{t2}")
        a(f"s_lshl_b32 s{stmp}, s{lw}, 4")
        a(f"v_add_u32 v{t0}, s{stmp}, v{t0}")
        a(f"v_mul_u32_u24 v{t0}, {wpitch}, v{t0}")
        a(f"v_lshl_add_u32 v{t0}, v{t1}, 4, v{t0}")
        a(f"v_add_u32 v{vw}, s{s_col0b}, v{t0}")
        self.sww = c.s.get("sww")
        a(f"s_lshl_b32 s{self.sww}, s{lw}, {12 if self.BN == 128 else 11}")
        self.swx = c.s.get("swx")
        a(f"s_lshl_b32 s{self.swx}, s{lw}, 12")
        if self.xmode == 'T8':
            vx = self.vx = [c.v.get("lvx")]
            a(f"v_add_u32 v{t0}, s{s_tok0}, v{lane}")
            a(f"v_lshlrev_b32 v{t0}, 4, v{t0}")
            a(f"s_lshl_b32 s{stmp}, s{lw}, 16")
            a(f"v_add_u32 v{vx[0]}, s{stmp}, v{t0}")
        else:
            vx = self.vx = [c.v.get("lvx0"), c.v.get("lvx1")]
            self.row_goff(vx, s_tok0, lw, None, t0, t1, t2, stmp)
        self.xstride = 8 * 32768 if self.xmode == 'T8' else 128
        self.wstride = 64 * wpitch
        if self.rotate:
            self.sxk = c.s.get("sxk"); self.swk = c.s.get("swk")
            a(f"s_mul_i32 s{self.sxk}, s{s_sigma}, {self.xstride}")
            a(f"s_mul_i32 s{self.swk}, s{s_sigma}, {self.wstride}")

    def row_goff(self, vq, s_tok0, s_w, s_colb, t0, t1, t2, stmp):
        c, a = self.c, self.c.a
        lane = c.lane
        a(f"v_lshrrev_b32 v{t0}, 3, v{lane}")
        a(f"s_lshl_b32 s{stmp}, s{s_w}, 5")
        a(f"s_add_u32 s{stmp}, s{stmp}, s{s_tok0}")
        a(f"v_add_u32 v{t0}, s{stmp}, v{t0}")
        a(f"v_mul_u32_u24 v{t0}, {D*2}, v{t0}")
        if s_colb is not None:
            a(f"v_add_u32 v{t0}, s{s_colb}, v{t0}")
        a(f"v_and_b32 v{t1}, 7, v{lane}")
        a(f"v_lshrrev_b32 v{t2}, 4, v{lane}")
        a(f"v_xor_b32 v{t1}, v{t1}, v{t2}")
        a(f"v_lshl_add_u32 v{vq[0]}, v{t1}, 4, v{t0}")
        a(f"v_xor_b32 v{t1}, 4, v{t1}")
        a(f"v_lshl_add_u32 v{vq[1]}, v{t1}, 4, v{t0}")

    def _advance(self, sreg, stride):
        a = self.c.a
        a(f"s_add_u32 s{sreg}, s{sreg}, {stride}")
        a(f"s_cmp_ge_u32 s{sreg}, {stride * self.nst}")
        a(f"s_cselect_b32 s{self.soff}, {stride * self.nst}, 0")
        a(f"s_sub_u32 s{sreg}, s{sreg}, s{self.soff}")

    def issue_x(self, st):
        a = self.c.a
        sb = XBASE + (st % self.NX) * 16384
        for j in range(4):
            a(f"s_add_u32 m0, s{self.swx}, {sb + j*1024}")
            off = ((j >> 1) * 32768 + (j & 1) * 1024) if self.xmode == 'T8' else j * 8 * D * 2
            if self.rotate:
                a(f"s_add_u32 s{self.soff}, s{self.sxk}, {off}")
            else:
                a(f"s_mov_b32 s{self.soff}, {st * self.xstride + off}")
            vx = self.vx[0] if self.xmode == 'T8' else self.vx[j & 1]
            a(f"buffer_load_dwordx4 v{vx}, s[{self.srdX}:{self.srdX+3}], s{self.soff} offen {self.xsc} lds")
            self.ops.append(('x', st))
        if self.rotate: self._advance(self.sxk, self.xstride)

    def issue_w(self, st):
        a = self.c.a
        sb = WBASE + (st % self.NW) * self.WSLOT
        nw, rows = (4, 4) if self.BN == 128 else (2, 8)
        for j in range(nw):
            a(f"s_add_u32 m0, s{self.sww}, {sb + j*1024}")
            off = j * rows * self.wpitch
            if self.rotate:
                a(f"s_add_u32 s{self.soff}, s{self.swk}, {off}")
            else:
                a(f"s_mov_b32 s{self.soff}, {st * self.wstride + off}")
            a(f"buffer_load_dwordx4 v{self.vw}, s[{self.srdW}:{self.srdW+3}], s{self.soff} offen lds")
            self.ops.append(('w', st))
        if self.rotate: self._advance(self.swk, self.wstride)

    def wait_stage(self, st):
        idx = [i for i, o in enumerate(self.ops) if o[1] == st and o[0] in 'xw']
        last = max(idx)
        n = len(self.ops) - 1 - last
        self.c.a(f"s_waitcnt vmcnt({min(n, 63)})")

    def prefetch_w(self):
        for st in range(min(self.NW, self.nst)):
            self.issue_w(st)
        self.nw_issued = min(self.NW, self.nst)

    def loader_main(self, tag, both_at_start=False, extra=None):
        c = self.c
        nst, NX, NW = self.nst, self.NX, self.NW
        if both_at_start:
            for st in range(2):
                self.issue_w(st); self.issue_x(st)
            nxi, nwi = 2, 2
        else:
            nwi = self.nw_issued
            for st in range(2):
                self.issue_x(st)
            nxi = 2
        for st in range(nst):
            if extra is not None and extra[2] == st:
                c.a("s_waitcnt vmcnt(0)")
            else:
                self.wait_stage(st)
            c.barrier(f"{tag}B{st}")
            if PROF and tag == PROFTAG and st < 12: c.stamp(41 + st)
            while nxi < nst and nxi - NX < st:
                if nwi < nst and nwi <= nxi and nwi - NW < st:
                    self.issue_w(nwi); nwi += 1
                self.issue_x(nxi); nxi += 1
            while nwi < nst and nwi - NW < st:
                self.issue_w(nwi); nwi += 1
            if extra is not None and extra[0] == st:
                assert nxi == nst and nwi == nst
                extra[1]()
        if extra is not None and extra[2] == 'end':
            c.a("s_waitcnt vmcnt(0)")
        c.barrier(f"{tag}Bend")

    def stats_lds(self):
        return XBASE + (6 % self.NX) * 16384, WBASE + (6 % self.NW) * self.WSLOT

    def stats_dma(self, srdS, px_off, pw_off, s_rb, s_ct):
        c, a = self.c, self.c.a
        XS, WS = self.stats_lds()
        v = c.v.get("sdv"); sp = c.s.get("sdp"); sq = c.s.get("sdq"); lw = c.s.get("sdw")
        a(f"s_sub_u32 s{lw}, s{c.swave}, 4")
        a(f"s_lshl_b32 s{lw}, s{lw}, 10")
        a(f"v_lshl_add_u32 v{v}, v{c.lane}, 4, s{lw}")
        a(f"s_mul_i32 s{sp}, s{s_rb}, {10*128*16}")
        a(f"s_add_u32 s{sp}, s{sp}, {px_off}")
        a(f"s_mul_i32 s{sq}, s{s_ct}, {10*128*8}")
        a(f"s_add_u32 s{sq}, s{sq}, {pw_off}")
        def fn():
            for i in range(5):
                dst = XS + 4096 * i if i < 4 else WS
                a(f"s_add_u32 m0, s{lw}, {dst}")
                a(f"s_add_u32 s{self.soff}, s{sp}, {4096*i}")
                a(f"buffer_load_dwordx4 v{v}, s[{srdS}:{srdS+3}], s{self.soff} offen sc1 lds")
            lab = a.newlabel("sd_skip")
            for i in range(3):
                if i == 2:
                    a(f"s_cmp_ge_u32 s{lw}, 2048")
                    a(f"s_cbranch_scc1 {lab}")
                a(f"s_add_u32 m0, s{lw}, {WS + 4096 + 4096*i}")
                a(f"s_add_u32 s{self.soff}, s{sq}, {4096*i}")
                a(f"buffer_load_dwordx4 v{v}, s[{srdS}:{srdS+3}], s{self.soff} offen sc1 lds")
            a.label(lab)
        return (7, fn, 9)

    def compute_setup(self):
        c, a = self.c, self.c.a
        lane = c.lane
        BN = self.BN
        t0 = c.v.get("ct0"); t1 = c.v.get("ct1"); t2 = c.v.get("ct2"); t3 = c.v.get("ct3")
        self.tmp = [t0, t1, t2, t3]
        self.vt = c.v.get("vt"); self.vh = c.v.get("vh")
        a(f"v_and_b32 v{self.vt}, 31, v{lane}")
        a(f"v_lshrrev_b32 v{self.vh}, 5, v{lane}")
        self.s_tt = [c.s.get(f"s_tt{i}") for i in range(self.NT_T)]
        self.s_ft = [c.s.get(f"s_ft{i}") for i in range(2)]
        st = c.s.get("cs_tmp"); st2 = c.s.get("cs_tmp2")
        self.stmp = [st, st2]
        w = c.swave
        if BN == 128:
            a(f"s_lshr_b32 s{st}, s{w}, 1")
            a(f"s_and_b32 s{st2}, s{w}, 1")
            a(f"s_lshl_b32 s{self.s_tt[0]}, s{st}, 1")
            a(f"s_add_u32 s{self.s_tt[0]}, s{self.s_tt[0]}, s{st2}")
            a(f"s_xor_b32 s{self.s_tt[1]}, s{self.s_tt[0]}, 1")
            a(f"s_lshl_b32 s{self.s_ft[0]}, s{st2}, 1")
            a(f"s_add_u32 s{self.s_ft[0]}, s{self.s_ft[0]}, s{st}")
            a(f"s_xor_b32 s{self.s_ft[1]}, s{self.s_ft[0]}, 1")
        else:
            a(f"s_mov_b32 s{self.s_tt[0]}, s{w}")
            a(f"s_mov_b32 s{self.s_ft[0]}, 0")
            a(f"s_mov_b32 s{self.s_ft[1]}, 1")
        self.ax = {}
        for tt in range(self.NT_T):
            if self.xmode == 'T8':
                r = c.v.get(f"ax{tt}")
                a(f"s_lshl_b32 s{st}, s{self.s_tt[tt]}, 9")
                a(f"s_add_u32 s{st}, s{st}, {XBASE}")
                a(f"v_lshlrev_b32 v{t0}, 4, v{self.vt}")
                a(f"v_lshl_add_u32 v{t0}, v{self.vh}, 11, v{t0}")
                a(f"v_add_u32 v{r}, s{st}, v{t0}")
                for s in range(4):
                    self.ax[(tt, s)] = (r, s * 4096)
            else:
                for s in range(4):
                    r = c.v.get(f"ax{tt}_{s}")
                    a(f"s_lshl_b32 s{st}, s{self.s_tt[tt]}, 12")
                    a(f"s_add_u32 s{st}, s{st}, {XBASE}")
                    a(f"v_bfe_u32 v{t0}, v{self.vt}, 1, 3")
                    a(f"v_add_u32 v{t1}, {2*s}, v{self.vh}")
                    a(f"v_xor_b32 v{t0}, v{t0}, v{t1}")
                    a(f"v_lshlrev_b32 v{t0}, 4, v{t0}")
                    a(f"v_lshl_add_u32 v{t0}, v{self.vt}, 7, v{t0}")
                    a(f"v_add_u32 v{r}, s{st}, v{t0}")
                    self.ax[(tt, s)] = (r, 0)
        self.aw = {}
        rowb = BN * 2
        for ft in range(2):
            r = [c.v.get(f"aw{ft}_{b}") for b in range(self.nwb)]
            a(f"v_bfe_u32 v{t0}, v{lane}, 2, 2")
            if BN == 128:
                a(f"v_xor_b32 v{t1}, s{self.s_ft[ft]}, v{t0}")
            else:
                a(f"v_lshrrev_b32 v{t1}, 1, v{t0}")
                a(f"v_xor_b32 v{t1}, s{self.s_ft[ft]}, v{t1}")
            a(f"v_lshlrev_b32 v{t1}, 2, v{t1}")
            a(f"v_bfe_u32 v{t2}, v{lane}, 4, 1")
            a(f"v_lshl_add_u32 v{t1}, v{t2}, 1, v{t1}")
            a(f"v_bfe_u32 v{t2}, v{lane}, 1, 1")
            a(f"v_add_u32 v{t1}, v{t1}, v{t2}")
            a(f"v_lshlrev_b32 v{t1}, 4, v{t1}")
            a(f"v_and_b32 v{t2}, 1, v{lane}")
            a(f"v_lshl_add_u32 v{t1}, v{t2}, 3, v{t1}")
            a(f"v_lshl_add_u32 v{t0}, v{self.vh}, 3, v{t0}")
            a(f"v_mul_u32_u24 v{t0}, {rowb}, v{t0}")
            a(f"v_add_u32 v{t0}, v{t0}, v{t1}")
            a(f"v_add_u32 v{r[0]}, {WBASE}, v{t0}")
            for b in range(1, self.nwb):
                a(f"v_add_u32 v{r[b]}, {b*self.wper*self.WSLOT}, v{r[0]}")
            self.aw[ft] = r
        self.XA = [[c.v.get(f"xa{s}{tt}", 4, 2) for tt in range(self.NT_T)] for s in range(self.LA + 1)]
        self.WA = [[c.v.get(f"wa{s}{ft}", 4, 2) for ft in range(2)] for s in range(self.LA + 1)]
        self.ACC = [[c.v.get(f"acc{tt}{ft}", 16, 2) for ft in range(2)] for tt in range(self.NT_T)]
        if self.stats:
            self.xs = [c.v.get("xs0"), c.v.get("xs1")]
            self.xq = [c.v.get("xq0"), c.v.get("xq1")]
            self.cs = [c.v.get("cs0"), c.v.get("cs1")]
            self.sones = c.s.get("ones")
            a(f"s_mov_b32 s{self.sones}, {ONES:#x}")
            for r in self.xs + self.xq + self.cs:
                a(f"v_mov_b32 v{r}, 0")

    def reads(self, q):
        st, s = divmod(q, 4)
        setn = q % (self.LA + 1)
        out = []
        rowb = self.BN * 2
        xo = (st % self.NX) * 16384
        wslot = st % self.NW
        wb, wo = wslot // self.wper, (wslot % self.wper) * self.WSLOT
        for tt in range(self.NT_T):
            r, off = self.ax[(tt, s)]
            out.append(f"ds_read_b128 {vr(self.XA[setn][tt],4)}, v{r} offset:{xo + off}")
        for ft in range(2):
            for u in range(2):
                out.append(f"ds_read_b64_tr_b16 {vr(self.WA[setn][ft] + 2*u, 2)}, v{self.aw[ft][wb]} offset:{wo + (16*s + 4*u)*rowb}")
        return out

    def mainloop(self, tag, orient, hooks=None, pre=None, fillers=None):
        c, a = self.c, self.c.a
        hooks = hooks or {}; pre = pre or {}; fillers = fillers or {}
        Q = self.nst * 4
        LA = self.LA
        nset = LA + 1
        c.barrier(f"{tag}B0")
        for q0 in range(LA):
            for r in self.reads(q0):
                a(r)
        nrd = len(self.reads(0))
        for q in range(Q):
            setn = q % nset
            nxt = q + LA
            opens_stage = nxt < Q and nxt % 4 == 0
            last_of_ring = (q == Q - LA)
            if opens_stage or last_of_ring:
                a("s_waitcnt lgkmcnt(0)")
                c.barrier(f"{tag}B{nxt//4}" if nxt < Q else f"{tag}Bend")
            else:
                pending = min(LA - 1, Q - 1 - q)
                a(f"s_waitcnt lgkmcnt({min(15, pending * nrd)})")
            if q in pre: pre[q]()
            rd = self.reads(nxt) if nxt < Q else []
            mf = []
            for tt in range(self.NT_T):
                for ft in range(2):
                    acc = vr(self.ACC[tt][ft], 16)
                    cc = "0" if q == 0 else acc
                    x, w = vr(self.XA[setn][tt], 4), vr(self.WA[setn][ft], 4)
                    if orient == 'TN':
                        mf.append(f"v_mfma_f32_32x32x16_bf16 {acc}, {w}, {x}, {cc}")
                    else:
                        mf.append(f"v_mfma_f32_32x32x16_bf16 {acc}, {x}, {w}, {cc}")
            dots = []
            if self.stats and q < 4:
                for j in range(4):
                    x = self.XA[setn][0] + j
                    dots.append(f"v_dot2c_f32_bf16 v{self.xs[j&1]}, s{self.sones}, v{x}")
                    dots.append(f"v_dot2c_f32_bf16 v{self.xq[j&1]}, v{x}, v{x}")
                    dots.append(f"v_dot2c_f32_bf16 v{self.cs[j&1]}, s{self.sones}, v{self.WA[setn][0]+j}")
            nm = len(mf)
            fill = [[] for _ in range(nm)]
            half = (len(rd) + 1) // 2
            fill[0] += rd[:half]; fill[1] += rd[half:]
            fl = fillers.get(q, [])
            if fl:
                wts = [1, 1] + [3] * (nm - 2) if nm > 2 else [1] * nm
                tot = sum(wts); pos = 0
                for i in range(nm):
                    n = len(fl) - pos if i == nm - 1 else (len(fl) * wts[i] + tot - 1) // tot
                    fill[i] += fl[pos:pos + n]; pos = min(len(fl), pos + n)
            if dots:
                fill[nm - 1] += dots
            for i, (m, f) in enumerate(zip(mf, fill)):
                a(m)
                for x in f:
                    a(x)
                if i == nm - 1 and q in hooks:
                    hooks[q]()
            if PROF and tag == PROFTAG and q % 4 == 3 and q // 4 < 12:
                c.stamp(27 + q // 4)

    def stats_setup(self, srdS, px_off, pw_off, s_rb, s_ct, s_sigma):
        c, a = self.c, self.c.a
        self.srdS = srdS
        t0, t1, t2, t3 = self.tmp
        st, st2 = self.stmp
        vt, vh = self.vt, self.vh
        BIG = 0x40000000
        self.vpx = c.v.get("vpx"); self.vpw = c.v.get("vpw")
        a(f"s_mul_i32 s{st}, s{s_rb}, 10")
        a(f"s_add_u32 s{st}, s{st}, s{s_sigma}")
        a(f"s_lshl_b32 s{st}, s{st}, 2")
        a(f"s_add_u32 s{st}, s{st}, s{self.s_tt[0]}")
        a(f"s_lshl_b32 s{st}, s{st}, 9")
        a(f"s_add_u32 s{st}, s{st}, {px_off}")
        a(f"s_cmp_lt_u32 s{s_ct}, 10")
        a(f"s_cselect_b32 s{st2}, 0, {BIG}")
        a(f"s_add_u32 s{st}, s{st}, s{st2}")
        a(f"v_lshl_add_u32 v{t0}, v{vt}, 4, s{st}")
        a(f"v_lshl_add_u32 v{self.vpx}, v{vh}, 3, v{t0}")
        a(f"s_mul_i32 s{st}, s{s_ct}, 10")
        a(f"s_add_u32 s{st}, s{st}, s{s_sigma}")
        a(f"s_lshl_b32 s{st}, s{st}, 2")
        a(f"s_add_u32 s{st}, s{st}, s{self.s_ft[0]}")
        a(f"s_lshl_b32 s{st}, s{st}, 8")
        a(f"s_add_u32 s{st}, s{st}, {pw_off}")
        a(f"s_cmp_lt_u32 s{s_rb}, 10")
        a(f"s_cselect_b32 s{st2}, 0, {BIG}")
        a(f"s_add_u32 s{st}, s{st}, s{st2}")
        a(f"v_lshl_add_u32 v{t0}, v{vt}, 3, s{st}")
        a(f"v_lshl_add_u32 v{self.vpw}, v{vh}, 30, v{t0}")
        self.vgx = c.v.get("vgx"); self.vgw = c.v.get("vgw")
        a(f"s_mul_i32 s{st}, s{s_rb}, {10*128*16}")
        a(f"s_add_u32 s{st}, s{st}, {px_off}")
        a(f"v_mov_b32 v{t0}, s{self.s_tt[0]}")
        a(f"v_xor_b32 v{t0}, v{t0}, v{vh}")
        a(f"v_lshl_add_u32 v{t0}, v{t0}, 5, v{vt}")
        a(f"v_lshl_add_u32 v{self.vgx}, v{t0}, 4, s{st}")
        a(f"s_mul_i32 s{st}, s{s_ct}, {10*128*8}")
        a(f"s_add_u32 s{st}, s{st}, {pw_off}")
        a(f"v_mov_b32 v{t0}, s{self.s_ft[0]}")
        a(f"v_xor_b32 v{t0}, v{t0}, v{vh}")
        a(f"v_lshl_add_u32 v{t0}, v{t0}, 5, v{vt}")
        a(f"v_lshl_add_u32 v{self.vgw}, v{t0}, 3, s{st}")
        XS, WS = self.stats_lds()
        self.vlx = c.v.get("vlx"); self.vlx2 = c.v.get("vlx2"); self.vlw = c.v.get("vlw")
        a(f"v_mov_b32 v{t0}, s{self.s_tt[0]}")
        a(f"v_xor_b32 v{t0}, v{t0}, v{vh}")
        a(f"v_lshl_add_u32 v{t0}, v{t0}, 5, v{vt}")
        a(f"v_lshlrev_b32 v{t0}, 4, v{t0}")
        a(f"v_add_u32 v{self.vlx}, {XS}, v{t0}")
        a(f"v_add_u32 v{self.vlx2}, {WS}, v{t0}")
        a(f"v_mov_b32 v{t0}, s{self.s_ft[0]}")
        a(f"v_xor_b32 v{t0}, v{t0}, v{vh}")
        a(f"v_lshl_add_u32 v{t0}, v{t0}, 5, v{vt}")
        a(f"v_lshlrev_b32 v{t0}, 3, v{t0}")
        a(f"v_add_u32 v{self.vlw}, {WS + 4096}, v{t0}")
        self.GX = c.v.get("gx", 40, 2); self.GW = c.v.get("gw", 20, 2)
        self.vtag = c.v.get("vtag"); self.vbadlo = c.v.get("vlo"); self.vbadhi = c.v.get("vhi")
        self.PK = c.v.get("pk", 4, 2)
        self.sg = c.s.get("sg"); self.scnt = c.s.get("scnt")

    def gather_loads(self):
        a = self.c.a
        srdS = self.srdS
        for z in range(10):
            a(f"s_mov_b32 s{self.sg}, {z*2048}")
            a(f"buffer_load_dwordx4 {vr(self.GX+4*z,4)}, v{self.vgx}, s[{srdS}:{srdS+3}], s{self.sg} offen sc1")
            a(f"s_mov_b32 s{self.sg}, {z*1024}")
            a(f"buffer_load_dwordx2 {vr(self.GW+2*z,2)}, v{self.vgw}, s[{srdS}:{srdS+3}], s{self.sg} offen sc1")

    def finish_list(self, eps=1e-5):
        GX, GW = self.GX, self.GW
        lo, hi = self.vbadlo, self.vbadhi
        L = []
        tags = [GX + 4*z + 1 for z in range(10)] + [GX + 4*z + 3 for z in range(10)] + [GW + 2*z + 1 for z in range(10)]
        L.append(f"v_min_u32 v{lo}, v{tags[0]}, v{tags[1]}")
        L.append(f"v_max_u32 v{hi}, v{tags[0]}, v{tags[1]}")
        rest = tags[2:]
        adds = []
        for z in range(1, 10):
            adds.append(f"v_add_f32 v{GX}, v{GX}, v{GX+4*z}")
            adds.append(f"v_add_f32 v{GX+2}, v{GX+2}, v{GX+4*z+2}")
            adds.append(f"v_add_f32 v{GW}, v{GW}, v{GW+2*z}")
        chk = []
        for i in range(0, len(rest), 2):
            chk.append(f"v_min3_u32 v{lo}, v{rest[i]}, v{rest[i+1]}, v{lo}")
            chk.append(f"v_max3_u32 v{hi}, v{rest[i]}, v{rest[i+1]}, v{hi}")
        while adds or chk:
            if adds: L.append(adds.pop(0))
            if chk: L.append(chk.pop(0))
        L.append(f"v_mul_f32 v{GX}, {fbits(1.0/D):#x}, v{GX}")
        L.append(f"v_mul_f32 v{GX+2}, {fbits(1.0/D):#x}, v{GX+2}")
        L.append(f"v_fma_f32 v{GX+2}, -v{GX}, v{GX}, v{GX+2}")
        L.append(f"v_max_f32 v{GX+2}, 0, v{GX+2}")
        L.append(f"v_add_f32 v{GX+2}, {fbits(eps):#x}, v{GX+2}")
        L.append(f"v_rsq_f32 v{GX+2}, v{GX+2}")
        L.append(f"v_xor_b32 v{lo}, v{lo}, v{self.vtag}")
        L.append(f"v_xor_b32 v{hi}, v{hi}, v{self.vtag}")
        L.append(f"v_mul_f32 v{GX}, v{GX}, v{GX+2}")
        L.append(f"v_or_b32 v{lo}, v{lo}, v{hi}")
        L.append(f"v_sub_f32 v{GX}, 0, v{GX}")
        return L

    def stats_plan(self):
        c, a = self.c, self.c.a
        t0, t1, t2, t3 = self.tmp
        xs, xq, cs = self.xs, self.xq, self.cs
        srdS = self.srdS
        PK = self.PK
        def publish_partials():
            a("s_waitcnt vmcnt(0)")
            a(f"v_add_u32 v{self.vtag}, 1, v{V_GEN}")
            a(f"v_add_f32 v{xs[0]}, v{xs[0]}, v{xs[1]}")
            a(f"v_add_f32 v{xq[0]}, v{xq[0]}, v{xq[1]}")
            a(f"v_add_f32 v{cs[0]}, v{cs[0]}, v{cs[1]}")
            a(f"v_mov_b32 v{t0}, v{xs[0]}")
            a(f"v_mov_b32 v{t1}, v{xq[0]}")
            a(f"v_mov_b32 v{t2}, v{cs[0]}")
            a("s_nop 1")
            a(f"v_permlane32_swap_b32 v{t0}, v{xs[0]}")
            a(f"v_permlane32_swap_b32 v{t1}, v{xq[0]}")
            a(f"v_permlane32_swap_b32 v{t2}, v{cs[0]}")
            a(f"v_cmp_eq_u32 vcc, 0, v{self.vh}")
            a(f"v_mov_b32 v{PK+1}, v{self.vtag}")
            a(f"v_mov_b32 v{PK+3}, v{self.vtag}")
            a(f"v_add_f32 v{xs[0]}, v{xs[0]}, v{t0}")
            a(f"v_add_f32 v{xq[0]}, v{xq[0]}, v{t1}")
            a(f"v_add_f32 v{PK+2}, v{cs[0]}, v{t2}")
            a(f"v_cndmask_b32 v{PK}, v{xq[0]}, v{xs[0]}, vcc")
            a(f"buffer_store_dwordx2 {vr(PK+2,2)}, v{self.vpw}, s[{srdS}:{srdS+3}], 0 offen sc1")
            a(f"buffer_store_dwordx2 {vr(PK,2)}, v{self.vpx}, s[{srdS}:{srdS+3}], 0 offen sc1")
        Q = self.nst * 4
        L = self.finish_list()
        n = (len(L) + 2) // 3
        fillers = {Q - 3 + i: L[i*n:(i+1)*n] for i in range(3)}
        fillers[Q - 5] = [f"ds_read_b128 {vr(self.GX+4*z,4)}, v{self.vlx if z < 8 else self.vlx2} offset:{(z % 8)*2048}" for z in range(10)]
        fillers[Q - 4] = [f"ds_read_b64 {vr(self.GW+2*z,2)}, v{self.vlw} offset:{z*1024}" for z in range(10)]
        hooks = {4: publish_partials}
        return hooks, {}, fillers

    def stats_check(self):
        c, a = self.c, self.c.a
        lo = self.vbadlo
        lok = a.newlabel("st_ok"); lp = a.newlabel("st_retry")
        a(f"v_cmp_ne_u32 vcc, 0, v{lo}")
        a("s_cmp_eq_u64 vcc, 0")
        a(f"s_cbranch_scc1 {lok}")
        a(f"s_mov_b32 s{self.scnt}, {SPIN_MAX // 8}")
        a.label(lp)
        self.gather_loads()
        a("s_waitcnt vmcnt(0)")
        for l in self.finish_list():
            if l.startswith("v_xor_b32 v%d," % lo): a("s_nop 0")
            a(l)
        a(f"v_cmp_ne_u32 vcc, 0, v{lo}")
        a("s_cmp_eq_u64 vcc, 0")
        a(f"s_cbranch_scc1 {lok}")
        a(f"s_sub_u32 s{self.scnt}, s{self.scnt}, 1")
        a(f"s_cmp_lg_u32 s{self.scnt}, 0")
        a(f"s_cbranch_scc1 {lp}")
        a.label(lok)


def both_halves(a, src, d0, d1):
    a(f"v_mov_b32 v{d0}, v{src}")
    a(f"v_mov_b32 v{d1}, v{src}")
    a("s_nop 1")
    a(f"v_permlane32_swap_b32 v{d0}, v{d1}")


def swap_pack_store(a, vals, P, addr, srd_, soffs, sc="sc1"):
    for g in range(4):
        a(f"v_cvt_pk_bf16_f32 v{P+2*g}, v{vals+4*g}, v{vals+4*g+1}")
        a(f"v_cvt_pk_bf16_f32 v{P+2*g+1}, v{vals+4*g+2}, v{vals+4*g+3}")
    a("s_nop 1")
    for g in (0, 2):
        a(f"v_permlane32_swap_b32 v{P+2*g}, v{P+2*g+2}")
        a(f"v_permlane32_swap_b32 v{P+2*g+1}, v{P+2*g+3}")
    for i, g in enumerate((0, 2)):
        a(f"buffer_store_dwordx4 {vr(P+2*g,4)}, v{addr}, s[{srd_}:{srd_+3}], s{soffs[i]} offen {sc}")


def map_gemm(c, nhalf, s_rb, s_ct, t):
    a = c.a
    a(f"s_lshr_b32 s{s_rb}, s{S_XCD}, 1")
    a(f"s_lshl_b32 s{s_rb}, s{s_rb}, 2")
    a(f"s_and_b32 s{t}, s{S_J}, 3")
    a(f"s_add_u32 s{s_rb}, s{s_rb}, s{t}")
    a(f"s_and_b32 s{t}, s{S_XCD}, 1")
    a(f"s_mul_i32 s{t}, s{t}, {nhalf}")
    a(f"s_lshr_b32 s{s_ct}, s{S_J}, 2")
    a(f"s_add_u32 s{s_ct}, s{s_ct}, s{t}")


def sigma_of(c, s_sig, s_rb, s_ct, t):
    a = c.a
    a(f"s_add_u32 s{s_sig}, s{s_rb}, s{s_ct}")
    a(f"s_mul_i32 s{t}, s{s_sig}, 26")
    a(f"s_lshr_b32 s{t}, s{t}, 8")
    a(f"s_mul_i32 s{t}, s{t}, 10")
    a(f"s_sub_u32 s{s_sig}, s{s_sig}, s{t}")
    if "nosig" in sys.argv: a(f"s_mov_b32 s{s_sig}, 0")


def ws_srd(a, s, off, size):
    srd(a, s, PTR[P_WS], size, off)


def wave0_poll(c, line_base, s_idx, nwords, first_line_delta=0):
    a = c.a
    lab = a.newlabel("nopoll")
    m = c.v.mark(); ms = c.s.mark()
    va = c.v.get("pa"); vtmp = c.v.get("pt"); st = c.s.get("pst"); sm = c.s.get("pm", 2, 2); sc = c.s.get("pc", 4, 2)
    a(f"s_cmp_lg_u32 s{S_WAVE}, 0")
    a(f"s_cbranch_scc1 {lab}")
    flag_line(c, st, line_base, s_idx)
    a(f"v_lshl_add_u32 v{va}, v{c.lane}, 2, s{st}")
    a(f"s_mov_b32 s{sm}, {(1 << nwords) - 1:#x}")
    a(f"s_mov_b32 s{sm+1}, 0")
    poll(c, va, sm, vtmp, sc)
    a.label(lab)
    c.v.reset(m); c.s.reset(ms)


def phase_qkv_compute(c, s_rb, s_ct):
    a = c.a
    vm, sm = c.v.mark(), c.s.mark()
    s_tok0 = c.s.get("tok0"); s_sig = c.s.get("sig"); t = c.s.get("t")
    a(f"s_lshl_b32 s{s_tok0}, s{s_rb}, 7")
    sigma_of(c, s_sig, s_rb, s_ct, t)
    sQK, sVT, sST = SRD_A, SRD_B, SRD_C
    ws_srd(a, sQK, QK_OFF, QK_SZ); ws_srd(a, sVT, VT_OFF, VT_SZ); ws_srd(a, sST, ST_OFF, ST_SZ)
    g = Gemm(c, 128, 'row', 10, 4, 4, stats=True, rotate=True)
    g.compute_setup()
    g.stats_setup(sST, 0, PX_SZ, s_rb, s_ct, s_sig)
    CSV = g.GX + 4; NMV = g.GX + 20; TP = g.GW + 2; P = g.GW + 10
    vR = [c.v.get("vR0", 2, 2), c.v.get("vR1", 2, 2)]
    vN = [c.v.get("vN0", 2, 2), c.v.get("vN1", 2, 2)]
    vad = c.v.get("vad"); vad2 = c.v.get("vad2"); vl = c.v.get("vl")
    so = [c.s.get("so0"), c.s.get("so1")]
    t0, t1, t2v, t3 = g.tmp
    st = g.stmp[0]
    s_priv = c.s.get("priv")
    a(f"s_mul_i32 s{s_priv}, s{S_WAVE}, 768")
    lnt = a.newlabel("qkv_nt"); lend = a.newlabel("qkv_end")
    a(f"s_cmp_ge_u32 s{s_ct}, 10")
    a(f"s_cbranch_scc1 {lnt}")
    bar0 = list(c.bar)
    c.stamp(1)
    g.mainloop("q", 'TN', *g.stats_plan())
    c.stamp(2)
    g.stats_check()
    a(f"s_cmp_lt_u32 s{s_ct}, 5")
    a(f"s_cselect_b32 s{st}, {fbits(20 ** -0.5 * math.log2(math.e)):#x}, 1.0")
    a(f"v_mul_f32 v{g.GX}, s{st}, v{g.GX}")
    a(f"v_mul_f32 v{g.GX+2}, s{st}, v{g.GX+2}")
    both_halves(a, g.GX + 2, vR[0], vR[1])
    both_halves(a, g.GX, vN[0], vN[1])
    a(f"v_lshl_add_u32 v{vl}, v{c.lane}, 2, s{s_priv}")
    a(f"ds_write_b32 v{vl}, v{g.GW}")
    a(f"v_lshl_add_u32 v{vl}, v{g.vh}, 4, s{s_priv}")
    a("s_waitcnt lgkmcnt(0)")
    for ft in range(2):
        for gg in range(4):
            a(f"ds_read_b128 {vr(CSV+4*gg,4)}, v{vl} offset:{128*ft+32*gg}")
        a("s_waitcnt lgkmcnt(0)")
        for tt in range(2):
            acc = g.ACC[tt][ft]
            for i in range(0, 16, 2):
                a(f"v_pk_mul_f32 {vr(TP+i%8,2)}, {vr(CSV+i,2)}, {vr(vN[tt],2)} op_sel_hi:[1,0]")
                if i >= 4:
                    j = i - 4
                    a(f"v_pk_fma_f32 {vr(acc+j,2)}, {vr(acc+j,2)}, {vr(vR[tt],2)}, {vr(TP+j%8,2)} op_sel_hi:[1,0,1]")
            for j in (12, 14):
                a(f"v_pk_fma_f32 {vr(acc+j,2)}, {vr(acc+j,2)}, {vr(vR[tt],2)}, {vr(TP+j%8,2)} op_sel_hi:[1,0,1]")
            a(f"s_lshl_b32 s{st}, s{g.s_tt[tt]}, 5")
            a(f"s_add_u32 s{st}, s{st}, s{s_tok0}")
            a(f"v_add_u32 v{vad}, s{st}, v{g.vt}")
            a(f"v_lshlrev_b32 v{vad}, 4, v{vad}")
            a(f"v_lshl_add_u32 v{vad}, v{g.vh}, 15, v{vad}")
            a(f"s_lshl_b32 s{so[0]}, s{s_ct}, 2")
            a(f"s_add_u32 s{so[0]}, s{so[0]}, s{g.s_ft[ft]}")
            a(f"s_lshl_b32 s{so[0]}, s{so[0]}, 17")
            a(f"s_add_u32 s{so[1]}, s{so[0]}, {2*32768}")
            swap_pack_store(a, acc, P, vad, sQK, so)
            a("s_nop 1")
    a(f"s_branch {lend}")
    barT = list(c.bar)
    c.bar = list(bar0)
    a.label(lnt)
    c.stamp(1)
    g.mainloop("q", 'NT', *g.stats_plan())
    c.stamp(2)
    g.stats_check()
    vC = vR
    both_halves(a, g.GW, vC[0], vC[1])
    a(f"v_lshl_add_u32 v{vl}, v{c.lane}, 2, s{s_priv}")
    a(f"ds_write_b32 v{vl}, v{g.GX+2}")
    a(f"ds_write_b32 v{vl}, v{g.GX} offset:256")
    a(f"v_lshl_add_u32 v{vl}, v{g.vh}, 4, s{s_priv}")
    a("s_waitcnt lgkmcnt(0)")
    for tt in range(2):
        for gg in range(4):
            a(f"ds_read_b128 {vr(CSV+4*gg,4)}, v{vl} offset:{128*tt+32*gg}")
            a(f"ds_read_b128 {vr(NMV+4*gg,4)}, v{vl} offset:{256+128*tt+32*gg}")
        a("s_waitcnt lgkmcnt(0)")
        for ft in range(2):
            acc = g.ACC[tt][ft]
            for i in range(0, 16, 2):
                a(f"v_pk_mul_f32 {vr(TP+i%8,2)}, {vr(NMV+i,2)}, {vr(vC[ft],2)} op_sel_hi:[1,0]")
                if i >= 4:
                    j = i - 4
                    a(f"v_pk_fma_f32 {vr(acc+j,2)}, {vr(acc+j,2)}, {vr(CSV+j,2)}, {vr(TP+j%8,2)}")
            for j in (12, 14):
                a(f"v_pk_fma_f32 {vr(acc+j,2)}, {vr(acc+j,2)}, {vr(CSV+j,2)}, {vr(TP+j%8,2)}")
            a(f"s_sub_u32 s{st}, s{s_ct}, 10")
            a(f"s_lshl_b32 s{st}, s{st}, 2")
            a(f"s_add_u32 s{st}, s{st}, s{g.s_ft[ft]}")
            a(f"s_lshl_b32 s{st}, s{st}, 5")
            a(f"v_add_u32 v{vad}, s{st}, v{g.vt}")
            a(f"v_lshlrev_b32 v{vad}, 4, v{vad}")
            a(f"v_mul_u32_u24 v{vad2}, 10240, v{g.vh}")
            a(f"v_add_u32 v{vad}, v{vad}, v{vad2}")
            a(f"s_lshl_b32 s{st}, s{g.s_tt[tt]}, 2")
            a(f"s_lshr_b32 s{so[0]}, s{s_tok0}, 3")
            a(f"s_add_u32 s{so[0]}, s{so[0]}, s{st}")
            a(f"s_mul_i32 s{so[0]}, s{so[0]}, 10240")
            a(f"s_add_u32 s{so[1]}, s{so[0]}, {2*10240}")
            swap_pack_store(a, acc, P, vad, sVT, so)
            a("s_nop 1")
    assert c.bar == barT
    a.label(lend)
    c.stamp(3)
    flag_line(c, st, FL_QKV, s_rb)
    a(f"s_lshl_b32 s{t}, s{s_ct}, 2")
    a(f"s_add_u32 s{st}, s{st}, s{t}")
    publish(c, 0, 4, st, t0, t1)
    c.stamp(4)
    c.v.reset(vm); c.s.reset(sm)


def phase_qkv_loader(c, s_rb, s_ct):
    a = c.a
    vm, sm = c.v.mark(), c.s.mark()
    s_tok0 = c.s.get("tok0"); s_colb = c.s.get("colb"); s_sig = c.s.get("sig"); t = c.s.get("t")
    a(f"s_lshl_b32 s{s_tok0}, s{s_rb}, 7")
    a(f"s_lshl_b32 s{s_colb}, s{s_ct}, 8")
    sigma_of(c, s_sig, s_rb, s_ct, t)
    srd(a, SRD_A, PTR[P_X], S * D * 2)
    srd(a, SRD_B, PTR[P_WQKV], D * NQKV * 2)
    g = Gemm(c, 128, 'row', 10, 4, 4, rotate=True)
    g.loader_setup(SRD_A, SRD_B, s_tok0, s_colb, NQKV * 2, s_sig)
    ws_srd(a, SRD_C, ST_OFF, ST_SZ)
    ex = g.stats_dma(SRD_C, 0, PX_SZ, s_rb, s_ct)
    c.stamp(1)
    g.loader_main("q", both_at_start=True, extra=ex)
    c.stamp(2)
    c.v.reset(vm); c.s.reset(sm)


def phase_att(c, s_jj, rbw, ctw, ctf):
    a = c.a
    vm, sm = c.v.mark(), c.s.mark()
    KOFF, QOFF, VOFF = XBASE, XBASE + 30720, XBASE + 40960
    lane = c.lane
    w = S_WAVE
    s_rb = c.s.get("rb"); s_p = c.s.get("p"); t = c.s.get("t"); t2 = c.s.get("t2")
    a(f"s_and_b32 s{s_rb}, s{S_J}, 15")
    a(f"s_lshr_b32 s{t2}, s{S_J}, 4")
    a(f"s_lshl_b32 s{s_p}, s{S_XCD}, 1")
    a(f"s_add_u32 s{s_p}, s{s_p}, s{t2}")
    sQK, sVT, sO = SRD_C, SRD_D, SRD_E
    ws_srd(a, sQK, QK_OFF, QK_SZ); ws_srd(a, sVT, VT_OFF, VT_SZ); ws_srd(a, sO, O_OFF, O_SZ)
    v0_, v1_, v2_, v3_ = [c.v.get(f"t{i}") for i in range(4)]
    vkq = c.v.get("vkq"); vv = [c.v.get(f"vv{i}") for i in range(4)]
    s_col8 = c.s.get("col8"); s_ldsb = c.s.get("ldsb"); s_gp = c.s.get("gp"); s_off = c.s.get("off"); s_voff = c.s.get("voff")
    s_qt = c.s.get("qt"); s_hs = c.s.get("hs"); s_g0 = c.s.get("g0")
    s_vm = c.s.get("vmask", 2, 2); s_hm = c.s.get("hm", 2, 2)
    smk = c.s.mark()
    s_tokb = c.s.get("tokb"); s_t80 = c.s.get("t80")
    a(f"s_lshl_b32 s{s_tokb}, s{s_rb}, 7")
    a(f"s_lshl_b32 s{t}, s{w}, 6")
    a(f"s_add_u32 s{s_tokb}, s{s_tokb}, s{t}")
    a(f"s_cmp_lt_u32 s{w}, 6")
    a(f"s_cselect_b32 s{t}, 0, 128")
    a(f"s_add_u32 s{t}, s{t}, 256")
    a(f"s_sub_u32 s{s_tokb}, s{s_tokb}, s{t}")
    a(f"s_mul_i32 s{s_col8}, s{s_p}, 5")
    a(f"s_cmp_lt_u32 s{w}, 6")
    a(f"s_cselect_b32 s{t}, 80, 0")
    a(f"s_add_u32 s{s_col8}, s{s_col8}, s{t}")
    a(f"s_lshl_b32 s{s_ldsb}, s{w}, 10")
    a(f"s_cmp_lt_u32 s{w}, 6")
    a(f"s_cselect_b32 s{t}, 0, {QOFF - 6*1024 - KOFF}")
    a(f"s_add_u32 s{s_ldsb}, s{s_ldsb}, s{t}")
    a(f"s_add_u32 s{s_ldsb}, s{s_ldsb}, {KOFF}")
    a(f"s_cmp_lt_u32 s{w}, 6")
    a(f"s_cselect_b32 s{s_gp}, 4096, 0")
    a(f"s_add_u32 s{s_gp}, s{s_gp}, 2048")
    a(f"v_add_u32 v{vkq}, s{s_tokb}, v{lane}")
    a(f"v_max_i32 v{vkq}, 0, v{vkq}")
    a(f"v_lshlrev_b32 v{vkq}, 4, v{vkq}")
    a(f"s_lshl_b32 s{s_col8}, s{s_col8}, 15")
    a(f"s_lshl_b32 s{s_t80}, s{s_rb}, 4")
    a(f"s_sub_u32 s{s_t80}, s{s_t80}, 32")
    a(f"s_mul_i32 s{s_voff}, s{s_p}, 640")
    for i in range(4):
        a(f"s_lshl_b32 s{t}, s{w}, 6")
        a(f"s_add_u32 s{t}, s{t}, {512*i}")
        a(f"v_add_u32 v{v0_}, s{t}, v{lane}")
        a(f"v_mul_u32_u24 v{v1_}, 52429, v{v0_}")
        a(f"v_lshrrev_b32 v{v1_}, 21, v{v1_}")
        a(f"v_mul_u32_u24 v{v2_}, 40, v{v1_}")
        a(f"v_sub_u32 v{v2_}, v{v0_}, v{v2_}")
        a(f"v_add_u32 v{v1_}, s{s_t80}, v{v1_}")
        a(f"v_max_i32 v{v1_}, 0, v{v1_}")
        a(f"v_mul_u32_u24 v{v1_}, 10240, v{v1_}")
        a(f"v_lshl_add_u32 v{vv[i]}, v{v2_}, 4, v{v1_}")
    a(f"s_and_b32 s{s_qt}, s{w}, 3")
    a(f"s_lshr_b32 s{s_hs}, s{w}, 2")
    vt = c.v.get("vt"); vh = c.v.get("vh")
    a(f"v_and_b32 v{vt}, 31, v{lane}")
    a(f"v_lshrrev_b32 v{vh}, 5, v{lane}")
    aQ1 = c.v.get("aQ1"); aQ2 = c.v.get("aQ2"); aK1 = c.v.get("aK1"); aK2 = c.v.get("aK2"); aV = c.v.get("aV")
    a(f"s_mul_i32 s{s_g0}, s{s_hs}, 3")
    a(f"s_lshl_b32 s{t}, s{s_qt}, 9")
    a(f"v_lshl_add_u32 v{v0_}, v{vt}, 4, s{t}")
    a(f"v_add_u32 v{v1_}, s{s_g0}, v{vh}")
    a(f"v_lshl_add_u32 v{aQ1}, v{v1_}, 11, v{v0_}")
    a(f"v_add_u32 v{aQ1}, {QOFF}, v{aQ1}")
    a(f"v_lshl_add_u32 v{aQ2}, v{vh}, 3, v{v0_}")
    a(f"v_add_u32 v{aQ2}, {QOFF + 2*2048}, v{aQ2}")
    a(f"v_and_b32 v{v0_}, 0x13, v{vt}")
    a(f"v_bfe_u32 v{v2_}, v{vt}, 2, 1")
    a(f"v_lshl_or_b32 v{v0_}, v{v2_}, 3, v{v0_}")
    a(f"v_bfe_u32 v{v2_}, v{vt}, 3, 1")
    a(f"v_lshl_or_b32 v{v0_}, v{v2_}, 2, v{v0_}")
    a(f"v_lshl_add_u32 v{v0_}, v{v0_}, 4, s{t}")
    a(f"v_mul_u32_u24 v{v1_}, 6144, v{v1_}")
    a(f"v_add_u32 v{aK1}, v{v1_}, v{v0_}")
    a(f"v_add_u32 v{aK1}, {KOFF}, v{aK1}")
    a(f"v_lshl_add_u32 v{aK2}, v{vh}, 3, v{v0_}")
    a(f"v_add_u32 v{aK2}, {KOFF + 2*6144}, v{aK2}")
    a(f"s_lshl_b32 s{t}, s{s_hs}, 4")
    a(f"v_add_u32 v{v0_}, s{t}, v{vt}")
    a(f"v_lshlrev_b32 v{v0_}, 4, v{v0_}")
    a(f"s_lshl_b32 s{t}, s{s_qt}, 2")
    a(f"v_add_u32 v{v1_}, s{t}, v{vh}")
    a(f"v_mul_u32_u24 v{v1_}, 640, v{v1_}")
    a(f"v_add3_u32 v{aV}, v{v0_}, v{v1_}, 0")
    a(f"v_add_u32 v{aV}, {VOFF}, v{aV}")
    a(f"s_lshl_b32 s{t}, s{s_hs}, 2")
    a(f"v_subrev_u32 v{v0_}, s{t}, v{vt}")
    a(f"v_cmp_gt_u32 s[{s_vm}:{s_vm+1}], 20, v{v0_}")
    a(f"v_cmp_eq_u32 s[{s_hm}:{s_hm+1}], s{s_hs}, v{vh}")
    vd = c.v.get("vd")
    a(f"v_lshlrev_b32 v{v0_}, 3, v{vh}")
    a(f"v_sub_u32 v{vd}, v{vt}, v{v0_}")
    Q1 = c.v.get("Q1", 4, 2); Q2 = c.v.get("Q2", 2, 2)
    K1 = [c.v.get(f"K1{i}", 4, 2) for i in range(9)]; K2 = [c.v.get(f"K2{i}", 2, 2) for i in range(9)]
    VF = [c.v.get(f"VF{i}", 4, 2) for i in range(4)]
    O = c.v.get("O", 16, 2)
    SB = [c.v.get(f"S{i}", 16, 2) for i in range(3)]
    NEGM = c.v.get("negm", 16, 2)
    Z0 = c.v.get("z0", 16, 2); Z8 = c.v.get("z8", 16, 2)
    vneg = c.v.get("neg"); vmx = [c.v.get(f"m{i}") for i in range(4)]
    a(f"v_mov_b32 v{vneg}, {fbits(-1e30):#x}")
    for i in range(4):
        for j in range(4):
            a(f"v_mov_b32 v{VF[i]+j}, {ONES:#x}")
    vpf = c.v.get("vpf"); sPF = SRD_B
    s_src = c.s.get("psrc", 10); s_pd = c.s.get("pd"); s_dt = [c.s.get("pdt0"), c.s.get("pdt1")]
    lB = a.newlabel("pfB"); lE = a.newlabel("pfE"); lC = a.newlabel("pfC")
    a(f"s_cmp_ge_u32 s{s_jj}, 5")
    a(f"s_cbranch_scc1 {lB}")
    srd(a, sPF, PTR[P_WO], D * D * 2)
    a(f"v_lshrrev_b32 v{v0_}, 3, v{lane}")
    a(f"v_and_b32 v{v1_}, 7, v{lane}")
    a(f"v_bfe_u32 v{v2_}, v{lane}, 4, 1")
    a(f"v_lshlrev_b32 v{v2_}, 2, v{v2_}")
    a(f"v_xor_b32 v{v1_}, v{v1_}, v{v2_}")
    a(f"s_lshl_b32 s{t}, s{w}, 3")
    a(f"v_add_u32 v{v0_}, s{t}, v{v0_}")
    a(f"v_mul_u32_u24 v{v0_}, {D*2}, v{v0_}")
    a(f"v_lshl_add_u32 v{v0_}, v{v1_}, 4, v{v0_}")
    a(f"s_lshl_b32 s{t}, s{ctw}, 7")
    a(f"v_add_u32 v{vpf}, s{t}, v{v0_}")
    for n in range(10):
        a(f"s_mov_b32 s{s_src+n}, {n*64*D*2}")
    a(f"s_lshl_b32 s{s_pd}, s{w}, 10")
    a(f"s_add_u32 s{s_pd}, s{s_pd}, {WBASE}")
    a(f"s_mov_b32 s{s_dt[0]}, 8192"); a(f"s_mov_b32 s{s_dt[1]}, 8192")
    a(f"s_branch {lE}")
    a.label(lB)
    srd(a, sPF, PTR[P_W1], D * F * 2)
    a(f"s_cmp_ge_u32 s{s_jj}, 7")
    a(f"s_cselect_b32 s{sPF+2}, 0, s{sPF+2}")
    a(f"v_lshrrev_b32 v{v0_}, 4, v{lane}")
    a(f"v_and_b32 v{v1_}, 15, v{lane}")
    a(f"v_lshlrev_b32 v{v2_}, 2, v{v0_}")
    a(f"v_xor_b32 v{v1_}, v{v1_}, v{v2_}")
    a(f"s_lshl_b32 s{t}, s{w}, 3")
    a(f"v_add_u32 v{v0_}, s{t}, v{v0_}")
    a(f"v_mul_u32_u24 v{v0_}, {F*2}, v{v0_}")
    a(f"v_lshl_add_u32 v{v0_}, v{v1_}, 4, v{v0_}")
    a(f"s_lshl_b32 s{t}, s{ctf}, 8")
    a(f"v_add_u32 v{vpf}, s{t}, v{v0_}")
    sigma_of(c, s_pd, rbw, ctf, t)
    for st_ in range(5):
        a(f"s_add_u32 s{t}, s{s_pd}, {st_}")
        a(f"s_cmp_ge_u32 s{t}, 10")
        a(f"s_cselect_b32 s{t2}, 10, 0")
        a(f"s_sub_u32 s{t}, s{t}, s{t2}")
        a(f"s_mul_i32 s{s_src+2*st_}, s{t}, {64*F*2}")
        a(f"s_add_u32 s{s_src+2*st_+1}, s{s_src+2*st_}, {4*F*2}")
    a(f"s_lshl_b32 s{s_pd}, s{w}, 11")
    a(f"s_add_u32 s{s_pd}, s{s_pd}, {WBASE}")
    a(f"s_mov_b32 s{s_dt[0]}, 1024"); a(f"s_mov_b32 s{s_dt[1]}, {16384 - 1024}")
    a.label(lE)
    def prefetch_piece(n):
        if "nopf" in TOG: return
        if n == 0:
            a(f"s_mov_b32 m0, s{s_pd}")
            a("s_nop 0")
        a(f"buffer_load_dwordx4 v{vpf}, s[{sPF}:{sPF+3}], s{s_src+n} offen lds")
        if n < 9: a(f"s_add_u32 m0, m0, s{s_dt[n&1]}")
    lab = a.newlabel("att_nopoll")
    smk2 = c.s.mark()
    sm_ = c.s.get("pm", 2, 2); sc_ = c.s.get("pc", 4, 2)
    a(f"s_cmp_lg_u32 s{w}, 0")
    a(f"s_cbranch_scc1 {lab}")
    a(f"v_lshrrev_b32 v{v0_}, 4, v{lane}")
    a(f"v_add_u32 v{v0_}, s{s_rb}, v{v0_}")
    a(f"v_subrev_u32 v{v0_}, 2, v{v0_}")
    a(f"v_and_b32 v{v1_}, 15, v{lane}")
    a(f"v_cmp_le_i32 s[{sm_}:{sm_+1}], 0, v{v0_}")
    a(f"v_cmp_gt_u32 s[{sc_}:{sc_+1}], 15, v{v1_}")
    a(f"v_cmp_gt_u32 vcc, 48, v{lane}")
    a(f"v_add_u32 v{v0_}, {FL_QKV}, v{v0_}")
    a(f"v_lshlrev_b32 v{v0_}, 8, v{v0_}")
    a(f"v_lshl_add_u32 v{v0_}, v{v1_}, 2, v{v0_}")
    a(f"s_and_b64 s[{sm_}:{sm_+1}], s[{sm_}:{sm_+1}], s[{sc_}:{sc_+1}]")
    a(f"s_and_b64 s[{sm_}:{sm_+1}], s[{sm_}:{sm_+1}], vcc")
    poll(c, v0_, sm_, v2_, sc_)
    a.label(lab)
    c.stamp(5)
    c.barrier("aP")
    c.stamp(6)
    for G in range(5):
        a(f"s_mov_b32 m0, s{s_ldsb}")
        a(f"s_add_u32 s{s_off}, s{s_col8}, {G*32768}")
        a(f"buffer_load_dwordx4 v{vkq}, s[{sQK}:{sQK+3}], s{s_off} offen sc1 lds")
        a(f"s_add_u32 s{s_ldsb}, s{s_ldsb}, s{s_gp}")
    c.s.reset(smk2)
    s_mk = c.s.get("mk", 4, 2)
    s_g = s_col8
    a(f"s_lshl_b32 s{s_g}, s{s_rb}, 2")
    a(f"s_add_u32 s{s_g}, s{s_g}, s{s_qt}")
    def mkcmp(i):
        g_, r_ = divmod(i, 4)
        cr = 16 * (g_ >> 1) + 4 * (g_ & 1) + r_
        a(f"v_cmp_le_i32 s[{s_mk+2*(i&1)}:{s_mk+2*(i&1)+1}], {cr}, v{vd}")
    mkcmp(0); mkcmp(1)
    a("s_nop 0")
    for i in range(16):
        mk = f"s[{s_mk+2*(i&1)}:{s_mk+2*(i&1)+1}]"
        a(f"v_cndmask_b32 v{Z0+i}, 0, v{vneg}, {mk}")
        a(f"v_cndmask_b32 v{Z8+i}, v{vneg}, 0, {mk}")
        if i + 2 < 16: mkcmp(i + 2)
    a("s_waitcnt vmcnt(0)")
    c.barrier("aK")
    c.stamp(7)
    lv = a.newlabel("vskip")
    for i in range(4):
        if i == 3:
            a(f"s_cmp_ge_u32 s{w}, 6")
            a(f"s_cbranch_scc1 {lv}")
        a(f"s_lshl_b32 s{t}, s{w}, 10")
        a(f"s_add_u32 m0, s{t}, {VOFF + 8192*i}")
        a("s_nop 0")
        a(f"buffer_load_dwordx4 v{vv[i]}, s[{sVT}:{sVT+3}], s{s_voff} offen sc1 lds")
    a.label(lv)
    a(f"ds_read_b128 {vr(Q1,4)}, v{aQ1}")
    a(f"ds_read_b64 {vr(Q2,2)}, v{aQ2}")
    def kread(i):
        a(f"ds_read_b128 {vr(K1[i],4)}, v{aK1} offset:{i*512}")
        a(f"ds_read_b64 {vr(K2[i],2)}, v{aK2} offset:{i*512}")
    for i in range(4): kread(i)
    a("s_waitcnt lgkmcnt(8)")
    a(f"v_cndmask_b32 v{Q2}, 0, v{Q2}, s[{s_hm}:{s_hm+1}]")
    a(f"v_cndmask_b32 v{Q2+1}, 0, v{Q2+1}, s[{s_hm}:{s_hm+1}]")

    fixups = []
    def fix(i):
        if "nofix" in TOG or i == 8: return
        S_ = SB[i % 3]
        lab = a.newlabel("fixo"); back = a.newlabel("fixb")
        a(f"s_cmp_lt_u32 s{s_g}, {8 - i}")
        a(f"s_cbranch_scc1 {lab}")
        a.label(back)
        fixups.append((lab, back, S_))
    def cinit(i, plain):
        return vr(Z0, 16) if i == 0 else (vr(Z8, 16) if i == 8 else plain)
    done_at = {}
    PB = [c.v.get("PB0", 8, 2), c.v.get("PB1", 8, 2)]
    def qk1(i, cinit):
        a(f"v_mfma_f32_32x32x16_bf16 {vr(SB[i%3],16)}, {vr(K1[i],4)}, {vr(Q1,4)}, {cinit}")
    def qk2(i):
        a(f"v_mfma_f32_32x32x8_bf16 {vr(SB[i%3],16)}, {vr(K2[i],2)}, {vr(Q2,2)}, {vr(SB[i%3],16)}")
        done_at[i] = a.pos()
    def maxops(i):
        S_ = SB[i % 3]
        if i == 0:
            return [f"v_max3_f32 v{vmx[k]}, v{S_+4*k}, v{S_+4*k+1}, v{S_+4*k+2}" for k in range(4)] + \
                   [f"v_max_f32 v{vmx[k]}, v{vmx[k]}, v{S_+4*k+3}" for k in range(4)]
        return [f"v_max3_f32 v{vmx[k%4]}, v{S_+2*k}, v{S_+2*k+1}, v{vmx[k%4]}" for k in range(8)]
    for i in range(11):
        ops = []
        if i < 9:
            if i + 4 < 9:
                kread(i + 4)
                a("s_waitcnt lgkmcnt(8)")
            else:
                a(f"s_waitcnt lgkmcnt({2 * (8 - i)})")
            qk1(i, cinit(i, "0"))
        if i >= 2:
            a.need(done_at[i - 2], 12)
            fix(i - 2)
            ops = maxops(i - 2)
        for o in ops[:4]: a(o)
        if i < 9: qk2(i)
        for o in ops[4:]: a(o)
        if PROFTAG == 'a' and i < 9: c.stamp(41 + i)
    a(f"v_max3_f32 v{vmx[0]}, v{vmx[0]}, v{vmx[1]}, v{vmx[2]}")
    a(f"v_max_f32 v{vmx[0]}, v{vmx[0]}, v{vmx[3]}")
    a(f"v_mov_b32 v{vmx[1]}, v{vmx[0]}")
    a("s_nop 1")
    a(f"v_permlane32_swap_b32 v{vmx[0]}, v{vmx[1]}")
    a("s_nop 1")
    a(f"v_max_f32 v{vmx[0]}, v{vmx[0]}, v{vmx[1]}")
    for j in range(16):
        a(f"v_sub_f32 v{Z0+j}, v{Z0+j}, v{vmx[0]}")
    for j in range(16):
        a(f"v_sub_f32 v{NEGM+j}, 0, v{vmx[0]}")
    for j in range(16):
        a(f"v_sub_f32 v{Z8+j}, v{Z8+j}, v{vmx[0]}")
    c.stamp(9)
    negm = vr(NEGM, 16)
    a("s_nop 1")
    qk1(0, cinit(0, negm)); qk1(1, negm); qk2(0); qk2(1)
    a("s_waitcnt vmcnt(0)")
    c.barrier("aV")
    def vread(i):
        a(f"s_mov_b64 exec, s[{s_vm}:{s_vm+1}]")
        for tt in range(2):
            a(f"ds_read_b128 {vr(VF[(2*i+tt)%4],4)}, v{aV} offset:{(4*i+2*tt)*640}")
        a("s_mov_b64 exec, -1")
    def pv(i, tt):
        if "nopv" in TOG: return
        cc = "0" if (i == 0 and tt == 0) else vr(O, 16)
        a(f"v_mfma_f32_32x32x16_bf16 {vr(O,16)}, {vr(VF[(2*i+tt)%4],4)}, {vr(PB[i&1]+4*tt,4)}, {cc}")
    for i in range(9):
        S_ = SB[i % 3]
        vread(i)
        a.need(done_at[i], 12)
        fix(i)
        def exps(lo):
            for j in range(lo, lo + 4):
                if "noexp" in TOG: continue
                a(f"v_exp_f32 v{S_+j}, v{S_+j}" if "expmov" not in TOG else f"v_mov_b32 v{S_+j}, v{S_+j}")
        exps(0)
        if i + 2 < 9 and "noqk" not in TOG: qk1(i + 2, cinit(i + 2, negm))
        exps(4)
        if i >= 1:
            a("s_waitcnt lgkmcnt(2)")
            pv(i - 1, 0)
        exps(8)
        if i + 2 < 9 and "noqk" not in TOG: qk2(i + 2)
        exps(12)
        if i >= 1: pv(i - 1, 1)
        prefetch_piece(i)
        if i == 0: a("s_nop 0")
        for j in range(8):
            if "nocvt" in TOG: continue
            a(f"v_cvt_pk_bf16_f32 v{PB[i&1]+j}, v{S_+2*j}, v{S_+2*j+1}")
        if PROFTAG == 'a': c.stamp(27 + i)
    prefetch_piece(9)
    a("s_waitcnt lgkmcnt(0)")
    a("s_nop 1")
    pv(8, 0); pv(8, 1)
    c.stamp(10)
    a("s_nop 15")
    rinv = vmx[1]
    a(f"v_rcp_f32 v{rinv}, v{O+12}")
    a("s_nop 0")
    for j in range(12):
        a(f"v_mul_f32 v{O+j}, v{O+j}, v{rinv}")
    PP = c.v.get("PP", 6, 2)
    for g in range(3):
        a(f"v_cvt_pk_bf16_f32 v{PP+2*g}, v{O+4*g}, v{O+4*g+1}")
        a(f"v_cvt_pk_bf16_f32 v{PP+2*g+1}, v{O+4*g+2}, v{O+4*g+3}")
    vad = v0_; vad2 = v1_
    a(f"s_lshl_b32 s{t}, s{s_rb}, 7")
    a(f"s_lshl_b32 s{t2}, s{s_qt}, 5")
    a(f"s_add_u32 s{t}, s{t}, s{t2}")
    a(f"v_add_u32 v{vad}, s{t}, v{vt}")
    a(f"v_lshlrev_b32 v{vad}, 4, v{vad}")
    a(f"v_lshl_add_u32 v{vad2}, v{vh}, 3, v{vad}")
    a(f"v_lshl_add_u32 v{vad}, v{vh}, 15, v{vad}")
    a(f"s_mul_i32 s{t}, s{s_p}, 5")
    a(f"s_add_u32 s{t2}, s{t}, 2")
    a(f"s_lshl_b32 s{t2}, s{t2}, 15")
    a(f"s_add_u32 s{t}, s{t}, s{s_g0}")
    a(f"s_lshl_b32 s{t}, s{t}, 15")
    lb = a.newlabel("headB"); le = a.newlabel("headE")
    a(f"s_cmp_eq_u32 s{s_hs}, 1")
    a(f"s_cbranch_scc1 {lb}")
    a(f"v_permlane32_swap_b32 v{PP}, v{PP+2}")
    a(f"v_permlane32_swap_b32 v{PP+1}, v{PP+3}")
    a(f"buffer_store_dwordx4 {vr(PP,4)}, v{vad}, s[{sO}:{sO+3}], s{t} offen sc1")
    a(f"s_mov_b64 exec, s[{s_hm}:{s_hm+1}]")
    a(f"buffer_store_dwordx2 {vr(PP+4,2)}, v{vad2}, s[{sO}:{sO+3}], s{t2} offen sc1")
    a(f"s_branch {le}")
    a.label(lb)
    a(f"v_permlane32_swap_b32 v{PP+2}, v{PP+4}")
    a(f"v_permlane32_swap_b32 v{PP+3}, v{PP+5}")
    a(f"buffer_store_dwordx4 {vr(PP+2,4)}, v{vad}, s[{sO}:{sO+3}], s{t} offen sc1")
    a(f"s_mov_b64 exec, s[{s_hm}:{s_hm+1}]")
    a(f"buffer_store_dwordx2 {vr(PP,2)}, v{vad2}, s[{sO}:{sO+3}], s{t2} offen sc1")
    a.label(le)
    a("s_mov_b64 exec, -1")
    c.stamp(11)
    flag_line(c, t, FL_ATT, s_rb)
    a(f"s_lshl_b32 s{t2}, s{s_p}, 2")
    a(f"s_add_u32 s{t}, s{t}, s{t2}")
    publish(c, 1, 8, t, v2_, v3_)
    c.stamp(12)
    lskip = a.newlabel("att_done")
    a(f"s_branch {lskip}")
    for lab, back, S_ in fixups:
        a.label(lab)
        for j in range(16):
            a(f"v_mov_b32 v{S_+j}, v{vneg}")
        a(f"s_branch {back}")
    a.label(lskip)
    c.v.reset(vm); c.s.reset(sm)


def row_tile_addr(c, g, base, regs):
    a = c.a
    t0, t1 = g.tmp[0], g.tmp[1]
    st = g.stmp[0]
    a(f"s_lshl_b32 s{st}, s{c.swave}, 12")
    a(f"s_add_u32 s{st}, s{st}, {base}")
    a(f"v_lshl_add_u32 v{t0}, v{g.vt}, 7, s{st}")
    a(f"v_lshl_add_u32 v{t0}, v{g.vh}, 3, v{t0}")
    a(f"v_bfe_u32 v{t1}, v{g.vt}, 1, 3")
    for k in range(8):
        a(f"v_xor_b32 v{regs+k}, {k}, v{t1}")
        a(f"v_lshl_add_u32 v{regs+k}, v{regs+k}, 4, v{t0}")


RES_SLOT = XBASE + 2 * 16384


def wo_weights_loader(c, s_ct):
    a = c.a
    s_colb = c.s.get("colb"); s_tok0 = c.s.get("tok0"); s_rb = c.s.get("rb"); t = c.s.get("t")
    return s_colb


def phase_wo_compute(c, s_rb, s_ct):
    a = c.a
    vm, sm = c.v.mark(), c.s.mark()
    s_tok0 = c.s.get("tok0"); t = c.s.get("t")
    a(f"s_lshl_b32 s{s_tok0}, s{s_rb}, 7")
    sH = SRD_A
    ws_srd(a, sH, H_OFF, H_SZ)
    g = Gemm(c, 64, 'T8', 10, 4, 10)
    g.compute_setup()
    st, st2 = g.stmp
    ra = c.v.get("ra", 8)
    row_tile_addr(c, g, RES_SLOT, ra)
    R = c.v.get("R", 16, 2); P = c.v.get("P", 8, 2); vad = c.v.get("vad")
    so = [c.s.get("so0"), c.s.get("so1")]
    a(f"s_lshl_b32 s{st}, s{c.swave}, 5")
    a(f"s_add_u32 s{st}, s{st}, s{s_tok0}")
    a(f"v_add_u32 v{vad}, s{st}, v{g.vt}")
    a(f"v_lshlrev_b32 v{vad}, 4, v{vad}")
    a(f"v_lshl_add_u32 v{vad}, v{g.vh}, 15, v{vad}")
    wave0_poll(c, FL_ATT, s_rb, 16)
    c.stamp(13)
    c.barrier("wP")
    c.stamp(14)
    g.mainloop("w", 'TN')
    c.stamp(15)
    for k in range(8):
        a(f"ds_read_b64 {vr(R+2*k,2)}, v{ra+k}")
    a("s_nop 7")
    a("s_waitcnt lgkmcnt(0)")
    t0, t1 = g.tmp[0], g.tmp[1]
    for ft in range(2):
        acc = g.ACC[0][ft]
        for gg in range(4):
            for d in range(2):
                r = R + 2 * (4 * ft + gg) + d
                a(f"v_lshlrev_b32 v{t0}, 16, v{r}")
                a(f"v_and_b32 v{t1}, 0xffff0000, v{r}")
                a(f"v_add_f32 v{acc+4*gg+2*d}, v{acc+4*gg+2*d}, v{t0}")
                a(f"v_add_f32 v{acc+4*gg+2*d+1}, v{acc+4*gg+2*d+1}, v{t1}")
        a(f"s_lshl_b32 s{so[0]}, s{s_ct}, 3")
        a(f"s_add_u32 s{so[0]}, s{so[0]}, {4*ft}")
        a(f"s_lshl_b32 s{so[0]}, s{so[0]}, 15")
        a(f"s_add_u32 s{so[1]}, s{so[0]}, {2*32768}")
        swap_pack_store(a, acc, P, vad, sH, so)
        a("s_nop 1")
    c.stamp(16)
    flag_line(c, st, FL_WO, s_rb)
    a(f"s_lshl_b32 s{t}, s{s_ct}, 2")
    a(f"s_add_u32 s{st}, s{st}, s{t}")
    publish(c, 2, 4, st, t0, t1)
    c.barrier("wS")
    c.stamp(17)
    c.v.reset(vm); c.s.reset(sm)


class Loader:
    pass


def wo_loader_prefetch(c, s_rb, s_ct):
    a = c.a
    s_tok0 = c.s.get("tok0"); s_colb = c.s.get("colb")
    a(f"s_lshl_b32 s{s_tok0}, s{s_rb}, 7")
    a(f"s_lshl_b32 s{s_colb}, s{s_ct}, 7")
    srd(a, SRD_B, PTR[P_WO], D * D * 2)
    g = Gemm(c, 64, 'T8', 10, 4, 10, xsc="sc1")
    g.loader_setup(SRD_A, SRD_B, s_tok0, s_colb, D * 2)
    g.nw_issued = 10
    g.s_tok0, g.s_colb = s_tok0, s_colb
    return g


def wo_loader_main(c, g):
    a = c.a
    ws_srd(a, SRD_A, O_OFF, O_SZ)
    srd(a, SRD_C, PTR[P_X], S * D * 2)
    vq = [c.v.get("vq0"), c.v.get("vq1")]
    t0 = c.v.get("x0"); t1 = c.v.get("x1"); t2 = c.v.get("x2"); st = c.s.get("xs"); lw = c.s.get("xlw")
    a(f"s_sub_u32 s{lw}, s{S_WAVE}, 4")
    g.row_goff(vq, g.s_tok0, lw, g.s_colb, t0, t1, t2, st)
    def residual():
        for q in range(4):
            a(f"s_add_u32 m0, s{g.swx}, {RES_SLOT + q*1024}")
            a(f"s_mov_b32 s{g.soff}, {q*8*D*2}")
            a(f"buffer_load_dwordx4 v{vq[q&1]}, s[{SRD_C}:{SRD_C+3}], s{g.soff} offen lds")
            g.ops.append(('r', -1))
    c.barrier("wP")
    g.loader_main("w", extra=(7, residual, 'end'))
    c.barrier("wS")


def phase_f1_compute(c, s_rb, s_ct):
    a = c.a
    vm, sm = c.v.mark(), c.s.mark()
    s_tok0 = c.s.get("tok0"); s_colb = c.s.get("colb"); s_sig = c.s.get("sig"); t = c.s.get("t")
    a(f"s_lshl_b32 s{s_tok0}, s{s_rb}, 7")
    a(f"s_lshl_b32 s{s_colb}, s{s_ct}, 8")
    sigma_of(c, s_sig, s_rb, s_ct, t)
    sB, sH1, sST = SRD_A, SRD_B, SRD_C
    srd(a, sB, PTR[P_B1], F * 2)
    ws_srd(a, sH1, H1_OFF, H1_SZ); ws_srd(a, sST, ST_OFF, ST_SZ)
    g = Gemm(c, 128, 'T8', 10, 4, 5, stats=True, rotate=True)
    g.compute_setup()
    g.stats_setup(sST, PX_SZ + PW_SZ, 2 * PX_SZ + PW_SZ, s_rb, s_ct, s_sig)
    P = c.v.get("P", 8, 2); BR = c.v.get("br", 16, 2); CSV = g.GX + 4; BV = g.GX + 20
    vR = [c.v.get("vR0", 2, 2), c.v.get("vR1", 2, 2)]; vN = [c.v.get("vN0", 2, 2), c.v.get("vN1", 2, 2)]
    TP = g.GW + 2
    vad = c.v.get("vad"); vb = c.v.get("vb"); vl = c.v.get("vl")
    so = [c.s.get("so0"), c.s.get("so1")]
    t0, t1, t2v, t3 = g.tmp
    st = g.stmp[0]
    s_priv = c.s.get("priv")
    a(f"s_mul_i32 s{s_priv}, s{S_WAVE}, 768")
    for ft in range(2):
        a(f"s_lshl_b32 s{st}, s{g.s_ft[ft]}, 6")
        a(f"s_add_u32 s{st}, s{st}, s{s_colb}")
        a(f"v_lshl_add_u32 v{vb}, v{g.vh}, 3, s{st}")
        for gg in range(4):
            a(f"buffer_load_dwordx2 {vr(BR+8*ft+2*gg,2)}, v{vb}, s[{sB}:{sB+3}], 0 offen offset:{16*gg}")
    wave0_poll(c, FL_WO, s_rb, 10)
    c.stamp(18)
    c.barrier("fP")
    c.stamp(19)
    g.mainloop("f", 'TN', *g.stats_plan())
    c.stamp(20)
    g.stats_check()
    both_halves(a, g.GX + 2, vR[0], vR[1])
    both_halves(a, g.GX, vN[0], vN[1])
    a(f"v_lshl_add_u32 v{vl}, v{c.lane}, 2, s{s_priv}")
    a(f"ds_write_b32 v{vl}, v{g.GW}")
    a(f"v_lshl_add_u32 v{vl}, v{g.vh}, 4, s{s_priv}")
    a("s_waitcnt lgkmcnt(0)")
    for ft in range(2):
        for gg in range(4):
            a(f"ds_read_b128 {vr(CSV+4*gg,4)}, v{vl} offset:{128*ft+32*gg}")
        for k in range(8):
            a(f"v_lshlrev_b32 v{BV+2*k}, 16, v{BR+8*ft+k}")
            a(f"v_and_b32 v{BV+2*k+1}, 0xffff0000, v{BR+8*ft+k}")
        a("s_waitcnt lgkmcnt(0)")
        for tt in range(2):
            acc = g.ACC[tt][ft]
            for i in range(0, 16, 2):
                a(f"v_pk_fma_f32 {vr(TP+i,2)}, {vr(CSV+i,2)}, {vr(vN[tt],2)}, {vr(BV+i,2)} op_sel_hi:[1,0,1]")
            for i in range(0, 16, 2):
                a(f"v_pk_fma_f32 {vr(acc+i,2)}, {vr(acc+i,2)}, {vr(vR[tt],2)}, {vr(TP+i,2)} op_sel_hi:[1,0,1]")
            for i in range(16):
                a(f"v_max_f32 v{acc+i}, 0, v{acc+i}")
            for i in range(0, 16, 2):
                a(f"v_pk_mul_f32 {vr(acc+i,2)}, {vr(acc+i,2)}, {vr(acc+i,2)}")
            a(f"s_lshl_b32 s{st}, s{g.s_tt[tt]}, 5")
            a(f"s_add_u32 s{st}, s{st}, s{s_tok0}")
            a(f"v_add_u32 v{vad}, s{st}, v{g.vt}")
            a(f"v_lshlrev_b32 v{vad}, 4, v{vad}")
            a(f"v_lshl_add_u32 v{vad}, v{g.vh}, 15, v{vad}")
            a(f"s_lshl_b32 s{so[0]}, s{s_ct}, 2")
            a(f"s_add_u32 s{so[0]}, s{so[0]}, s{g.s_ft[ft]}")
            a(f"s_lshl_b32 s{so[0]}, s{so[0]}, 17")
            a(f"s_add_u32 s{so[1]}, s{so[0]}, {2*32768}")
            swap_pack_store(a, acc, P, vad, sH1, so)
            a("s_nop 1")
    c.stamp(21)
    flag_line(c, st, FL_F1, s_rb)
    a(f"s_lshl_b32 s{t}, s{s_ct}, 2")
    a(f"s_add_u32 s{st}, s{st}, s{t}")
    publish(c, 3, 4, st, t0, t1)
    c.barrier("fS")
    c.stamp(22)
    c.v.reset(vm); c.s.reset(sm)


def f1_loader_prefetch(c, s_rb, s_ct, resident=False):
    a = c.a
    s_tok0 = c.s.get("tok0"); s_colb = c.s.get("colb"); s_sig = c.s.get("sig"); t = c.s.get("t")
    a(f"s_lshl_b32 s{s_tok0}, s{s_rb}, 7")
    a(f"s_lshl_b32 s{s_colb}, s{s_ct}, 8")
    sigma_of(c, s_sig, s_rb, s_ct, t)
    srd(a, SRD_B, PTR[P_W1], D * F * 2)
    g = Gemm(c, 128, 'T8', 10, 4, 5, rotate=True, xsc="sc1")
    g.loader_setup(SRD_A, SRD_B, s_tok0, s_colb, F * 2, s_sig)
    if resident:
        g.nw_issued = 5
        for _ in range(5): g._advance(g.swk, g.wstride)
    else:
        g.prefetch_w()
    g.s_rb, g.s_ct = s_rb, s_ct
    return g


def f1_loader_main(c, g):
    ws_srd(c.a, SRD_A, H_OFF, H_SZ)
    ws_srd(c.a, SRD_C, ST_OFF, ST_SZ)
    ex = g.stats_dma(SRD_C, PX_SZ + PW_SZ, 2 * PX_SZ + PW_SZ, g.s_rb, g.s_ct)
    c.barrier("fP")
    g.loader_main("f", extra=ex)
    c.barrier("fS")


def phase_f2_compute(c, s_rb, s_ct):
    a = c.a
    vm, sm = c.v.mark(), c.s.mark()
    s_tok0 = c.s.get("tok0"); s_colb = c.s.get("colb")
    a(f"s_lshl_b32 s{s_tok0}, s{s_rb}, 7")
    a(f"s_lshl_b32 s{s_colb}, s{s_ct}, 7")
    sB, sH, sOut = SRD_A, SRD_B, SRD_C
    srd(a, sB, PTR[P_B2], D * 2)
    ws_srd(a, sH, H_OFF, H_SZ)
    srd(a, sOut, PTR[P_OUT], S * D * 2)
    g = Gemm(c, 64, 'T8', 27, 4, 10)
    OUTB = XBASE
    g.compute_setup()
    st, st2 = g.stmp
    t0, t1, t2 = g.tmp[0], g.tmp[1], g.tmp[2]
    R = c.v.get("R", 16, 2); B = c.v.get("B", 16, 2); P = c.v.get("P", 16, 2); vad = c.v.get("vad"); vb = c.v.get("vb")
    a(f"s_lshl_b32 s{st}, s{c.swave}, 5")
    a(f"s_add_u32 s{st}, s{st}, s{s_tok0}")
    a(f"v_add_u32 v{vad}, s{st}, v{g.vt}")
    a(f"v_lshlrev_b32 v{vad}, 4, v{vad}")
    a(f"v_lshl_add_u32 v{vad}, v{g.vh}, 3, v{vad}")
    a(f"v_lshl_add_u32 v{vb}, v{g.vh}, 3, s{s_colb}")
    for k in range(8):
        a(f"s_lshl_b32 s{st}, s{s_ct}, 3")
        a(f"s_add_u32 s{st}, s{st}, {k}")
        a(f"s_lshl_b32 s{st}, s{st}, 15")
        a(f"buffer_load_dwordx2 {vr(R+2*k,2)}, v{vad}, s[{sH}:{sH+3}], s{st} offen sc1")
        a(f"buffer_load_dwordx2 {vr(B+2*k,2)}, v{vb}, s[{sB}:{sB+3}], 0 offen offset:{16*k}")
    ra = c.v.get("ra", 8)
    row_tile_addr(c, g, OUTB, ra)
    vq = [c.v.get("vq0"), c.v.get("vq1")]
    g.row_goff(vq, s_tok0, c.swave, s_colb, t0, t1, t2, st)
    vl = c.v.get("vl")
    a(f"s_lshl_b32 s{st}, s{c.swave}, 12")
    a(f"s_add_u32 s{st}, s{st}, {OUTB}")
    a(f"v_lshl_add_u32 v{vl}, v{c.lane}, 4, s{st}")
    wave0_poll(c, FL_F1, s_rb, 14)
    c.stamp(23)
    c.barrier("gP")
    c.stamp(24)
    g.mainloop("g", 'TN')
    c.stamp(25)
    a("s_waitcnt vmcnt(0)")
    a("s_nop 11")
    for ft in range(2):
        acc = g.ACC[0][ft]
        for gg in range(4):
            k = 4 * ft + gg
            for d in range(2):
                i = 4 * gg + 2 * d
                a(f"v_lshlrev_b32 v{t0}, 16, v{R+2*k+d}")
                a(f"v_and_b32 v{t1}, 0xffff0000, v{R+2*k+d}")
                a(f"v_add_f32 v{acc+i}, v{acc+i}, v{t0}")
                a(f"v_add_f32 v{acc+i+1}, v{acc+i+1}, v{t1}")
                a(f"v_lshlrev_b32 v{t0}, 16, v{B+2*k+d}")
                a(f"v_and_b32 v{t1}, 0xffff0000, v{B+2*k+d}")
                a(f"v_add_f32 v{acc+i}, v{acc+i}, v{t0}")
                a(f"v_add_f32 v{acc+i+1}, v{acc+i+1}, v{t1}")
                a(f"v_cvt_pk_bf16_f32 v{P+2*k+d}, v{acc+i}, v{acc+i+1}")
            a(f"ds_write_b64 v{ra+k}, {vr(P+2*k,2)}")
    a("s_waitcnt lgkmcnt(0)")
    for q in range(4):
        a(f"ds_read_b128 {vr(R+4*q,4)}, v{vl} offset:{q*1024}")
    for q in range(4):
        a(f"s_waitcnt lgkmcnt({3-q})")
        a(f"s_mov_b32 s{st2}, {q*8*D*2}")
        a(f"buffer_store_dwordx4 {vr(R+4*q,4)}, v{vq[q&1]}, s[{sOut}:{sOut+3}], s{st2} offen")
    c.stamp(26)
    c.v.reset(vm); c.s.reset(sm)


def f2_loader_prefetch(c, s_rb, s_ct):
    a = c.a
    s_tok0 = c.s.get("tok0"); s_colb = c.s.get("colb")
    a(f"s_lshl_b32 s{s_tok0}, s{s_rb}, 7")
    a(f"s_lshl_b32 s{s_colb}, s{s_ct}, 7")
    srd(a, SRD_B, PTR[P_W2], F * D * 2)
    g = Gemm(c, 64, 'T8', 27, 4, 10, xsc="sc1")
    g.loader_setup(SRD_A, SRD_B, s_tok0, s_colb, D * 2)
    g.prefetch_w()
    return g


def f2_loader_main(c, g):
    ws_srd(c.a, SRD_A, H1_OFF, H1_SZ)
    c.barrier("gP")
    g.loader_main("g")


def prof_store(c, role):
    if not PROF: return
    a = c.a
    lab = a.newlabel("prof_skip")
    a(f"s_cmp_lg_u32 s{S_WAVE}, {4*role}")
    a(f"s_cbranch_scc1 {lab}")
    ws_srd(a, SRD_A, PROF_OFF, 1 << 20)
    a(f"s_lshl_b32 s96, s2, 9")
    a(f"s_add_u32 s96, s96, {256*role}")
    a(f"v_lshl_add_u32 v4, v{V_LANE}, 2, s96")
    a(f"buffer_store_dword v{V_PROF}, v4, s[{SRD_A}:{SRD_A+3}], 0 offen")
    a.label(lab)


def gen_kernel(a, name):
    c = Ctx(a)
    kernel_begin(a, name)
    done = f"{name}_done"
    a("s_cmp_ge_u32 s2, 256")
    a(f"s_cbranch_scc1 {done}")
    a("s_load_dwordx16 s[4:19], s[0:1], 0")
    a("s_load_dwordx2 s[20:21], s[0:1], 64")
    a("s_load_dwordx2 s[22:23], s[0:1], 80")
    if PROF: a(f"v_mov_b32 v{V_PROF}, 0")
    a(f"v_lshrrev_b32 v{V_LANE}, 6, v0")
    a(f"s_and_b32 s{S_XCD}, s2, 7")
    a(f"v_readfirstlane_b32 s{S_WAVE}, v{V_LANE}")
    a(f"s_lshr_b32 s{S_J}, s2, 3")
    a(f"v_and_b32 v{V_LANE}, 63, v0")
    a("s_waitcnt lgkmcnt(0)")
    c.stamp(0)
    if PROF:
        a("s_memrealtime s[100:101]")
        a("s_waitcnt lgkmcnt(0)")
        a(f"v_writelane_b32 v{V_PROF}, s100, 61")
    ws_srd(a, SRD_F, FL_OFF, FL_SZ)
    a(f"v_mov_b32 v{V_GEN}, {FL_GEN*256}")
    a(f"buffer_load_dword v{V_GEN}, v{V_GEN}, s[{SRD_F}:{SRD_F+3}], 0 offen sc1")
    if "cpf" in TOG:
        lp = a.newlabel("code_here")
        sp = c.s.get("pcb", 2, 2)
        m = c.v.mark()
        vo = c.v.get("cpo"); vd_ = c.v.get("cpd")
        skip = a.newlabel("cpf_skip")
        a(f"s_cmp_lg_u32 s{S_WAVE}, 3")
        a(f"s_cbranch_scc1 {skip}")
        a(f"s_getpc_b64 s[{sp}:{sp+1}]")
        a.label(lp)
        a(f"v_lshlrev_b32 v{vo}, 7, v{V_LANE}")
        for k in range(9):
            a(f"v_cmp_gt_u32 vcc, {name}_code_end-{lp}, v{vo}")
            a(f"s_and_saveexec_b64 s[{SRD_A}:{SRD_A+1}], vcc")
            lk = a.newlabel("cpf_k")
            a(f"s_cbranch_execz {lk}")
            a(f"global_load_dword v{vd_}, v{vo}, s[{sp}:{sp+1}]")
            a.label(lk)
            a(f"s_mov_b64 exec, -1")
            a(f"v_add_u32 v{vo}, 8192, v{vo}")
        a.label(skip)
        c.v.reset(m)
    rbq = c.s.get("rbq"); ctq = c.s.get("ctq"); rbw = c.s.get("rbw"); ctw = c.s.get("ctw"); ctf = c.s.get("ctf"); t = c.s.get("gt")
    map_gemm(c, 8, rbq, ctq, t)
    map_gemm(c, 5, rbw, ctw, t)
    map_gemm(c, 7, rbw, ctf, t)
    jj = c.s.get("jj")
    a(f"s_lshr_b32 s{jj}, s{S_J}, 2")
    lz = a.newlabel("nocnt")
    a(f"s_cmp_lg_u32 s{S_WAVE}, 0")
    a(f"s_cbranch_scc1 {lz}")
    a(f"v_lshlrev_b32 v4, 2, v{V_LANE}")
    a(f"v_add_u32 v4, {CNT_OFF}, v4")
    a("v_mov_b32 v5, 0")
    a("s_mov_b64 exec, 0xff")
    a("ds_write_b32 v4, v5")
    a("s_mov_b64 exec, -1")
    a("s_waitcnt lgkmcnt(0)")
    a.label(lz)
    lload = f"{name}_loader"; latt = f"{name}_att"; lrest = f"{name}_lrest"
    a(f"s_cmp_ge_u32 s{S_WAVE}, 4")
    a(f"s_cbranch_scc1 {lload}")
    c.bar = []
    a(f"s_cmp_ge_u32 s{ctq}, 15")
    a(f"s_cbranch_scc1 {latt}")
    phase_qkv_compute(c, rbq, ctq)
    a(f"s_branch {latt}")
    bq = list(c.bar)
    a.label(lload)
    c.bar = []
    a(f"s_cmp_ge_u32 s{ctq}, 15")
    a(f"s_cbranch_scc1 {latt}")
    phase_qkv_loader(c, rbq, ctq)
    assert c.bar == bq, (c.bar, bq)
    a.label(latt)
    if "wpf" in TOG:
        lw_ = a.newlabel("wpf_skip")
        a(f"s_cmp_lt_u32 s{ctq}, 15")
        a(f"s_cbranch_scc1 {lw_}")
        m = c.v.mark(); ms = c.s.mark()
        vo = c.v.get("wpo"); vd_ = c.v.get("wpd"); sw = c.s.get("wps")
        a(f"s_lshl_b32 s{sw}, s{rbq}, 3")
        a(f"s_add_u32 s{sw}, s{sw}, s{S_WAVE}")
        a(f"s_lshl_b32 s{sw}, s{sw}, 13")
        a(f"v_lshlrev_b32 v{vo}, 7, v{V_LANE}")
        a(f"v_add_u32 v{vo}, s{sw}, v{vo}")
        for ptr, size in ((P_W1, D*F*2), (P_WO, D*D*2), (P_W2, F*D*2)):
            srd(a, SRD_A, PTR[ptr], size)
            for k in range((size + (1 << 20) - 1) >> 20):
                a(f"s_mov_b32 s{sw}, {k << 20}")
                a(f"buffer_load_dword v{vd_}, v{vo}, s[{SRD_A}:{SRD_A+3}], s{sw} offen")
        a.label(lw_)
        c.v.reset(m); c.s.reset(ms)
    phase_att(c, jj, rbw, ctw, ctf)
    a(f"s_cmp_ge_u32 s{S_WAVE}, 4")
    a(f"s_cbranch_scc1 {lrest}")
    c.bar = []
    l2 = a.newlabel("c_nowo"); l3 = a.newlabel("c_end")
    a(f"s_cmp_ge_u32 s{jj}, 5")
    a(f"s_cbranch_scc1 {l2}")
    phase_wo_compute(c, rbw, ctw)
    a.label(l2)
    a(f"s_cmp_ge_u32 s{jj}, 7")
    a(f"s_cbranch_scc1 {l3}")
    phase_f1_compute(c, rbw, ctf)
    a(f"s_cmp_ge_u32 s{jj}, 5")
    a(f"s_cbranch_scc1 {l3}")
    phase_f2_compute(c, rbw, ctw)
    a.label(l3)
    c.stamp(63)
    prof_store(c, 0)
    a("s_endpgm")
    bar_compute = list(c.bar)
    a.label(lrest)
    c.bar = []
    lB = a.newlabel("l_classB"); lend = a.newlabel("l_end")
    a(f"s_cmp_ge_u32 s{jj}, 7")
    a(f"s_cbranch_scc1 {lend}")
    a(f"s_cmp_ge_u32 s{jj}, 5")
    a(f"s_cbranch_scc1 {lB}")
    vm, sm = c.v.mark(), c.s.mark()
    g = wo_loader_prefetch(c, rbw, ctw)
    wo_loader_main(c, g)
    c.stamp(15)
    c.v.reset(vm); c.s.reset(sm)
    g = f1_loader_prefetch(c, rbw, ctf)
    c.stamp(16)
    f1_loader_main(c, g)
    c.stamp(20)
    c.v.reset(vm); c.s.reset(sm)
    g = f2_loader_prefetch(c, rbw, ctw)
    c.stamp(21)
    f2_loader_main(c, g)
    c.stamp(25)
    c.v.reset(vm); c.s.reset(sm)
    assert c.bar == bar_compute, (c.bar, bar_compute)
    lg = a.newlabel("nogen")
    a("s_cmp_lg_u32 s2, 0")
    a(f"s_cbranch_scc1 {lg}")
    a(f"s_cmp_lg_u32 s{S_WAVE}, 4")
    a(f"s_cbranch_scc1 {lg}")
    va = c.v.get("ga"); vb = c.v.get("gb"); smk = c.s.get("gm", 2, 2); scn = c.s.get("gc", 4, 2)
    a(f"s_mov_b64 s[{smk}:{smk+1}], -1")
    for r in range(4):
        a(f"v_lshrrev_b32 v{va}, 4, v{V_LANE}")
        a(f"v_add_u32 v{va}, {FL_ATT + 4*r}, v{va}")
        a(f"v_lshlrev_b32 v{va}, 8, v{va}")
        a(f"v_and_b32 v{vb}, 15, v{V_LANE}")
        a(f"v_lshl_add_u32 v{va}, v{vb}, 2, v{va}")
        poll(c, va, smk, vb, scn)
    a(f"v_add_u32 v{vb}, 1, v{V_GEN}")
    a(f"v_mov_b32 v{va}, {FL_GEN*256}")
    a("s_mov_b64 exec, 1")
    a(f"buffer_store_dword v{vb}, v{va}, s[{SRD_F}:{SRD_F+3}], 0 offen sc1")
    a("s_mov_b64 exec, -1")
    a.label(lg)
    c.v.reset(vm); c.s.reset(sm)
    a(f"s_branch {lend}")
    a.label(lB)
    c.bar = []
    g = f1_loader_prefetch(c, rbw, ctf, resident=True)
    f1_loader_main(c, g)
    assert c.bar == [b for b in bar_compute if b.startswith("f")], c.bar
    c.v.reset(vm); c.s.reset(sm)
    a.label(lend)
    c.stamp(63)
    prof_store(c, 1)
    a.label(done)
    a("s_endpgm")
    a.label(f"{name}_code_end")
    return dict(name=name, grid=256, block=512, lds=LDS_TOTAL, vgpr=c.v.high, sgpr=c.s.high)


def build(path):
    a = Asm(); body = Asm()
    name = KNAME + "_kernel"
    info = gen_kernel(body, name)
    hdr = open("cdna_kernels/" + KNAME + ".s.ref").read().split("; Override launch")[0]
    a.raw(hdr.rstrip())
    a.raw(f"; @launch grid=({info['grid']},1,1) block=({info['block']},1,1) lds={info['lds']}")
    a.raw('.amdgcn_target "amdgcn-amd-amdhsa--gfx950"')
    a.lines += body.lines
    vg = (info['vgpr'] + 7) // 8 * 8
    kernel_desc(a, name, vgpr=vg, sgpr=102)
    open(path, "w").write(a.text())
    return info


if __name__ == "__main__":
    if "prof" in sys.argv: PROF = True
    for x in sys.argv:
        if x.startswith("tag="): PROFTAG = x[4:]
        if x == "rt": REALTIME = True
        if x.startswith("tog="): TOG.update(x[4:].split(","))
    print(build(sys.argv[1] if len(sys.argv) > 1 else "k2.s"))
```

```python
import sys, struct, math
from lib2 import *

KNAME = "sequential_preLN__sliding_block__dense_activation_squared_relu__prompt"
S, D, NQKV, F = 2048, 640, 1920, 1728
QK_OFF = 0;                 QK_SZ = 160 * 32768
VT_OFF = QK_OFF + QK_SZ;    VT_SZ = 256 * 10240
O_OFF = VT_OFF + VT_SZ;     O_SZ = 80 * 32768
H_OFF = O_OFF + O_SZ;       H_SZ = 80 * 32768
H1_OFF = H_OFF + H_SZ;      H1_SZ = 216 * 32768
PX_SZ = 16 * 10 * 128 * 16
PW_SZ = 16 * 10 * 128 * 8
ST_OFF = H1_OFF + H1_SZ
ST_SZ = 2 * (PX_SZ + PW_SZ)
FL_OFF = ST_OFF + ST_SZ
FL_QKV, FL_ATT, FL_WO, FL_F1, FL_SA1, FL_SB1, FL_SA2, FL_SB2, FL_GEN = 0, 16, 32, 48, 64, 80, 96, 112, 128
FL_SZ = 129 * 256
PROF_OFF = 32 << 20
ONES = 0x3F803F80
XBASE = 4096
WBASE = 75776
LDS_TOTAL = WBASE + 81920
CNT_OFF = 3072 + 768
SPIN_MAX = 400000

PROF = False
PROFTAG = 'q'
REALTIME = False
TOG = set()
P_X, P_WQKV, P_WO, P_BX, P_W1, P_B1, P_W2, P_B2, P_OUT, P_DBG, P_WS = range(11)
PTR = {P_X: 4, P_WQKV: 6, P_WO: 8, P_W1: 12, P_B1: 14, P_W2: 16, P_B2: 18, P_OUT: 20, P_WS: 22}
S_WAVE, S_XCD, S_J = 24, 25, 26
SRD_A, SRD_B, SRD_C, SRD_D, SRD_E, SRD_F = 28, 32, 36, 40, 44, 48
V_LANE, V_GEN, V_PROF = 1, 2, 3
V_SINK = 255


def fbits(x):
    return struct.unpack("<I", struct.pack("<f", x))[0]


class Ctx:
    def __init__(self, a):
        self.a = a
        self.v = Alloc('v', 4, 255)
        self.s = Alloc('s', 52, 100)
        self.lane = V_LANE
        self.swave = S_WAVE
        self.bar = []
        self.nstamp = 0

    def barrier(self, tag):
        self.bar.append(tag)
        self.a("s_barrier")

    def stamp(self, idx):
        if not PROF: return
        a = self.a
        a("s_waitcnt lgkmcnt(0)")
        a("s_memrealtime s[100:101]" if REALTIME else "s_memtime s[100:101]")
        a("s_waitcnt lgkmcnt(0)")
        a(f"v_writelane_b32 v{V_PROF}, s100, {idx}")


def flag_line(c, sdst, line_base, s_idx):
    c.a(f"s_add_u32 s{sdst}, s{s_idx}, {line_base}")
    c.a(f"s_lshl_b32 s{sdst}, s{sdst}, 8")


def poll(c, vaddr, smask, vtmp, scnt, nloads=1, vaddr2=None, vtmp2=None):
    a = c.a
    lp = a.newlabel("poll"); ld = a.newlabel("polled")
    a("s_waitcnt vmcnt(0)")
    a(f"s_mov_b32 s{scnt}, {SPIN_MAX}")
    a(f"s_mov_b64 exec, s[{smask}:{smask+1}]")
    a.label(lp)
    a(f"buffer_load_dword v{vtmp}, v{vaddr}, s[{SRD_F}:{SRD_F+3}], 0 offen sc1")
    if vaddr2 is not None:
        a(f"buffer_load_dword v{vtmp2}, v{vaddr2}, s[{SRD_F}:{SRD_F+3}], 0 offen sc1")
    a("s_waitcnt vmcnt(0)")
    a(f"v_subrev_u32 v{vtmp}, v{V_GEN}, v{vtmp}")
    if vaddr2 is not None:
        a(f"v_subrev_u32 v{vtmp2}, v{V_GEN}, v{vtmp2}")
        a(f"v_cmp_ne_u32 vcc, 1, v{vtmp2}")
        a(f"s_mov_b64 s[{scnt+2}:{scnt+3}], vcc")
    a(f"v_cmp_ne_u32 vcc, 1, v{vtmp}")
    if vaddr2 is not None:
        a(f"s_or_b64 vcc, vcc, s[{scnt+2}:{scnt+3}]")
    a("s_cmp_eq_u64 vcc, 0")
    a(f"s_cbranch_scc1 {ld}")
    a(f"s_sub_u32 s{scnt}, s{scnt}, 1")
    a(f"s_cmp_eq_u32 s{scnt}, 0")
    a(f"s_cbranch_scc1 {ld}")
    a("s_sleep 1")
    a(f"s_branch {lp}")
    a.label(ld)
    a("s_mov_b64 exec, -1")


def publish(c, cnt_idx, narrive, s_flagoff, v0, v1):
    a = c.a
    ls = a.newlabel("nopub")
    a("s_waitcnt vmcnt(0)")
    a(f"v_mov_b32 v{v0}, {CNT_OFF + 4*cnt_idx}")
    a(f"v_mov_b32 v{v1}, 1")
    a("s_mov_b64 exec, 1")
    a(f"ds_add_rtn_u32 v{v1}, v{v0}, v{v1}")
    a("s_waitcnt lgkmcnt(0)")
    a(f"v_cmp_eq_u32 vcc, {narrive-1}, v{v1}")
    a("s_cmp_eq_u64 vcc, 0")
    a(f"s_cbranch_scc1 {ls}")
    a(f"v_add_u32 v{v1}, 1, v{V_GEN}")
    a(f"v_mov_b32 v{v0}, s{s_flagoff}")
    a(f"buffer_store_dword v{v1}, v{v0}, s[{SRD_F}:{SRD_F+3}], 0 offen sc1")
    a.label(ls)
    a("s_mov_b64 exec, -1")


class Gemm:
    def __init__(self, c, BN, xmode, nst, NX, NW, stats=False, rotate=False, xsc="", LA=None):
        self.LA = LA if LA is not None else (1 if BN == 128 else 2)
        self.c, self.BN, self.xmode, self.nst, self.NX, self.NW = c, BN, xmode, nst, NX, NW
        self.stats, self.rotate, self.xsc = stats, rotate, xsc
        self.WSLOT = 64 * BN * 2
        self.wper = 65536 // self.WSLOT
        self.nwb = (NW + self.wper - 1) // self.wper
        self.NT_T = 2 if BN == 128 else 1
        self.ops = []

    def loader_setup(self, srdX, srdW, s_tok0, s_col0b, wpitch, s_sigma=None, w_only=False):
        c, a = self.c, self.c.a
        self.srdX, self.srdW, self.wpitch = srdX, srdW, wpitch
        lane = c.lane
        lw = c.s.get("lw")
        a(f"s_sub_u32 s{lw}, s{c.swave}, 4")
        t0 = c.v.get("lt0"); t1 = c.v.get("lt1"); t2 = c.v.get("lt2")
        stmp = c.s.get("ltmp")
        self.soff = c.s.get("soff")
        vw = self.vw = c.v.get("lvw")
        if self.BN == 128:
            a(f"v_lshrrev_b32 v{t0}, 4, v{lane}")
            a(f"v_and_b32 v{t1}, 15, v{lane}")
            a(f"v_lshlrev_b32 v{t2}, 2, v{t0}")
            a(f"v_xor_b32 v{t1}, v{t1}, v{t2}")
        else:
            a(f"v_lshrrev_b32 v{t0}, 3, v{lane}")
            a(f"v_and_b32 v{t1}, 7, v{lane}")
            a(f"v_bfe_u32 v{t2}, v{lane}, 4, 1")
            a(f"v_lshlrev_b32 v{t2}, 2, v{t2}")
            a(f"v_xor_b32 v{t1}, v{t1}, v{t2}")
        a(f"s_lshl_b32 s{stmp}, s{lw}, 4")
        a(f"v_add_u32 v{t0}, s{stmp}, v{t0}")
        a(f"v_mul_u32_u24 v{t0}, {wpitch}, v{t0}")
        a(f"v_lshl_add_u32 v{t0}, v{t1}, 4, v{t0}")
        a(f"v_add_u32 v{vw}, s{s_col0b}, v{t0}")
        self.sww = c.s.get("sww")
        a(f"s_lshl_b32 s{self.sww}, s{lw}, {12 if self.BN == 128 else 11}")
        self.swx = c.s.get("swx")
        a(f"s_lshl_b32 s{self.swx}, s{lw}, 12")
        if self.xmode == 'T8':
            vx = self.vx = [c.v.get("lvx")]
            a(f"v_add_u32 v{t0}, s{s_tok0}, v{lane}")
            a(f"v_lshlrev_b32 v{t0}, 4, v{t0}")
            a(f"s_lshl_b32 s{stmp}, s{lw}, 16")
            a(f"v_add_u32 v{vx[0]}, s{stmp}, v{t0}")
        else:
            vx = self.vx = [c.v.get("lvx0"), c.v.get("lvx1")]
            self.row_goff(vx, s_tok0, lw, None, t0, t1, t2, stmp)
        self.xstride = 8 * 32768 if self.xmode == 'T8' else 128
        self.wstride = 64 * wpitch
        if self.rotate:
            self.sxk = c.s.get("sxk"); self.swk = c.s.get("swk")
            a(f"s_mul_i32 s{self.sxk}, s{s_sigma}, {self.xstride}")
            a(f"s_mul_i32 s{self.swk}, s{s_sigma}, {self.wstride}")

    def row_goff(self, vq, s_tok0, s_w, s_colb, t0, t1, t2, stmp):
        c, a = self.c, self.c.a
        lane = c.lane
        a(f"v_lshrrev_b32 v{t0}, 3, v{lane}")
        a(f"s_lshl_b32 s{stmp}, s{s_w}, 5")
        a(f"s_add_u32 s{stmp}, s{stmp}, s{s_tok0}")
        a(f"v_add_u32 v{t0}, s{stmp}, v{t0}")
        a(f"v_mul_u32_u24 v{t0}, {D*2}, v{t0}")
        if s_colb is not None:
            a(f"v_add_u32 v{t0}, s{s_colb}, v{t0}")
        a(f"v_and_b32 v{t1}, 7, v{lane}")
        a(f"v_lshrrev_b32 v{t2}, 4, v{lane}")
        a(f"v_xor_b32 v{t1}, v{t1}, v{t2}")
        a(f"v_lshl_add_u32 v{vq[0]}, v{t1}, 4, v{t0}")
        a(f"v_xor_b32 v{t1}, 4, v{t1}")
        a(f"v_lshl_add_u32 v{vq[1]}, v{t1}, 4, v{t0}")

    def _advance(self, sreg, stride):
        a = self.c.a
        a(f"s_add_u32 s{sreg}, s{sreg}, {stride}")
        a(f"s_cmp_ge_u32 s{sreg}, {stride * self.nst}")
        a(f"s_cselect_b32 s{self.soff}, {stride * self.nst}, 0")
        a(f"s_sub_u32 s{sreg}, s{sreg}, s{self.soff}")

    def issue_x(self, st):
        a = self.c.a
        sb = XBASE + (st % self.NX) * 16384
        for j in range(4):
            a(f"s_add_u32 m0, s{self.swx}, {sb + j*1024}")
            off = ((j >> 1) * 32768 + (j & 1) * 1024) if self.xmode == 'T8' else j * 8 * D * 2
            if self.rotate:
                a(f"s_add_u32 s{self.soff}, s{self.sxk}, {off}")
            else:
                a(f"s_mov_b32 s{self.soff}, {st * self.xstride + off}")
            vx = self.vx[0] if self.xmode == 'T8' else self.vx[j & 1]
            a(f"buffer_load_dwordx4 v{vx}, s[{self.srdX}:{self.srdX+3}], s{self.soff} offen {self.xsc} lds")
            self.ops.append(('x', st))
        if self.rotate: self._advance(self.sxk, self.xstride)

    def issue_w(self, st):
        a = self.c.a
        sb = WBASE + (st % self.NW) * self.WSLOT
        nw, rows = (4, 4) if self.BN == 128 else (2, 8)
        for j in range(nw):
            a(f"s_add_u32 m0, s{self.sww}, {sb + j*1024}")
            off = j * rows * self.wpitch
            if self.rotate:
                a(f"s_add_u32 s{self.soff}, s{self.swk}, {off}")
            else:
                a(f"s_mov_b32 s{self.soff}, {st * self.wstride + off}")
            a(f"buffer_load_dwordx4 v{self.vw}, s[{self.srdW}:{self.srdW+3}], s{self.soff} offen lds")
            self.ops.append(('w', st))
        if self.rotate: self._advance(self.swk, self.wstride)

    def wait_stage(self, st):
        idx = [i for i, o in enumerate(self.ops) if o[1] == st and o[0] in 'xw']
        last = max(idx)
        n = len(self.ops) - 1 - last
        self.c.a(f"s_waitcnt vmcnt({min(n, 63)})")

    def prefetch_w(self):
        for st in range(min(self.NW, self.nst)):
            self.issue_w(st)
        self.nw_issued = min(self.NW, self.nst)

    def loader_main(self, tag, both_at_start=False, extra=None):
        c = self.c
        nst, NX, NW = self.nst, self.NX, self.NW
        if both_at_start:
            for st in range(2):
                self.issue_w(st); self.issue_x(st)
            nxi, nwi = 2, 2
        else:
            nwi = self.nw_issued
            for st in range(2):
                self.issue_x(st)
            nxi = 2
        for st in range(nst):
            if extra is not None and extra[2] == st:
                c.a("s_waitcnt vmcnt(0)")
            else:
                self.wait_stage(st)
            c.barrier(f"{tag}B{st}")
            if PROF and tag == PROFTAG and st < 12: c.stamp(41 + st)
            while nxi < nst and nxi - NX < st:
                if nwi < nst and nwi <= nxi and nwi - NW < st:
                    self.issue_w(nwi); nwi += 1
                self.issue_x(nxi); nxi += 1
            while nwi < nst and nwi - NW < st:
                self.issue_w(nwi); nwi += 1
            if extra is not None and extra[0] == st:
                assert nxi == nst and nwi == nst
                extra[1]()
        if extra is not None and extra[2] == 'end':
            c.a("s_waitcnt vmcnt(0)")
        c.barrier(f"{tag}Bend")

    def stats_lds(self):
        return XBASE + (6 % self.NX) * 16384, WBASE + (6 % self.NW) * self.WSLOT

    def stats_dma(self, srdS, px_off, pw_off, s_rb, s_ct):
        c, a = self.c, self.c.a
        XS, WS = self.stats_lds()
        v = c.v.get("sdv"); sp = c.s.get("sdp"); sq = c.s.get("sdq"); lw = c.s.get("sdw")
        a(f"s_sub_u32 s{lw}, s{c.swave}, 4")
        a(f"s_lshl_b32 s{lw}, s{lw}, 10")
        a(f"v_lshl_add_u32 v{v}, v{c.lane}, 4, s{lw}")
        a(f"s_mul_i32 s{sp}, s{s_rb}, {10*128*16}")
        a(f"s_add_u32 s{sp}, s{sp}, {px_off}")
        a(f"s_mul_i32 s{sq}, s{s_ct}, {10*128*8}")
        a(f"s_add_u32 s{sq}, s{sq}, {pw_off}")
        def fn():
            for i in range(5):
                dst = XS + 4096 * i if i < 4 else WS
                a(f"s_add_u32 m0, s{lw}, {dst}")
                a(f"s_add_u32 s{self.soff}, s{sp}, {4096*i}")
                a(f"buffer_load_dwordx4 v{v}, s[{srdS}:{srdS+3}], s{self.soff} offen sc1 lds")
            lab = a.newlabel("sd_skip")
            for i in range(3):
                if i == 2:
                    a(f"s_cmp_ge_u32 s{lw}, 2048")
                    a(f"s_cbranch_scc1 {lab}")
                a(f"s_add_u32 m0, s{lw}, {WS + 4096 + 4096*i}")
                a(f"s_add_u32 s{self.soff}, s{sq}, {4096*i}")
                a(f"buffer_load_dwordx4 v{v}, s[{srdS}:{srdS+3}], s{self.soff} offen sc1 lds")
            a.label(lab)
        return (7, fn, 9)

    def compute_setup(self):
        c, a = self.c, self.c.a
        lane = c.lane
        BN = self.BN
        t0 = c.v.get("ct0"); t1 = c.v.get("ct1"); t2 = c.v.get("ct2"); t3 = c.v.get("ct3")
        self.tmp = [t0, t1, t2, t3]
        self.vt = c.v.get("vt"); self.vh = c.v.get("vh")
        a(f"v_and_b32 v{self.vt}, 31, v{lane}")
        a(f"v_lshrrev_b32 v{self.vh}, 5, v{lane}")
        self.s_tt = [c.s.get(f"s_tt{i}") for i in range(self.NT_T)]
        self.s_ft = [c.s.get(f"s_ft{i}") for i in range(2)]
        st = c.s.get("cs_tmp"); st2 = c.s.get("cs_tmp2")
        self.stmp = [st, st2]
        w = c.swave
        if BN == 128:
            a(f"s_lshr_b32 s{st}, s{w}, 1")
            a(f"s_and_b32 s{st2}, s{w}, 1")
            a(f"s_lshl_b32 s{self.s_tt[0]}, s{st}, 1")
            a(f"s_add_u32 s{self.s_tt[0]}, s{self.s_tt[0]}, s{st2}")
            a(f"s_xor_b32 s{self.s_tt[1]}, s{self.s_tt[0]}, 1")
            a(f"s_lshl_b32 s{self.s_ft[0]}, s{st2}, 1")
            a(f"s_add_u32 s{self.s_ft[0]}, s{self.s_ft[0]}, s{st}")
            a(f"s_xor_b32 s{self.s_ft[1]}, s{self.s_ft[0]}, 1")
        else:
            a(f"s_mov_b32 s{self.s_tt[0]}, s{w}")
            a(f"s_mov_b32 s{self.s_ft[0]}, 0")
            a(f"s_mov_b32 s{self.s_ft[1]}, 1")
        self.ax = {}
        for tt in range(self.NT_T):
            if self.xmode == 'T8':
                r = c.v.get(f"ax{tt}")
                a(f"s_lshl_b32 s{st}, s{self.s_tt[tt]}, 9")
                a(f"s_add_u32 s{st}, s{st}, {XBASE}")
                a(f"v_lshlrev_b32 v{t0}, 4, v{self.vt}")
                a(f"v_lshl_add_u32 v{t0}, v{self.vh}, 11, v{t0}")
                a(f"v_add_u32 v{r}, s{st}, v{t0}")
                for s in range(4):
                    self.ax[(tt, s)] = (r, s * 4096)
            else:
                for s in range(4):
                    r = c.v.get(f"ax{tt}_{s}")
                    a(f"s_lshl_b32 s{st}, s{self.s_tt[tt]}, 12")
                    a(f"s_add_u32 s{st}, s{st}, {XBASE}")
                    a(f"v_bfe_u32 v{t0}, v{self.vt}, 1, 3")
                    a(f"v_add_u32 v{t1}, {2*s}, v{self.vh}")
                    a(f"v_xor_b32 v{t0}, v{t0}, v{t1}")
                    a(f"v_lshlrev_b32 v{t0}, 4, v{t0}")
                    a(f"v_lshl_add_u32 v{t0}, v{self.vt}, 7, v{t0}")
                    a(f"v_add_u32 v{r}, s{st}, v{t0}")
                    self.ax[(tt, s)] = (r, 0)
        self.aw = {}
        rowb = BN * 2
        for ft in range(2):
            r = [c.v.get(f"aw{ft}_{b}") for b in range(self.nwb)]
            a(f"v_bfe_u32 v{t0}, v{lane}, 2, 2")
            if BN == 128:
                a(f"v_xor_b32 v{t1}, s{self.s_ft[ft]}, v{t0}")
            else:
                a(f"v_lshrrev_b32 v{t1}, 1, v{t0}")
                a(f"v_xor_b32 v{t1}, s{self.s_ft[ft]}, v{t1}")
            a(f"v_lshlrev_b32 v{t1}, 2, v{t1}")
            a(f"v_bfe_u32 v{t2}, v{lane}, 4, 1")
            a(f"v_lshl_add_u32 v{t1}, v{t2}, 1, v{t1}")
            a(f"v_bfe_u32 v{t2}, v{lane}, 1, 1")
            a(f"v_add_u32 v{t1}, v{t1}, v{t2}")
            a(f"v_lshlrev_b32 v{t1}, 4, v{t1}")
            a(f"v_and_b32 v{t2}, 1, v{lane}")
            a(f"v_lshl_add_u32 v{t1}, v{t2}, 3, v{t1}")
            a(f"v_lshl_add_u32 v{t0}, v{self.vh}, 3, v{t0}")
            a(f"v_mul_u32_u24 v{t0}, {rowb}, v{t0}")
            a(f"v_add_u32 v{t0}, v{t0}, v{t1}")
            a(f"v_add_u32 v{r[0]}, {WBASE}, v{t0}")
            for b in range(1, self.nwb):
                a(f"v_add_u32 v{r[b]}, {b*self.wper*self.WSLOT}, v{r[0]}")
            self.aw[ft] = r
        self.XA = [[c.v.get(f"xa{s}{tt}", 4, 2) for tt in range(self.NT_T)] for s in range(self.LA + 1)]
        self.WA = [[c.v.get(f"wa{s}{ft}", 4, 2) for ft in range(2)] for s in range(self.LA + 1)]
        self.ACC = [[c.v.get(f"acc{tt}{ft}", 16, 2) for ft in range(2)] for tt in range(self.NT_T)]
        if self.stats:
            self.xs = [c.v.get("xs0"), c.v.get("xs1")]
            self.xq = [c.v.get("xq0"), c.v.get("xq1")]
            self.cs = [c.v.get("cs0"), c.v.get("cs1")]
            self.sones = c.s.get("ones")
            a(f"s_mov_b32 s{self.sones}, {ONES:#x}")
            for r in self.xs + self.xq + self.cs:
                a(f"v_mov_b32 v{r}, 0")

    def reads(self, q):
        st, s = divmod(q, 4)
        setn = q % (self.LA + 1)
        out = []
        rowb = self.BN * 2
        xo = (st % self.NX) * 16384
        wslot = st % self.NW
        wb, wo = wslot // self.wper, (wslot % self.wper) * self.WSLOT
        for tt in range(self.NT_T):
            r, off = self.ax[(tt, s)]
            out.append(f"ds_read_b128 {vr(self.XA[setn][tt],4)}, v{r} offset:{xo + off}")
        for ft in range(2):
            for u in range(2):
                out.append(f"ds_read_b64_tr_b16 {vr(self.WA[setn][ft] + 2*u, 2)}, v{self.aw[ft][wb]} offset:{wo + (16*s + 4*u)*rowb}")
        return out

    def mainloop(self, tag, orient, hooks=None, pre=None, fillers=None):
        c, a = self.c, self.c.a
        hooks = hooks or {}; pre = pre or {}; fillers = fillers or {}
        Q = self.nst * 4
        LA = self.LA
        nset = LA + 1
        c.barrier(f"{tag}B0")
        for q0 in range(LA):
            for r in self.reads(q0):
                a(r)
        nrd = len(self.reads(0))
        for q in range(Q):
            setn = q % nset
            nxt = q + LA
            opens_stage = nxt < Q and nxt % 4 == 0
            last_of_ring = (q == Q - LA)
            if opens_stage or last_of_ring:
                a("s_waitcnt lgkmcnt(0)")
                c.barrier(f"{tag}B{nxt//4}" if nxt < Q else f"{tag}Bend")
            else:
                pending = min(LA - 1, Q - 1 - q)
                a(f"s_waitcnt lgkmcnt({min(15, pending * nrd)})")
            if q in pre: pre[q]()
            rd = self.reads(nxt) if nxt < Q else []
            mf = []
            for tt in range(self.NT_T):
                for ft in range(2):
                    acc = vr(self.ACC[tt][ft], 16)
                    cc = "0" if q == 0 else acc
                    x, w = vr(self.XA[setn][tt], 4), vr(self.WA[setn][ft], 4)
                    if orient == 'TN':
                        mf.append(f"v_mfma_f32_32x32x16_bf16 {acc}, {w}, {x}, {cc}")
                    else:
                        mf.append(f"v_mfma_f32_32x32x16_bf16 {acc}, {x}, {w}, {cc}")
            dots = []
            if self.stats and q < 4:
                for j in range(4):
                    x = self.XA[setn][0] + j
                    dots.append(f"v_dot2c_f32_bf16 v{self.xs[j&1]}, s{self.sones}, v{x}")
                    dots.append(f"v_dot2c_f32_bf16 v{self.xq[j&1]}, v{x}, v{x}")
                    dots.append(f"v_dot2c_f32_bf16 v{self.cs[j&1]}, s{self.sones}, v{self.WA[setn][0]+j}")
            nm = len(mf)
            fill = [[] for _ in range(nm)]
            half = (len(rd) + 1) // 2
            fill[0] += rd[:half]; fill[1] += rd[half:]
            fl = fillers.get(q, [])
            if fl:
                wts = [1, 1] + [3] * (nm - 2) if nm > 2 else [1] * nm
                tot = sum(wts); pos = 0
                for i in range(nm):
                    n = len(fl) - pos if i == nm - 1 else (len(fl) * wts[i] + tot - 1) // tot
                    fill[i] += fl[pos:pos + n]; pos = min(len(fl), pos + n)
            if dots:
                fill[nm - 1] += dots
            for i, (m, f) in enumerate(zip(mf, fill)):
                a(m)
                for x in f:
                    a(x)
                if i == nm - 1 and q in hooks:
                    hooks[q]()
            if PROF and tag == PROFTAG and q % 4 == 3 and q // 4 < 12:
                c.stamp(27 + q // 4)

    def stats_setup(self, srdS, px_off, pw_off, s_rb, s_ct, s_sigma):
        c, a = self.c, self.c.a
        self.srdS = srdS
        t0, t1, t2, t3 = self.tmp
        st, st2 = self.stmp
        vt, vh = self.vt, self.vh
        BIG = 0x40000000
        self.vpx = c.v.get("vpx"); self.vpw = c.v.get("vpw")
        a(f"s_mul_i32 s{st}, s{s_rb}, 10")
        a(f"s_add_u32 s{st}, s{st}, s{s_sigma}")
        a(f"s_lshl_b32 s{st}, s{st}, 2")
        a(f"s_add_u32 s{st}, s{st}, s{self.s_tt[0]}")
        a(f"s_lshl_b32 s{st}, s{st}, 9")
        a(f"s_add_u32 s{st}, s{st}, {px_off}")
        a(f"s_cmp_lt_u32 s{s_ct}, 10")
        a(f"s_cselect_b32 s{st2}, 0, {BIG}")
        a(f"s_add_u32 s{st}, s{st}, s{st2}")
        a(f"v_lshl_add_u32 v{t0}, v{vt}, 4, s{st}")
        a(f"v_lshl_add_u32 v{self.vpx}, v{vh}, 3, v{t0}")
        a(f"s_mul_i32 s{st}, s{s_ct}, 10")
        a(f"s_add_u32 s{st}, s{st}, s{s_sigma}")
        a(f"s_lshl_b32 s{st}, s{st}, 2")
        a(f"s_add_u32 s{st}, s{st}, s{self.s_ft[0]}")
        a(f"s_lshl_b32 s{st}, s{st}, 8")
        a(f"s_add_u32 s{st}, s{st}, {pw_off}")
        a(f"s_cmp_lt_u32 s{s_rb}, 10")
        a(f"s_cselect_b32 s{st2}, 0, {BIG}")
        a(f"s_add_u32 s{st}, s{st}, s{st2}")
        a(f"v_lshl_add_u32 v{t0}, v{vt}, 3, s{st}")
        a(f"v_lshl_add_u32 v{self.vpw}, v{vh}, 30, v{t0}")
        self.vgx = c.v.get("vgx"); self.vgw = c.v.get("vgw")
        a(f"s_mul_i32 s{st}, s{s_rb}, {10*128*16}")
        a(f"s_add_u32 s{st}, s{st}, {px_off}")
        a(f"v_mov_b32 v{t0}, s{self.s_tt[0]}")
        a(f"v_xor_b32 v{t0}, v{t0}, v{vh}")
        a(f"v_lshl_add_u32 v{t0}, v{t0}, 5, v{vt}")
        a(f"v_lshl_add_u32 v{self.vgx}, v{t0}, 4, s{st}")
        a(f"s_mul_i32 s{st}, s{s_ct}, {10*128*8}")
        a(f"s_add_u32 s{st}, s{st}, {pw_off}")
        a(f"v_mov_b32 v{t0}, s{self.s_ft[0]}")
        a(f"v_xor_b32 v{t0}, v{t0}, v{vh}")
        a(f"v_lshl_add_u32 v{t0}, v{t0}, 5, v{vt}")
        a(f"v_lshl_add_u32 v{self.vgw}, v{t0}, 3, s{st}")
        XS, WS = self.stats_lds()
        self.vlx = c.v.get("vlx"); self.vlx2 = c.v.get("vlx2"); self.vlw = c.v.get("vlw")
        a(f"v_mov_b32 v{t0}, s{self.s_tt[0]}")
        a(f"v_xor_b32 v{t0}, v{t0}, v{vh}")
        a(f"v_lshl_add_u32 v{t0}, v{t0}, 5, v{vt}")
        a(f"v_lshlrev_b32 v{t0}, 4, v{t0}")
        a(f"v_add_u32 v{self.vlx}, {XS}, v{t0}")
        a(f"v_add_u32 v{self.vlx2}, {WS}, v{t0}")
        a(f"v_mov_b32 v{t0}, s{self.s_ft[0]}")
        a(f"v_xor_b32 v{t0}, v{t0}, v{vh}")
        a(f"v_lshl_add_u32 v{t0}, v{t0}, 5, v{vt}")
        a(f"v_lshlrev_b32 v{t0}, 3, v{t0}")
        a(f"v_add_u32 v{self.vlw}, {WS + 4096}, v{t0}")
        self.GX = c.v.get("gx", 40, 2); self.GW = c.v.get("gw", 20, 2)
        self.vtag = c.v.get("vtag"); self.vbadlo = c.v.get("vlo"); self.vbadhi = c.v.get("vhi")
        self.PK = c.v.get("pk", 4, 2)
        self.sg = c.s.get("sg"); self.scnt = c.s.get("scnt")

    def gather_loads(self):
        a = self.c.a
        srdS = self.srdS
        for z in range(10):
            a(f"s_mov_b32 s{self.sg}, {z*2048}")
            a(f"buffer_load_dwordx4 {vr(self.GX+4*z,4)}, v{self.vgx}, s[{srdS}:{srdS+3}], s{self.sg} offen sc1")
            a(f"s_mov_b32 s{self.sg}, {z*1024}")
            a(f"buffer_load_dwordx2 {vr(self.GW+2*z,2)}, v{self.vgw}, s[{srdS}:{srdS+3}], s{self.sg} offen sc1")

    def finish_list(self, eps=1e-5):
        GX, GW = self.GX, self.GW
        lo, hi = self.vbadlo, self.vbadhi
        L = []
        tags = [GX + 4*z + 1 for z in range(10)] + [GX + 4*z + 3 for z in range(10)] + [GW + 2*z + 1 for z in range(10)]
        L.append(f"v_min_u32 v{lo}, v{tags[0]}, v{tags[1]}")
        L.append(f"v_max_u32 v{hi}, v{tags[0]}, v{tags[1]}")
        rest = tags[2:]
        adds = []
        for z in range(1, 10):
            adds.append(f"v_add_f32 v{GX}, v{GX}, v{GX+4*z}")
            adds.append(f"v_add_f32 v{GX+2}, v{GX+2}, v{GX+4*z+2}")
            adds.append(f"v_add_f32 v{GW}, v{GW}, v{GW+2*z}")
        chk = []
        for i in range(0, len(rest), 2):
            chk.append(f"v_min3_u32 v{lo}, v{rest[i]}, v{rest[i+1]}, v{lo}")
            chk.append(f"v_max3_u32 v{hi}, v{rest[i]}, v{rest[i+1]}, v{hi}")
        while adds or chk:
            if adds: L.append(adds.pop(0))
            if chk: L.append(chk.pop(0))
        L.append(f"v_mul_f32 v{GX}, {fbits(1.0/D):#x}, v{GX}")
        L.append(f"v_mul_f32 v{GX+2}, {fbits(1.0/D):#x}, v{GX+2}")
        L.append(f"v_fma_f32 v{GX+2}, -v{GX}, v{GX}, v{GX+2}")
        L.append(f"v_max_f32 v{GX+2}, 0, v{GX+2}")
        L.append(f"v_add_f32 v{GX+2}, {fbits(eps):#x}, v{GX+2}")
        L.append(f"v_rsq_f32 v{GX+2}, v{GX+2}")
        L.append(f"v_xor_b32 v{lo}, v{lo}, v{self.vtag}")
        L.append(f"v_xor_b32 v{hi}, v{hi}, v{self.vtag}")
        L.append(f"v_mul_f32 v{GX}, v{GX}, v{GX+2}")
        L.append(f"v_or_b32 v{lo}, v{lo}, v{hi}")
        L.append(f"v_sub_f32 v{GX}, 0, v{GX}")
        return L

    def stats_plan(self):
        c, a = self.c, self.c.a
        t0, t1, t2, t3 = self.tmp
        xs, xq, cs = self.xs, self.xq, self.cs
        srdS = self.srdS
        PK = self.PK
        def publish_partials():
            a("s_waitcnt vmcnt(0)")
            a(f"v_add_u32 v{self.vtag}, 1, v{V_GEN}")
            a(f"v_add_f32 v{xs[0]}, v{xs[0]}, v{xs[1]}")
            a(f"v_add_f32 v{xq[0]}, v{xq[0]}, v{xq[1]}")
            a(f"v_add_f32 v{cs[0]}, v{cs[0]}, v{cs[1]}")
            a(f"v_mov_b32 v{t0}, v{xs[0]}")
            a(f"v_mov_b32 v{t1}, v{xq[0]}")
            a(f"v_mov_b32 v{t2}, v{cs[0]}")
            a("s_nop 1")
            a(f"v_permlane32_swap_b32 v{t0}, v{xs[0]}")
            a(f"v_permlane32_swap_b32 v{t1}, v{xq[0]}")
            a(f"v_permlane32_swap_b32 v{t2}, v{cs[0]}")
            a(f"v_cmp_eq_u32 vcc, 0, v{self.vh}")
            a(f"v_mov_b32 v{PK+1}, v{self.vtag}")
            a(f"v_mov_b32 v{PK+3}, v{self.vtag}")
            a(f"v_add_f32 v{xs[0]}, v{xs[0]}, v{t0}")
            a(f"v_add_f32 v{xq[0]}, v{xq[0]}, v{t1}")
            a(f"v_add_f32 v{PK+2}, v{cs[0]}, v{t2}")
            a(f"v_cndmask_b32 v{PK}, v{xq[0]}, v{xs[0]}, vcc")
            a(f"buffer_store_dwordx2 {vr(PK+2,2)}, v{self.vpw}, s[{srdS}:{srdS+3}], 0 offen sc1")
            a(f"buffer_store_dwordx2 {vr(PK,2)}, v{self.vpx}, s[{srdS}:{srdS+3}], 0 offen sc1")
        Q = self.nst * 4
        L = self.finish_list()
        n = (len(L) + 2) // 3
        fillers = {Q - 3 + i: L[i*n:(i+1)*n] for i in range(3)}
        fillers[Q - 5] = [f"ds_read_b128 {vr(self.GX+4*z,4)}, v{self.vlx if z < 8 else self.vlx2} offset:{(z % 8)*2048}" for z in range(10)]
        fillers[Q - 4] = [f"ds_read_b64 {vr(self.GW+2*z,2)}, v{self.vlw} offset:{z*1024}" for z in range(10)]
        hooks = {4: publish_partials}
        return hooks, {}, fillers

    def stats_check(self):
        c, a = self.c, self.c.a
        lo = self.vbadlo
        lok = a.newlabel("st_ok"); lp = a.newlabel("st_retry")
        if "forceretry" in TOG: a(f"v_mov_b32 v{lo}, 1")
        a(f"v_cmp_ne_u32 vcc, 0, v{lo}")
        a("s_cmp_eq_u64 vcc, 0")
        a(f"s_cbranch_scc1 {lok}")
        a(f"s_mov_b32 s{self.scnt}, {SPIN_MAX // 8}")
        a.label(lp)
        self.gather_loads()
        a("s_waitcnt vmcnt(0)")
        for l in self.finish_list():
            if l.startswith("v_xor_b32 v%d," % lo): a("s_nop 0")
            a(l)
        a(f"v_cmp_ne_u32 vcc, 0, v{lo}")
        a("s_cmp_eq_u64 vcc, 0")
        a(f"s_cbranch_scc1 {lok}")
        a(f"s_sub_u32 s{self.scnt}, s{self.scnt}, 1")
        a(f"s_cmp_lg_u32 s{self.scnt}, 0")
        a(f"s_cbranch_scc1 {lp}")
        a.label(lok)


def both_halves(a, src, d0, d1):
    a(f"v_mov_b32 v{d0}, v{src}")
    a(f"v_mov_b32 v{d1}, v{src}")
    a("s_nop 1")
    a(f"v_permlane32_swap_b32 v{d0}, v{d1}")


def swap_pack_store(a, vals, P, addr, srd_, soffs, sc="sc1"):
    for g in range(4):
        a(f"v_cvt_pk_bf16_f32 v{P+2*g}, v{vals+4*g}, v{vals+4*g+1}")
        a(f"v_cvt_pk_bf16_f32 v{P+2*g+1}, v{vals+4*g+2}, v{vals+4*g+3}")
    a("s_nop 1")
    for g in (0, 2):
        a(f"v_permlane32_swap_b32 v{P+2*g}, v{P+2*g+2}")
        a(f"v_permlane32_swap_b32 v{P+2*g+1}, v{P+2*g+3}")
    for i, g in enumerate((0, 2)):
        a(f"buffer_store_dwordx4 {vr(P+2*g,4)}, v{addr}, s[{srd_}:{srd_+3}], s{soffs[i]} offen {sc}")


def map_gemm(c, nhalf, s_rb, s_ct, t):
    a = c.a
    a(f"s_lshr_b32 s{s_rb}, s{S_XCD}, 1")
    a(f"s_lshl_b32 s{s_rb}, s{s_rb}, 2")
    a(f"s_and_b32 s{t}, s{S_J}, 3")
    a(f"s_add_u32 s{s_rb}, s{s_rb}, s{t}")
    a(f"s_and_b32 s{t}, s{S_XCD}, 1")
    a(f"s_mul_i32 s{t}, s{t}, {nhalf}")
    a(f"s_lshr_b32 s{s_ct}, s{S_J}, 2")
    a(f"s_add_u32 s{s_ct}, s{s_ct}, s{t}")


def sigma_of(c, s_sig, s_rb, s_ct, t):
    a = c.a
    a(f"s_add_u32 s{s_sig}, s{s_rb}, s{s_ct}")
    a(f"s_mul_i32 s{t}, s{s_sig}, 26")
    a(f"s_lshr_b32 s{t}, s{t}, 8")
    a(f"s_mul_i32 s{t}, s{t}, 10")
    a(f"s_sub_u32 s{s_sig}, s{s_sig}, s{t}")
    if "nosig" in sys.argv: a(f"s_mov_b32 s{s_sig}, 0")


def ws_srd(a, s, off, size):
    srd(a, s, PTR[P_WS], size, off)


def wave0_poll(c, line_base, s_idx, nwords, first_line_delta=0):
    a = c.a
    lab = a.newlabel("nopoll")
    m = c.v.mark(); ms = c.s.mark()
    va = c.v.get("pa"); vtmp = c.v.get("pt"); st = c.s.get("pst"); sm = c.s.get("pm", 2, 2); sc = c.s.get("pc", 4, 2)
    a(f"s_cmp_lg_u32 s{S_WAVE}, 0")
    a(f"s_cbranch_scc1 {lab}")
    flag_line(c, st, line_base, s_idx)
    a(f"v_lshl_add_u32 v{va}, v{c.lane}, 2, s{st}")
    a(f"s_mov_b32 s{sm}, {(1 << nwords) - 1:#x}")
    a(f"s_mov_b32 s{sm+1}, 0")
    poll(c, va, sm, vtmp, sc)
    a.label(lab)
    c.v.reset(m); c.s.reset(ms)


def phase_qkv_compute(c, s_rb, s_ct):
    a = c.a
    vm, sm = c.v.mark(), c.s.mark()
    s_tok0 = c.s.get("tok0"); s_sig = c.s.get("sig"); t = c.s.get("t")
    a(f"s_lshl_b32 s{s_tok0}, s{s_rb}, 7")
    sigma_of(c, s_sig, s_rb, s_ct, t)
    sQK, sVT, sST = SRD_A, SRD_B, SRD_C
    ws_srd(a, sQK, QK_OFF, QK_SZ); ws_srd(a, sVT, VT_OFF, VT_SZ); ws_srd(a, sST, ST_OFF, ST_SZ)
    g = Gemm(c, 128, 'row', 10, 4, 4, stats=True, rotate=True)
    g.compute_setup()
    g.stats_setup(sST, 0, PX_SZ, s_rb, s_ct, s_sig)
    CSV = g.GX + 4; NMV = g.GX + 20; TP = g.GW + 2; P = g.GW + 10
    vR = [c.v.get("vR0", 2, 2), c.v.get("vR1", 2, 2)]
    vN = [c.v.get("vN0", 2, 2), c.v.get("vN1", 2, 2)]
    vad = c.v.get("vad"); vad2 = c.v.get("vad2"); vl = c.v.get("vl")
    so = [c.s.get("so0"), c.s.get("so1")]
    t0, t1, t2v, t3 = g.tmp
    st = g.stmp[0]
    s_priv = c.s.get("priv")
    a(f"s_mul_i32 s{s_priv}, s{S_WAVE}, 768")
    lnt = a.newlabel("qkv_nt"); lend = a.newlabel("qkv_end")
    a(f"s_cmp_ge_u32 s{s_ct}, 10")
    a(f"s_cbranch_scc1 {lnt}")
    bar0 = list(c.bar)
    c.stamp(1)
    g.mainloop("q", 'TN', *g.stats_plan())
    c.stamp(2)
    g.stats_check()
    a(f"s_cmp_lt_u32 s{s_ct}, 5")
    a(f"s_cselect_b32 s{st}, {fbits(20 ** -0.5 * math.log2(math.e)):#x}, 1.0")
    a(f"v_mul_f32 v{g.GX}, s{st}, v{g.GX}")
    a(f"v_mul_f32 v{g.GX+2}, s{st}, v{g.GX+2}")
    both_halves(a, g.GX + 2, vR[0], vR[1])
    both_halves(a, g.GX, vN[0], vN[1])
    a(f"v_lshl_add_u32 v{vl}, v{c.lane}, 2, s{s_priv}")
    a(f"ds_write_b32 v{vl}, v{g.GW}")
    a(f"v_lshl_add_u32 v{vl}, v{g.vh}, 4, s{s_priv}")
    a("s_waitcnt lgkmcnt(0)")
    for ft in range(2):
        for gg in range(4):
            a(f"ds_read_b128 {vr(CSV+4*gg,4)}, v{vl} offset:{128*ft+32*gg}")
        a("s_waitcnt lgkmcnt(0)")
        for tt in range(2):
            acc = g.ACC[tt][ft]
            for i in range(0, 16, 2):
                a(f"v_pk_mul_f32 {vr(TP+i%8,2)}, {vr(CSV+i,2)}, {vr(vN[tt],2)} op_sel_hi:[1,0]")
                if i >= 4:
                    j = i - 4
                    a(f"v_pk_fma_f32 {vr(acc+j,2)}, {vr(acc+j,2)}, {vr(vR[tt],2)}, {vr(TP+j%8,2)} op_sel_hi:[1,0,1]")
            for j in (12, 14):
                a(f"v_pk_fma_f32 {vr(acc+j,2)}, {vr(acc+j,2)}, {vr(vR[tt],2)}, {vr(TP+j%8,2)} op_sel_hi:[1,0,1]")
            a(f"s_lshl_b32 s{st}, s{g.s_tt[tt]}, 5")
            a(f"s_add_u32 s{st}, s{st}, s{s_tok0}")
            a(f"v_add_u32 v{vad}, s{st}, v{g.vt}")
            a(f"v_lshlrev_b32 v{vad}, 4, v{vad}")
            a(f"v_lshl_add_u32 v{vad}, v{g.vh}, 15, v{vad}")
            a(f"s_lshl_b32 s{so[0]}, s{s_ct}, 2")
            a(f"s_add_u32 s{so[0]}, s{so[0]}, s{g.s_ft[ft]}")
            a(f"s_lshl_b32 s{so[0]}, s{so[0]}, 17")
            a(f"s_add_u32 s{so[1]}, s{so[0]}, {2*32768}")
            swap_pack_store(a, acc, P, vad, sQK, so)
            a("s_nop 1")
    a(f"s_branch {lend}")
    barT = list(c.bar)
    c.bar = list(bar0)
    a.label(lnt)
    c.stamp(1)
    g.mainloop("q", 'NT', *g.stats_plan())
    c.stamp(2)
    g.stats_check()
    vC = vR
    both_halves(a, g.GW, vC[0], vC[1])
    a(f"v_lshl_add_u32 v{vl}, v{c.lane}, 2, s{s_priv}")
    a(f"ds_write_b32 v{vl}, v{g.GX+2}")
    a(f"ds_write_b32 v{vl}, v{g.GX} offset:256")
    a(f"v_lshl_add_u32 v{vl}, v{g.vh}, 4, s{s_priv}")
    a("s_waitcnt lgkmcnt(0)")
    for tt in range(2):
        for gg in range(4):
            a(f"ds_read_b128 {vr(CSV+4*gg,4)}, v{vl} offset:{128*tt+32*gg}")
            a(f"ds_read_b128 {vr(NMV+4*gg,4)}, v{vl} offset:{256+128*tt+32*gg}")
        a("s_waitcnt lgkmcnt(0)")
        for ft in range(2):
            acc = g.ACC[tt][ft]
            for i in range(0, 16, 2):
                a(f"v_pk_mul_f32 {vr(TP+i%8,2)}, {vr(NMV+i,2)}, {vr(vC[ft],2)} op_sel_hi:[1,0]")
                if i >= 4:
                    j = i - 4
                    a(f"v_pk_fma_f32 {vr(acc+j,2)}, {vr(acc+j,2)}, {vr(CSV+j,2)}, {vr(TP+j%8,2)}")
            for j in (12, 14):
                a(f"v_pk_fma_f32 {vr(acc+j,2)}, {vr(acc+j,2)}, {vr(CSV+j,2)}, {vr(TP+j%8,2)}")
            a(f"s_sub_u32 s{st}, s{s_ct}, 10")
            a(f"s_lshl_b32 s{st}, s{st}, 2")
            a(f"s_add_u32 s{st}, s{st}, s{g.s_ft[ft]}")
            a(f"s_lshl_b32 s{st}, s{st}, 5")
            a(f"v_add_u32 v{vad}, s{st}, v{g.vt}")
            a(f"v_lshlrev_b32 v{vad}, 4, v{vad}")
            a(f"v_mul_u32_u24 v{vad2}, 10240, v{g.vh}")
            a(f"v_add_u32 v{vad}, v{vad}, v{vad2}")
            a(f"s_lshl_b32 s{st}, s{g.s_tt[tt]}, 2")
            a(f"s_lshr_b32 s{so[0]}, s{s_tok0}, 3")
            a(f"s_add_u32 s{so[0]}, s{so[0]}, s{st}")
            a(f"s_mul_i32 s{so[0]}, s{so[0]}, 10240")
            a(f"s_add_u32 s{so[1]}, s{so[0]}, {2*10240}")
            swap_pack_store(a, acc, P, vad, sVT, so)
            a("s_nop 1")
    assert c.bar == barT
    a.label(lend)
    c.stamp(3)
    flag_line(c, st, FL_QKV, s_rb)
    a(f"s_lshl_b32 s{t}, s{s_ct}, 2")
    a(f"s_add_u32 s{st}, s{st}, s{t}")
    publish(c, 0, 4, st, t0, t1)
    c.stamp(4)
    c.v.reset(vm); c.s.reset(sm)


def phase_qkv_loader(c, s_rb, s_ct):
    a = c.a
    vm, sm = c.v.mark(), c.s.mark()
    s_tok0 = c.s.get("tok0"); s_colb = c.s.get("colb"); s_sig = c.s.get("sig"); t = c.s.get("t")
    a(f"s_lshl_b32 s{s_tok0}, s{s_rb}, 7")
    a(f"s_lshl_b32 s{s_colb}, s{s_ct}, 8")
    sigma_of(c, s_sig, s_rb, s_ct, t)
    srd(a, SRD_A, PTR[P_X], S * D * 2)
    srd(a, SRD_B, PTR[P_WQKV], D * NQKV * 2)
    g = Gemm(c, 128, 'row', 10, 4, 4, rotate=True)
    g.loader_setup(SRD_A, SRD_B, s_tok0, s_colb, NQKV * 2, s_sig)
    ws_srd(a, SRD_C, ST_OFF, ST_SZ)
    ex = g.stats_dma(SRD_C, 0, PX_SZ, s_rb, s_ct)
    c.stamp(1)
    g.loader_main("q", both_at_start=True, extra=ex)
    c.stamp(2)
    c.v.reset(vm); c.s.reset(sm)


def phase_att(c, s_jj, rbw, ctw, ctf):
    a = c.a
    vm, sm = c.v.mark(), c.s.mark()
    KOFF, QOFF, VOFF = XBASE, XBASE + 30720, XBASE + 40960
    lane = c.lane
    w = S_WAVE
    s_rb = c.s.get("rb"); s_p = c.s.get("p"); t = c.s.get("t"); t2 = c.s.get("t2")
    a(f"s_and_b32 s{s_rb}, s{S_J}, 15")
    a(f"s_lshr_b32 s{t2}, s{S_J}, 4")
    a(f"s_lshl_b32 s{s_p}, s{S_XCD}, 1")
    a(f"s_add_u32 s{s_p}, s{s_p}, s{t2}")
    sQK, sVT, sO = SRD_C, SRD_D, SRD_E
    ws_srd(a, sQK, QK_OFF, QK_SZ); ws_srd(a, sVT, VT_OFF, VT_SZ); ws_srd(a, sO, O_OFF, O_SZ)
    v0_, v1_, v2_, v3_ = [c.v.get(f"t{i}") for i in range(4)]
    vkq = c.v.get("vkq"); vv = [c.v.get(f"vv{i}") for i in range(4)]
    s_col8 = c.s.get("col8"); s_ldsb = c.s.get("ldsb"); s_gp = c.s.get("gp"); s_off = c.s.get("off"); s_voff = c.s.get("voff")
    s_qt = c.s.get("qt"); s_hs = c.s.get("hs"); s_g0 = c.s.get("g0")
    s_vm = c.s.get("vmask", 2, 2); s_hm = c.s.get("hm", 2, 2)
    smk = c.s.mark()
    s_tokb = c.s.get("tokb"); s_t80 = c.s.get("t80")
    a(f"s_lshl_b32 s{s_tokb}, s{s_rb}, 7")
    a(f"s_lshl_b32 s{t}, s{w}, 6")
    a(f"s_add_u32 s{s_tokb}, s{s_tokb}, s{t}")
    a(f"s_cmp_lt_u32 s{w}, 6")
    a(f"s_cselect_b32 s{t}, 0, 128")
    a(f"s_add_u32 s{t}, s{t}, 256")
    a(f"s_sub_u32 s{s_tokb}, s{s_tokb}, s{t}")
    a(f"s_mul_i32 s{s_col8}, s{s_p}, 5")
    a(f"s_cmp_lt_u32 s{w}, 6")
    a(f"s_cselect_b32 s{t}, 80, 0")
    a(f"s_add_u32 s{s_col8}, s{s_col8}, s{t}")
    a(f"s_lshl_b32 s{s_ldsb}, s{w}, 10")
    a(f"s_cmp_lt_u32 s{w}, 6")
    a(f"s_cselect_b32 s{t}, 0, {QOFF - 6*1024 - KOFF}")
    a(f"s_add_u32 s{s_ldsb}, s{s_ldsb}, s{t}")
    a(f"s_add_u32 s{s_ldsb}, s{s_ldsb}, {KOFF}")
    a(f"s_cmp_lt_u32 s{w}, 6")
    a(f"s_cselect_b32 s{s_gp}, 4096, 0")
    a(f"s_add_u32 s{s_gp}, s{s_gp}, 2048")
    a(f"v_add_u32 v{vkq}, s{s_tokb}, v{lane}")
    a(f"v_max_i32 v{vkq}, 0, v{vkq}")
    a(f"v_lshlrev_b32 v{vkq}, 4, v{vkq}")
    a(f"s_lshl_b32 s{s_col8}, s{s_col8}, 15")
    a(f"s_lshl_b32 s{s_t80}, s{s_rb}, 4")
    a(f"s_sub_u32 s{s_t80}, s{s_t80}, 32")
    a(f"s_mul_i32 s{s_voff}, s{s_p}, 640")
    for i in range(4):
        a(f"s_lshl_b32 s{t}, s{w}, 6")
        a(f"s_add_u32 s{t}, s{t}, {512*i}")
        a(f"v_add_u32 v{v0_}, s{t}, v{lane}")
        a(f"v_mul_u32_u24 v{v1_}, 52429, v{v0_}")
        a(f"v_lshrrev_b32 v{v1_}, 21, v{v1_}")
        a(f"v_mul_u32_u24 v{v2_}, 40, v{v1_}")
        a(f"v_sub_u32 v{v2_}, v{v0_}, v{v2_}")
        a(f"v_add_u32 v{v1_}, s{s_t80}, v{v1_}")
        a(f"v_max_i32 v{v1_}, 0, v{v1_}")
        a(f"v_mul_u32_u24 v{v1_}, 10240, v{v1_}")
        a(f"v_lshl_add_u32 v{vv[i]}, v{v2_}, 4, v{v1_}")
    a(f"s_and_b32 s{s_qt}, s{w}, 3")
    a(f"s_lshr_b32 s{s_hs}, s{w}, 2")
    vt = c.v.get("vt"); vh = c.v.get("vh")
    a(f"v_and_b32 v{vt}, 31, v{lane}")
    a(f"v_lshrrev_b32 v{vh}, 5, v{lane}")
    aQ1 = c.v.get("aQ1"); aQ2 = c.v.get("aQ2"); aK1 = c.v.get("aK1"); aK2 = c.v.get("aK2"); aV = c.v.get("aV")
    a(f"s_mul_i32 s{s_g0}, s{s_hs}, 3")
    a(f"s_lshl_b32 s{t}, s{s_qt}, 9")
    a(f"v_lshl_add_u32 v{v0_}, v{vt}, 4, s{t}")
    a(f"v_add_u32 v{v1_}, s{s_g0}, v{vh}")
    a(f"v_lshl_add_u32 v{aQ1}, v{v1_}, 11, v{v0_}")
    a(f"v_add_u32 v{aQ1}, {QOFF}, v{aQ1}")
    a(f"v_lshl_add_u32 v{aQ2}, v{vh}, 3, v{v0_}")
    a(f"v_add_u32 v{aQ2}, {QOFF + 2*2048}, v{aQ2}")
    a(f"v_and_b32 v{v0_}, 0x13, v{vt}")
    a(f"v_bfe_u32 v{v2_}, v{vt}, 2, 1")
    a(f"v_lshl_or_b32 v{v0_}, v{v2_}, 3, v{v0_}")
    a(f"v_bfe_u32 v{v2_}, v{vt}, 3, 1")
    a(f"v_lshl_or_b32 v{v0_}, v{v2_}, 2, v{v0_}")
    a(f"v_lshl_add_u32 v{v0_}, v{v0_}, 4, s{t}")
    a(f"v_mul_u32_u24 v{v1_}, 6144, v{v1_}")
    a(f"v_add_u32 v{aK1}, v{v1_}, v{v0_}")
    a(f"v_add_u32 v{aK1}, {KOFF}, v{aK1}")
    a(f"v_lshl_add_u32 v{aK2}, v{vh}, 3, v{v0_}")
    a(f"v_add_u32 v{aK2}, {KOFF + 2*6144}, v{aK2}")
    a(f"s_lshl_b32 s{t}, s{s_hs}, 4")
    a(f"v_add_u32 v{v0_}, s{t}, v{vt}")
    a(f"v_lshlrev_b32 v{v0_}, 4, v{v0_}")
    a(f"s_lshl_b32 s{t}, s{s_qt}, 2")
    a(f"v_add_u32 v{v1_}, s{t}, v{vh}")
    a(f"v_mul_u32_u24 v{v1_}, 640, v{v1_}")
    a(f"v_add3_u32 v{aV}, v{v0_}, v{v1_}, 0")
    a(f"v_add_u32 v{aV}, {VOFF}, v{aV}")
    a(f"s_lshl_b32 s{t}, s{s_hs}, 2")
    a(f"v_subrev_u32 v{v0_}, s{t}, v{vt}")
    a(f"v_cmp_gt_u32 s[{s_vm}:{s_vm+1}], 20, v{v0_}")
    a(f"v_cmp_eq_u32 s[{s_hm}:{s_hm+1}], s{s_hs}, v{vh}")
    vd = c.v.get("vd")
    a(f"v_lshlrev_b32 v{v0_}, 3, v{vh}")
    a(f"v_sub_u32 v{vd}, v{vt}, v{v0_}")
    Q1 = c.v.get("Q1", 4, 2); Q2 = c.v.get("Q2", 2, 2)
    K1 = [c.v.get(f"K1{i}", 4, 2) for i in range(9)]; K2 = [c.v.get(f"K2{i}", 2, 2) for i in range(9)]
    VF = [c.v.get(f"VF{i}", 4, 2) for i in range(4)]
    O = c.v.get("O", 16, 2)
    SB = [c.v.get(f"S{i}", 16, 2) for i in range(3)]
    NEGM = c.v.get("negm", 16, 2)
    Z0 = c.v.get("z0", 16, 2); Z8 = c.v.get("z8", 16, 2)
    vneg = c.v.get("neg"); vmx = [c.v.get(f"m{i}") for i in range(4)]
    a(f"v_mov_b32 v{vneg}, {fbits(-1e30):#x}")
    for i in range(4):
        for j in range(4):
            a(f"v_mov_b32 v{VF[i]+j}, {ONES:#x}")
    vpf = c.v.get("vpf"); sPF = SRD_B
    s_src = c.s.get("psrc", 10); s_pd = c.s.get("pd"); s_dt = [c.s.get("pdt0"), c.s.get("pdt1")]
    lB = a.newlabel("pfB"); lE = a.newlabel("pfE"); lC = a.newlabel("pfC")
    a(f"s_cmp_ge_u32 s{s_jj}, 5")
    a(f"s_cbranch_scc1 {lB}")
    srd(a, sPF, PTR[P_WO], D * D * 2)
    a(f"v_lshrrev_b32 v{v0_}, 3, v{lane}")
    a(f"v_and_b32 v{v1_}, 7, v{lane}")
    a(f"v_bfe_u32 v{v2_}, v{lane}, 4, 1")
    a(f"v_lshlrev_b32 v{v2_}, 2, v{v2_}")
    a(f"v_xor_b32 v{v1_}, v{v1_}, v{v2_}")
    a(f"s_lshl_b32 s{t}, s{w}, 3")
    a(f"v_add_u32 v{v0_}, s{t}, v{v0_}")
    a(f"v_mul_u32_u24 v{v0_}, {D*2}, v{v0_}")
    a(f"v_lshl_add_u32 v{v0_}, v{v1_}, 4, v{v0_}")
    a(f"s_lshl_b32 s{t}, s{ctw}, 7")
    a(f"v_add_u32 v{vpf}, s{t}, v{v0_}")
    for n in range(10):
        a(f"s_mov_b32 s{s_src+n}, {n*64*D*2}")
    a(f"s_lshl_b32 s{s_pd}, s{w}, 10")
    a(f"s_add_u32 s{s_pd}, s{s_pd}, {WBASE}")
    a(f"s_mov_b32 s{s_dt[0]}, 8192"); a(f"s_mov_b32 s{s_dt[1]}, 8192")
    a(f"s_branch {lE}")
    a.label(lB)
    srd(a, sPF, PTR[P_W1], D * F * 2)
    a(f"s_cmp_ge_u32 s{s_jj}, 7")
    a(f"s_cselect_b32 s{sPF+2}, 0, s{sPF+2}")
    a(f"v_lshrrev_b32 v{v0_}, 4, v{lane}")
    a(f"v_and_b32 v{v1_}, 15, v{lane}")
    a(f"v_lshlrev_b32 v{v2_}, 2, v{v0_}")
    a(f"v_xor_b32 v{v1_}, v{v1_}, v{v2_}")
    a(f"s_lshl_b32 s{t}, s{w}, 3")
    a(f"v_add_u32 v{v0_}, s{t}, v{v0_}")
    a(f"v_mul_u32_u24 v{v0_}, {F*2}, v{v0_}")
    a(f"v_lshl_add_u32 v{v0_}, v{v1_}, 4, v{v0_}")
    a(f"s_lshl_b32 s{t}, s{ctf}, 8")
    a(f"v_add_u32 v{vpf}, s{t}, v{v0_}")
    sigma_of(c, s_pd, rbw, ctf, t)
    for st_ in range(5):
        a(f"s_add_u32 s{t}, s{s_pd}, {st_}")
        a(f"s_cmp_ge_u32 s{t}, 10")
        a(f"s_cselect_b32 s{t2}, 10, 0")
        a(f"s_sub_u32 s{t}, s{t}, s{t2}")
        a(f"s_mul_i32 s{s_src+2*st_}, s{t}, {64*F*2}")
        a(f"s_add_u32 s{s_src+2*st_+1}, s{s_src+2*st_}, {4*F*2}")
    a(f"s_lshl_b32 s{s_pd}, s{w}, 11")
    a(f"s_add_u32 s{s_pd}, s{s_pd}, {WBASE}")
    a(f"s_mov_b32 s{s_dt[0]}, 1024"); a(f"s_mov_b32 s{s_dt[1]}, {16384 - 1024}")
    a.label(lE)
    def prefetch_piece(n):
        if "nopf" in TOG: return
        if n == 0:
            a(f"s_mov_b32 m0, s{s_pd}")
            a("s_nop 0")
        a(f"buffer_load_dwordx4 v{vpf}, s[{sPF}:{sPF+3}], s{s_src+n} offen lds")
        if n < 9: a(f"s_add_u32 m0, m0, s{s_dt[n&1]}")
    lab = a.newlabel("att_nopoll")
    smk2 = c.s.mark()
    sm_ = c.s.get("pm", 2, 2); sc_ = c.s.get("pc", 4, 2)
    a(f"s_cmp_lg_u32 s{w}, 0")
    a(f"s_cbranch_scc1 {lab}")
    a(f"v_lshrrev_b32 v{v0_}, 4, v{lane}")
    a(f"v_add_u32 v{v0_}, s{s_rb}, v{v0_}")
    a(f"v_subrev_u32 v{v0_}, 2, v{v0_}")
    a(f"v_and_b32 v{v1_}, 15, v{lane}")
    a(f"v_cmp_le_i32 s[{sm_}:{sm_+1}], 0, v{v0_}")
    a(f"v_cmp_gt_u32 s[{sc_}:{sc_+1}], 15, v{v1_}")
    a(f"v_cmp_gt_u32 vcc, 48, v{lane}")
    a(f"v_add_u32 v{v0_}, {FL_QKV}, v{v0_}")
    a(f"v_lshlrev_b32 v{v0_}, 8, v{v0_}")
    a(f"v_lshl_add_u32 v{v0_}, v{v1_}, 2, v{v0_}")
    a(f"s_and_b64 s[{sm_}:{sm_+1}], s[{sm_}:{sm_+1}], s[{sc_}:{sc_+1}]")
    a(f"s_and_b64 s[{sm_}:{sm_+1}], s[{sm_}:{sm_+1}], vcc")
    poll(c, v0_, sm_, v2_, sc_)
    a.label(lab)
    c.stamp(5)
    c.barrier("aP")
    c.stamp(6)
    for G in range(5):
        a(f"s_mov_b32 m0, s{s_ldsb}")
        a(f"s_add_u32 s{s_off}, s{s_col8}, {G*32768}")
        a(f"buffer_load_dwordx4 v{vkq}, s[{sQK}:{sQK+3}], s{s_off} offen sc1 lds")
        a(f"s_add_u32 s{s_ldsb}, s{s_ldsb}, s{s_gp}")
    c.s.reset(smk2)
    s_mk = c.s.get("mk", 4, 2)
    s_g = s_col8
    a(f"s_lshl_b32 s{s_g}, s{s_rb}, 2")
    a(f"s_add_u32 s{s_g}, s{s_g}, s{s_qt}")
    def mkcmp(i):
        g_, r_ = divmod(i, 4)
        cr = 16 * (g_ >> 1) + 4 * (g_ & 1) + r_
        a(f"v_cmp_le_i32 s[{s_mk+2*(i&1)}:{s_mk+2*(i&1)+1}], {cr}, v{vd}")
    mkcmp(0); mkcmp(1)
    a("s_nop 0")
    for i in range(16):
        mk = f"s[{s_mk+2*(i&1)}:{s_mk+2*(i&1)+1}]"
        a(f"v_cndmask_b32 v{Z0+i}, 0, v{vneg}, {mk}")
        a(f"v_cndmask_b32 v{Z8+i}, v{vneg}, 0, {mk}")
        if i + 2 < 16: mkcmp(i + 2)
    a("s_waitcnt vmcnt(0)")
    c.barrier("aK")
    c.stamp(7)
    lv = a.newlabel("vskip")
    for i in range(4):
        if i == 3:
            a(f"s_cmp_ge_u32 s{w}, 6")
            a(f"s_cbranch_scc1 {lv}")
        a(f"s_lshl_b32 s{t}, s{w}, 10")
        a(f"s_add_u32 m0, s{t}, {VOFF + 8192*i}")
        a("s_nop 0")
        a(f"buffer_load_dwordx4 v{vv[i]}, s[{sVT}:{sVT+3}], s{s_voff} offen sc1 lds")
    a.label(lv)
    a(f"ds_read_b128 {vr(Q1,4)}, v{aQ1}")
    a(f"ds_read_b64 {vr(Q2,2)}, v{aQ2}")
    def kread(i):
        a(f"ds_read_b128 {vr(K1[i],4)}, v{aK1} offset:{i*512}")
        a(f"ds_read_b64 {vr(K2[i],2)}, v{aK2} offset:{i*512}")
    for i in range(4): kread(i)
    a("s_waitcnt lgkmcnt(8)")
    a(f"v_cndmask_b32 v{Q2}, 0, v{Q2}, s[{s_hm}:{s_hm+1}]")
    a(f"v_cndmask_b32 v{Q2+1}, 0, v{Q2+1}, s[{s_hm}:{s_hm+1}]")

    fixups = []
    def fix(i):
        if "nofix" in TOG or i == 8: return
        S_ = SB[i % 3]
        lab = a.newlabel("fixo"); back = a.newlabel("fixb")
        a(f"s_cmp_lt_u32 s{s_g}, {8 - i}")
        a(f"s_cbranch_scc1 {lab}")
        a.label(back)
        fixups.append((lab, back, S_))
    def cinit(i, plain):
        return vr(Z0, 16) if i == 0 else (vr(Z8, 16) if i == 8 else plain)
    done_at = {}
    PB = [c.v.get("PB0", 8, 2), c.v.get("PB1", 8, 2)]
    def qk1(i, cinit):
        a(f"v_mfma_f32_32x32x16_bf16 {vr(SB[i%3],16)}, {vr(K1[i],4)}, {vr(Q1,4)}, {cinit}")
    def qk2(i):
        a(f"v_mfma_f32_32x32x8_bf16 {vr(SB[i%3],16)}, {vr(K2[i],2)}, {vr(Q2,2)}, {vr(SB[i%3],16)}")
        done_at[i] = a.pos()
    def maxops(i):
        S_ = SB[i % 3]
        if i == 0:
            return [f"v_max3_f32 v{vmx[k]}, v{S_+4*k}, v{S_+4*k+1}, v{S_+4*k+2}" for k in range(4)] + \
                   [f"v_max_f32 v{vmx[k]}, v{vmx[k]}, v{S_+4*k+3}" for k in range(4)]
        return [f"v_max3_f32 v{vmx[k%4]}, v{S_+2*k}, v{S_+2*k+1}, v{vmx[k%4]}" for k in range(8)]
    for i in range(11):
        ops = []
        if i < 9:
            if i + 4 < 9:
                kread(i + 4)
                a("s_waitcnt lgkmcnt(8)")
            else:
                a(f"s_waitcnt lgkmcnt({2 * (8 - i)})")
            qk1(i, cinit(i, "0"))
        if i >= 2:
            a.need(done_at[i - 2], 12)
            fix(i - 2)
            ops = maxops(i - 2)
        for o in ops[:4]: a(o)
        if i < 9: qk2(i)
        for o in ops[4:]: a(o)
        if PROFTAG == 'a' and i < 9: c.stamp(41 + i)
    a(f"v_max3_f32 v{vmx[0]}, v{vmx[0]}, v{vmx[1]}, v{vmx[2]}")
    a(f"v_max_f32 v{vmx[0]}, v{vmx[0]}, v{vmx[3]}")
    a(f"v_mov_b32 v{vmx[1]}, v{vmx[0]}")
    a("s_nop 1")
    a(f"v_permlane32_swap_b32 v{vmx[0]}, v{vmx[1]}")
    a("s_nop 1")
    a(f"v_max_f32 v{vmx[0]}, v{vmx[0]}, v{vmx[1]}")
    for j in range(16):
        a(f"v_sub_f32 v{Z0+j}, v{Z0+j}, v{vmx[0]}")
    for j in range(16):
        a(f"v_sub_f32 v{NEGM+j}, 0, v{vmx[0]}")
    for j in range(16):
        a(f"v_sub_f32 v{Z8+j}, v{Z8+j}, v{vmx[0]}")
    c.stamp(9)
    negm = vr(NEGM, 16)
    a("s_nop 1")
    qk1(0, cinit(0, negm)); qk1(1, negm); qk2(0); qk2(1)
    a("s_waitcnt vmcnt(0)")
    c.barrier("aV")
    def vread(i):
        a(f"s_mov_b64 exec, s[{s_vm}:{s_vm+1}]")
        for tt in range(2):
            a(f"ds_read_b128 {vr(VF[(2*i+tt)%4],4)}, v{aV} offset:{(4*i+2*tt)*640}")
        a("s_mov_b64 exec, -1")
    def pv(i, tt):
        if "nopv" in TOG: return
        cc = "0" if (i == 0 and tt == 0) else vr(O, 16)
        a(f"v_mfma_f32_32x32x16_bf16 {vr(O,16)}, {vr(VF[(2*i+tt)%4],4)}, {vr(PB[i&1]+4*tt,4)}, {cc}")
    for i in range(9):
        S_ = SB[i % 3]
        vread(i)
        a.need(done_at[i], 12)
        fix(i)
        def exps(lo):
            for j in range(lo, lo + 4):
                if "noexp" in TOG: continue
                a(f"v_exp_f32 v{S_+j}, v{S_+j}" if "expmov" not in TOG else f"v_mov_b32 v{S_+j}, v{S_+j}")
        exps(0)
        if i + 2 < 9 and "noqk" not in TOG: qk1(i + 2, cinit(i + 2, negm))
        exps(4)
        if i >= 1:
            a("s_waitcnt lgkmcnt(2)")
            pv(i - 1, 0)
        exps(8)
        if i + 2 < 9 and "noqk" not in TOG: qk2(i + 2)
        exps(12)
        if i >= 1: pv(i - 1, 1)
        prefetch_piece(i)
        if i == 0: a("s_nop 0")
        for j in range(8):
            if "nocvt" in TOG: continue
            a(f"v_cvt_pk_bf16_f32 v{PB[i&1]+j}, v{S_+2*j}, v{S_+2*j+1}")
        if PROFTAG == 'a': c.stamp(27 + i)
    prefetch_piece(9)
    a("s_waitcnt lgkmcnt(0)")
    a("s_nop 1")
    pv(8, 0); pv(8, 1)
    c.stamp(10)
    a("s_nop 15")
    rinv = vmx[1]
    a(f"v_rcp_f32 v{rinv}, v{O+12}")
    a("s_nop 0")
    for j in range(12):
        a(f"v_mul_f32 v{O+j}, v{O+j}, v{rinv}")
    PP = c.v.get("PP", 6, 2)
    for g in range(3):
        a(f"v_cvt_pk_bf16_f32 v{PP+2*g}, v{O+4*g}, v{O+4*g+1}")
        a(f"v_cvt_pk_bf16_f32 v{PP+2*g+1}, v{O+4*g+2}, v{O+4*g+3}")
    vad = v0_; vad2 = v1_
    a(f"s_lshl_b32 s{t}, s{s_rb}, 7")
    a(f"s_lshl_b32 s{t2}, s{s_qt}, 5")
    a(f"s_add_u32 s{t}, s{t}, s{t2}")
    a(f"v_add_u32 v{vad}, s{t}, v{vt}")
    a(f"v_lshlrev_b32 v{vad}, 4, v{vad}")
    a(f"v_lshl_add_u32 v{vad2}, v{vh}, 3, v{vad}")
    a(f"v_lshl_add_u32 v{vad}, v{vh}, 15, v{vad}")
    a(f"s_mul_i32 s{t}, s{s_p}, 5")
    a(f"s_add_u32 s{t2}, s{t}, 2")
    a(f"s_lshl_b32 s{t2}, s{t2}, 15")
    a(f"s_add_u32 s{t}, s{t}, s{s_g0}")
    a(f"s_lshl_b32 s{t}, s{t}, 15")
    lb = a.newlabel("headB"); le = a.newlabel("headE")
    a(f"s_cmp_eq_u32 s{s_hs}, 1")
    a(f"s_cbranch_scc1 {lb}")
    a(f"v_permlane32_swap_b32 v{PP}, v{PP+2}")
    a(f"v_permlane32_swap_b32 v{PP+1}, v{PP+3}")
    a(f"buffer_store_dwordx4 {vr(PP,4)}, v{vad}, s[{sO}:{sO+3}], s{t} offen sc1")
    a(f"s_mov_b64 exec, s[{s_hm}:{s_hm+1}]")
    a(f"buffer_store_dwordx2 {vr(PP+4,2)}, v{vad2}, s[{sO}:{sO+3}], s{t2} offen sc1")
    a(f"s_branch {le}")
    a.label(lb)
    a(f"v_permlane32_swap_b32 v{PP+2}, v{PP+4}")
    a(f"v_permlane32_swap_b32 v{PP+3}, v{PP+5}")
    a(f"buffer_store_dwordx4 {vr(PP+2,4)}, v{vad}, s[{sO}:{sO+3}], s{t} offen sc1")
    a(f"s_mov_b64 exec, s[{s_hm}:{s_hm+1}]")
    a(f"buffer_store_dwordx2 {vr(PP,2)}, v{vad2}, s[{sO}:{sO+3}], s{t2} offen sc1")
    a.label(le)
    a("s_mov_b64 exec, -1")
    c.stamp(11)
    flag_line(c, t, FL_ATT, s_rb)
    a(f"s_lshl_b32 s{t2}, s{s_p}, 2")
    a(f"s_add_u32 s{t}, s{t}, s{t2}")
    publish(c, 1, 8, t, v2_, v3_)
    c.stamp(12)
    lskip = a.newlabel("att_done")
    a(f"s_branch {lskip}")
    for lab, back, S_ in fixups:
        a.label(lab)
        for j in range(16):
            a(f"v_mov_b32 v{S_+j}, v{vneg}")
        a(f"s_branch {back}")
    a.label(lskip)
    c.v.reset(vm); c.s.reset(sm)


def row_tile_addr(c, g, base, regs):
    a = c.a
    t0, t1 = g.tmp[0], g.tmp[1]
    st = g.stmp[0]
    a(f"s_lshl_b32 s{st}, s{c.swave}, 12")
    a(f"s_add_u32 s{st}, s{st}, {base}")
    a(f"v_lshl_add_u32 v{t0}, v{g.vt}, 7, s{st}")
    a(f"v_lshl_add_u32 v{t0}, v{g.vh}, 3, v{t0}")
    a(f"v_bfe_u32 v{t1}, v{g.vt}, 1, 3")
    for k in range(8):
        a(f"v_xor_b32 v{regs+k}, {k}, v{t1}")
        a(f"v_lshl_add_u32 v{regs+k}, v{regs+k}, 4, v{t0}")


RES_SLOT = XBASE + 2 * 16384


def wo_weights_loader(c, s_ct):
    a = c.a
    s_colb = c.s.get("colb"); s_tok0 = c.s.get("tok0"); s_rb = c.s.get("rb"); t = c.s.get("t")
    return s_colb


def phase_wo_compute(c, s_rb, s_ct):
    a = c.a
    vm, sm = c.v.mark(), c.s.mark()
    s_tok0 = c.s.get("tok0"); t = c.s.get("t")
    a(f"s_lshl_b32 s{s_tok0}, s{s_rb}, 7")
    sH = SRD_A
    ws_srd(a, sH, H_OFF, H_SZ)
    g = Gemm(c, 64, 'T8', 10, 4, 10)
    g.compute_setup()
    st, st2 = g.stmp
    ra = c.v.get("ra", 8)
    row_tile_addr(c, g, RES_SLOT, ra)
    R = c.v.get("R", 16, 2); P = c.v.get("P", 8, 2); vad = c.v.get("vad")
    so = [c.s.get("so0"), c.s.get("so1")]
    a(f"s_lshl_b32 s{st}, s{c.swave}, 5")
    a(f"s_add_u32 s{st}, s{st}, s{s_tok0}")
    a(f"v_add_u32 v{vad}, s{st}, v{g.vt}")
    a(f"v_lshlrev_b32 v{vad}, 4, v{vad}")
    a(f"v_lshl_add_u32 v{vad}, v{g.vh}, 15, v{vad}")
    wave0_poll(c, FL_ATT, s_rb, 16)
    c.stamp(13)
    c.barrier("wP")
    c.stamp(14)
    g.mainloop("w", 'TN')
    c.stamp(15)
    for k in range(8):
        a(f"ds_read_b64 {vr(R+2*k,2)}, v{ra+k}")
    a("s_nop 7")
    a("s_waitcnt lgkmcnt(0)")
    t0, t1 = g.tmp[0], g.tmp[1]
    for ft in range(2):
        acc = g.ACC[0][ft]
        for gg in range(4):
            for d in range(2):
                r = R + 2 * (4 * ft + gg) + d
                a(f"v_lshlrev_b32 v{t0}, 16, v{r}")
                a(f"v_and_b32 v{t1}, 0xffff0000, v{r}")
                a(f"v_add_f32 v{acc+4*gg+2*d}, v{acc+4*gg+2*d}, v{t0}")
                a(f"v_add_f32 v{acc+4*gg+2*d+1}, v{acc+4*gg+2*d+1}, v{t1}")
        a(f"s_lshl_b32 s{so[0]}, s{s_ct}, 3")
        a(f"s_add_u32 s{so[0]}, s{so[0]}, {4*ft}")
        a(f"s_lshl_b32 s{so[0]}, s{so[0]}, 15")
        a(f"s_add_u32 s{so[1]}, s{so[0]}, {2*32768}")
        swap_pack_store(a, acc, P, vad, sH, so)
        a("s_nop 1")
    c.stamp(16)
    flag_line(c, st, FL_WO, s_rb)
    a(f"s_lshl_b32 s{t}, s{s_ct}, 2")
    a(f"s_add_u32 s{st}, s{st}, s{t}")
    publish(c, 2, 4, st, t0, t1)
    c.barrier("wS")
    c.stamp(17)
    c.v.reset(vm); c.s.reset(sm)


class Loader:
    pass


def wo_loader_prefetch(c, s_rb, s_ct):
    a = c.a
    s_tok0 = c.s.get("tok0"); s_colb = c.s.get("colb")
    a(f"s_lshl_b32 s{s_tok0}, s{s_rb}, 7")
    a(f"s_lshl_b32 s{s_colb}, s{s_ct}, 7")
    srd(a, SRD_B, PTR[P_WO], D * D * 2)
    g = Gemm(c, 64, 'T8', 10, 4, 10, xsc="sc1")
    g.loader_setup(SRD_A, SRD_B, s_tok0, s_colb, D * 2)
    g.nw_issued = 10
    g.s_tok0, g.s_colb = s_tok0, s_colb
    return g


def wo_loader_main(c, g):
    a = c.a
    ws_srd(a, SRD_A, O_OFF, O_SZ)
    srd(a, SRD_C, PTR[P_X], S * D * 2)
    vq = [c.v.get("vq0"), c.v.get("vq1")]
    t0 = c.v.get("x0"); t1 = c.v.get("x1"); t2 = c.v.get("x2"); st = c.s.get("xs"); lw = c.s.get("xlw")
    a(f"s_sub_u32 s{lw}, s{S_WAVE}, 4")
    g.row_goff(vq, g.s_tok0, lw, g.s_colb, t0, t1, t2, st)
    def residual():
        for q in range(4):
            a(f"s_add_u32 m0, s{g.swx}, {RES_SLOT + q*1024}")
            a(f"s_mov_b32 s{g.soff}, {q*8*D*2}")
            a(f"buffer_load_dwordx4 v{vq[q&1]}, s[{SRD_C}:{SRD_C+3}], s{g.soff} offen lds")
            g.ops.append(('r', -1))
    c.barrier("wP")
    g.loader_main("w", extra=(7, residual, 'end'))
    c.barrier("wS")


def phase_f1_compute(c, s_rb, s_ct):
    a = c.a
    vm, sm = c.v.mark(), c.s.mark()
    s_tok0 = c.s.get("tok0"); s_colb = c.s.get("colb"); s_sig = c.s.get("sig"); t = c.s.get("t")
    a(f"s_lshl_b32 s{s_tok0}, s{s_rb}, 7")
    a(f"s_lshl_b32 s{s_colb}, s{s_ct}, 8")
    sigma_of(c, s_sig, s_rb, s_ct, t)
    sB, sH1, sST = SRD_A, SRD_B, SRD_C
    srd(a, sB, PTR[P_B1], F * 2)
    ws_srd(a, sH1, H1_OFF, H1_SZ); ws_srd(a, sST, ST_OFF, ST_SZ)
    g = Gemm(c, 128, 'T8', 10, 4, 5, stats=True, rotate=True)
    g.compute_setup()
    g.stats_setup(sST, PX_SZ + PW_SZ, 2 * PX_SZ + PW_SZ, s_rb, s_ct, s_sig)
    P = c.v.get("P", 8, 2); BR = c.v.get("br", 16, 2); CSV = g.GX + 4; BV = g.GX + 20
    vR = [c.v.get("vR0", 2, 2), c.v.get("vR1", 2, 2)]; vN = [c.v.get("vN0", 2, 2), c.v.get("vN1", 2, 2)]
    TP = g.GW + 2
    vad = c.v.get("vad"); vb = c.v.get("vb"); vl = c.v.get("vl")
    so = [c.s.get("so0"), c.s.get("so1")]
    t0, t1, t2v, t3 = g.tmp
    st = g.stmp[0]
    s_priv = c.s.get("priv")
    a(f"s_mul_i32 s{s_priv}, s{S_WAVE}, 768")
    for ft in range(2):
        a(f"s_lshl_b32 s{st}, s{g.s_ft[ft]}, 6")
        a(f"s_add_u32 s{st}, s{st}, s{s_colb}")
        a(f"v_lshl_add_u32 v{vb}, v{g.vh}, 3, s{st}")
        for gg in range(4):
            a(f"buffer_load_dwordx2 {vr(BR+8*ft+2*gg,2)}, v{vb}, s[{sB}:{sB+3}], 0 offen offset:{16*gg}")
    wave0_poll(c, FL_WO, s_rb, 10)
    c.stamp(18)
    c.barrier("fP")
    c.stamp(19)
    g.mainloop("f", 'TN', *g.stats_plan())
    c.stamp(20)
    g.stats_check()
    both_halves(a, g.GX + 2, vR[0], vR[1])
    both_halves(a, g.GX, vN[0], vN[1])
    a(f"v_lshl_add_u32 v{vl}, v{c.lane}, 2, s{s_priv}")
    a(f"ds_write_b32 v{vl}, v{g.GW}")
    a(f"v_lshl_add_u32 v{vl}, v{g.vh}, 4, s{s_priv}")
    a("s_waitcnt lgkmcnt(0)")
    for ft in range(2):
        for gg in range(4):
            a(f"ds_read_b128 {vr(CSV+4*gg,4)}, v{vl} offset:{128*ft+32*gg}")
        for k in range(8):
            a(f"v_lshlrev_b32 v{BV+2*k}, 16, v{BR+8*ft+k}")
            a(f"v_and_b32 v{BV+2*k+1}, 0xffff0000, v{BR+8*ft+k}")
        a("s_waitcnt lgkmcnt(0)")
        for tt in range(2):
            acc = g.ACC[tt][ft]
            for i in range(0, 16, 2):
                a(f"v_pk_fma_f32 {vr(TP+i,2)}, {vr(CSV+i,2)}, {vr(vN[tt],2)}, {vr(BV+i,2)} op_sel_hi:[1,0,1]")
            for i in range(0, 16, 2):
                a(f"v_pk_fma_f32 {vr(acc+i,2)}, {vr(acc+i,2)}, {vr(vR[tt],2)}, {vr(TP+i,2)} op_sel_hi:[1,0,1]")
            for i in range(16):
                a(f"v_max_f32 v{acc+i}, 0, v{acc+i}")
            for i in range(0, 16, 2):
                a(f"v_pk_mul_f32 {vr(acc+i,2)}, {vr(acc+i,2)}, {vr(acc+i,2)}")
            a(f"s_lshl_b32 s{st}, s{g.s_tt[tt]}, 5")
            a(f"s_add_u32 s{st}, s{st}, s{s_tok0}")
            a(f"v_add_u32 v{vad}, s{st}, v{g.vt}")
            a(f"v_lshlrev_b32 v{vad}, 4, v{vad}")
            a(f"v_lshl_add_u32 v{vad}, v{g.vh}, 15, v{vad}")
            a(f"s_lshl_b32 s{so[0]}, s{s_ct}, 2")
            a(f"s_add_u32 s{so[0]}, s{so[0]}, s{g.s_ft[ft]}")
            a(f"s_lshl_b32 s{so[0]}, s{so[0]}, 17")
            a(f"s_add_u32 s{so[1]}, s{so[0]}, {2*32768}")
            swap_pack_store(a, acc, P, vad, sH1, so)
            a("s_nop 1")
    c.stamp(21)
    flag_line(c, st, FL_F1, s_rb)
    a(f"s_lshl_b32 s{t}, s{s_ct}, 2")
    a(f"s_add_u32 s{st}, s{st}, s{t}")
    publish(c, 3, 4, st, t0, t1)
    c.barrier("fS")
    c.stamp(22)
    c.v.reset(vm); c.s.reset(sm)


def f1_loader_prefetch(c, s_rb, s_ct, resident=False):
    a = c.a
    s_tok0 = c.s.get("tok0"); s_colb = c.s.get("colb"); s_sig = c.s.get("sig"); t = c.s.get("t")
    a(f"s_lshl_b32 s{s_tok0}, s{s_rb}, 7")
    a(f"s_lshl_b32 s{s_colb}, s{s_ct}, 8")
    sigma_of(c, s_sig, s_rb, s_ct, t)
    srd(a, SRD_B, PTR[P_W1], D * F * 2)
    g = Gemm(c, 128, 'T8', 10, 4, 5, rotate=True, xsc="sc1")
    g.loader_setup(SRD_A, SRD_B, s_tok0, s_colb, F * 2, s_sig)
    if resident:
        g.nw_issued = 5
        for _ in range(5): g._advance(g.swk, g.wstride)
    else:
        g.prefetch_w()
    g.s_rb, g.s_ct = s_rb, s_ct
    return g


def f1_loader_main(c, g):
    ws_srd(c.a, SRD_A, H_OFF, H_SZ)
    ws_srd(c.a, SRD_C, ST_OFF, ST_SZ)
    ex = g.stats_dma(SRD_C, PX_SZ + PW_SZ, 2 * PX_SZ + PW_SZ, g.s_rb, g.s_ct)
    c.barrier("fP")
    g.loader_main("f", extra=ex)
    c.barrier("fS")


def phase_f2_compute(c, s_rb, s_ct):
    a = c.a
    vm, sm = c.v.mark(), c.s.mark()
    s_tok0 = c.s.get("tok0"); s_colb = c.s.get("colb")
    a(f"s_lshl_b32 s{s_tok0}, s{s_rb}, 7")
    a(f"s_lshl_b32 s{s_colb}, s{s_ct}, 7")
    sB, sH, sOut = SRD_A, SRD_B, SRD_C
    srd(a, sB, PTR[P_B2], D * 2)
    ws_srd(a, sH, H_OFF, H_SZ)
    srd(a, sOut, PTR[P_OUT], S * D * 2)
    g = Gemm(c, 64, 'T8', 27, 4, 10)
    OUTB = XBASE
    g.compute_setup()
    st, st2 = g.stmp
    t0, t1, t2 = g.tmp[0], g.tmp[1], g.tmp[2]
    R = c.v.get("R", 16, 2); B = c.v.get("B", 16, 2); P = c.v.get("P", 16, 2); vad = c.v.get("vad"); vb = c.v.get("vb")
    a(f"s_lshl_b32 s{st}, s{c.swave}, 5")
    a(f"s_add_u32 s{st}, s{st}, s{s_tok0}")
    a(f"v_add_u32 v{vad}, s{st}, v{g.vt}")
    a(f"v_lshlrev_b32 v{vad}, 4, v{vad}")
    a(f"v_lshl_add_u32 v{vad}, v{g.vh}, 3, v{vad}")
    a(f"v_lshl_add_u32 v{vb}, v{g.vh}, 3, s{s_colb}")
    for k in range(8):
        a(f"s_lshl_b32 s{st}, s{s_ct}, 3")
        a(f"s_add_u32 s{st}, s{st}, {k}")
        a(f"s_lshl_b32 s{st}, s{st}, 15")
        a(f"buffer_load_dwordx2 {vr(R+2*k,2)}, v{vad}, s[{sH}:{sH+3}], s{st} offen sc1")
        a(f"buffer_load_dwordx2 {vr(B+2*k,2)}, v{vb}, s[{sB}:{sB+3}], 0 offen offset:{16*k}")
    ra = c.v.get("ra", 8)
    row_tile_addr(c, g, OUTB, ra)
    vq = [c.v.get("vq0"), c.v.get("vq1")]
    g.row_goff(vq, s_tok0, c.swave, s_colb, t0, t1, t2, st)
    vl = c.v.get("vl")
    a(f"s_lshl_b32 s{st}, s{c.swave}, 12")
    a(f"s_add_u32 s{st}, s{st}, {OUTB}")
    a(f"v_lshl_add_u32 v{vl}, v{c.lane}, 4, s{st}")
    wave0_poll(c, FL_F1, s_rb, 14)
    c.stamp(23)
    c.barrier("gP")
    c.stamp(24)
    g.mainloop("g", 'TN')
    c.stamp(25)
    a("s_waitcnt vmcnt(0)")
    a("s_nop 11")
    for ft in range(2):
        acc = g.ACC[0][ft]
        for gg in range(4):
            k = 4 * ft + gg
            for d in range(2):
                i = 4 * gg + 2 * d
                a(f"v_lshlrev_b32 v{t0}, 16, v{R+2*k+d}")
                a(f"v_and_b32 v{t1}, 0xffff0000, v{R+2*k+d}")
                a(f"v_add_f32 v{acc+i}, v{acc+i}, v{t0}")
                a(f"v_add_f32 v{acc+i+1}, v{acc+i+1}, v{t1}")
                a(f"v_lshlrev_b32 v{t0}, 16, v{B+2*k+d}")
                a(f"v_and_b32 v{t1}, 0xffff0000, v{B+2*k+d}")
                a(f"v_add_f32 v{acc+i}, v{acc+i}, v{t0}")
                a(f"v_add_f32 v{acc+i+1}, v{acc+i+1}, v{t1}")
                a(f"v_cvt_pk_bf16_f32 v{P+2*k+d}, v{acc+i}, v{acc+i+1}")
            a(f"ds_write_b64 v{ra+k}, {vr(P+2*k,2)}")
    a("s_waitcnt lgkmcnt(0)")
    for q in range(4):
        a(f"ds_read_b128 {vr(R+4*q,4)}, v{vl} offset:{q*1024}")
    for q in range(4):
        a(f"s_waitcnt lgkmcnt({3-q})")
        a(f"s_mov_b32 s{st2}, {q*8*D*2}")
        a(f"buffer_store_dwordx4 {vr(R+4*q,4)}, v{vq[q&1]}, s[{sOut}:{sOut+3}], s{st2} offen")
    c.stamp(26)
    c.v.reset(vm); c.s.reset(sm)


def f2_loader_prefetch(c, s_rb, s_ct):
    a = c.a
    s_tok0 = c.s.get("tok0"); s_colb = c.s.get("colb")
    a(f"s_lshl_b32 s{s_tok0}, s{s_rb}, 7")
    a(f"s_lshl_b32 s{s_colb}, s{s_ct}, 7")
    srd(a, SRD_B, PTR[P_W2], F * D * 2)
    g = Gemm(c, 64, 'T8', 27, 4, 10, xsc="sc1")
    g.loader_setup(SRD_A, SRD_B, s_tok0, s_colb, D * 2)
    g.prefetch_w()
    return g


def f2_loader_main(c, g):
    ws_srd(c.a, SRD_A, H1_OFF, H1_SZ)
    c.barrier("gP")
    g.loader_main("g")


def prof_store(c, role):
    if not PROF: return
    a = c.a
    lab = a.newlabel("prof_skip")
    a(f"s_cmp_lg_u32 s{S_WAVE}, {4*role}")
    a(f"s_cbranch_scc1 {lab}")
    ws_srd(a, SRD_A, PROF_OFF, 1 << 20)
    a(f"s_lshl_b32 s96, s2, 9")
    a(f"s_add_u32 s96, s96, {256*role}")
    a(f"v_lshl_add_u32 v4, v{V_LANE}, 2, s96")
    a(f"buffer_store_dword v{V_PROF}, v4, s[{SRD_A}:{SRD_A+3}], 0 offen")
    a.label(lab)


def gen_kernel(a, name):
    c = Ctx(a)
    kernel_begin(a, name)
    done = f"{name}_done"
    a("s_cmp_ge_u32 s2, 256")
    a(f"s_cbranch_scc1 {done}")
    a("s_load_dwordx16 s[4:19], s[0:1], 0")
    a("s_load_dwordx2 s[20:21], s[0:1], 64")
    a("s_load_dwordx2 s[22:23], s[0:1], 80")
    if PROF: a(f"v_mov_b32 v{V_PROF}, 0")
    a(f"v_lshrrev_b32 v{V_LANE}, 6, v0")
    a(f"s_and_b32 s{S_XCD}, s2, 7")
    a(f"v_readfirstlane_b32 s{S_WAVE}, v{V_LANE}")
    a(f"s_lshr_b32 s{S_J}, s2, 3")
    a(f"v_and_b32 v{V_LANE}, 63, v0")
    a("s_waitcnt lgkmcnt(0)")
    for tg in TOG:
        if tg.startswith("poison"):
            pat = int(tg[6:], 16)
            for r in range(4, 255): a(f"v_mov_b32 v{r}, {pat:#x}")
            for r in range(27, 100): a(f"s_mov_b32 s{r}, {pat:#x}")
            a("s_mov_b32 m0, 0"); a(f"s_mov_b64 vcc, -1")
            a(f"s_mul_i32 s28, s{S_WAVE}, 20480")
            a(f"v_lshl_add_u32 v4, v{V_LANE}, 4, s28")
            for k in range(20):
                a(f"ds_write_b128 v4, v[8:11] offset:{k*1024}")
            a("s_waitcnt lgkmcnt(0)")
            a("s_barrier")
            a(f"v_mov_b32 v4, {pat:#x}"); a(f"s_mov_b32 s28, {pat:#x}")
    c.stamp(0)
    if PROF:
        a("s_memrealtime s[100:101]")
        a("s_waitcnt lgkmcnt(0)")
        a(f"v_writelane_b32 v{V_PROF}, s100, 61")
    ws_srd(a, SRD_F, FL_OFF, FL_SZ)
    a(f"v_mov_b32 v{V_GEN}, {FL_GEN*256}")
    a(f"buffer_load_dword v{V_GEN}, v{V_GEN}, s[{SRD_F}:{SRD_F+3}], 0 offen sc1")
    if "cpf" in TOG:
        lp = a.newlabel("code_here")
        sp = c.s.get("pcb", 2, 2)
        m = c.v.mark()
        vo = c.v.get("cpo"); vd_ = V_SINK
        skip = a.newlabel("cpf_skip")
        a(f"s_cmp_lg_u32 s{S_WAVE}, 3")
        a(f"s_cbranch_scc1 {skip}")
        a(f"s_getpc_b64 s[{sp}:{sp+1}]")
        a.label(lp)
        a(f"v_lshlrev_b32 v{vo}, 7, v{V_LANE}")
        for k in range(9):
            a(f"v_cmp_gt_u32 vcc, {name}_code_end-{lp}, v{vo}")
            a(f"s_and_saveexec_b64 s[{SRD_A}:{SRD_A+1}], vcc")
            lk = a.newlabel("cpf_k")
            a(f"s_cbranch_execz {lk}")
            a(f"global_load_dword v{vd_}, v{vo}, s[{sp}:{sp+1}]")
            a.label(lk)
            a(f"s_mov_b64 exec, -1")
            a(f"v_add_u32 v{vo}, 8192, v{vo}")
        a.label(skip)
        c.v.reset(m)
    rbq = c.s.get("rbq"); ctq = c.s.get("ctq"); rbw = c.s.get("rbw"); ctw = c.s.get("ctw"); ctf = c.s.get("ctf"); t = c.s.get("gt")
    map_gemm(c, 8, rbq, ctq, t)
    map_gemm(c, 5, rbw, ctw, t)
    map_gemm(c, 7, rbw, ctf, t)
    jj = c.s.get("jj")
    a(f"s_lshr_b32 s{jj}, s{S_J}, 2")
    lz = a.newlabel("nocnt")
    a(f"s_cmp_lg_u32 s{S_WAVE}, 0")
    a(f"s_cbranch_scc1 {lz}")
    a(f"v_lshlrev_b32 v4, 2, v{V_LANE}")
    a(f"v_add_u32 v4, {CNT_OFF}, v4")
    a("v_mov_b32 v5, 0")
    a("s_mov_b64 exec, 0xff")
    a("ds_write_b32 v4, v5")
    a("s_mov_b64 exec, -1")
    a("s_waitcnt lgkmcnt(0)")
    a.label(lz)
    lload = f"{name}_loader"; latt = f"{name}_att"; lrest = f"{name}_lrest"
    a(f"s_cmp_ge_u32 s{S_WAVE}, 4")
    a(f"s_cbranch_scc1 {lload}")
    c.bar = []
    a(f"s_cmp_ge_u32 s{ctq}, 15")
    a(f"s_cbranch_scc1 {latt}")
    phase_qkv_compute(c, rbq, ctq)
    a(f"s_branch {latt}")
    bq = list(c.bar)
    a.label(lload)
    c.bar = []
    a(f"s_cmp_ge_u32 s{ctq}, 15")
    a(f"s_cbranch_scc1 {latt}")
    phase_qkv_loader(c, rbq, ctq)
    assert c.bar == bq, (c.bar, bq)
    a.label(latt)
    if "wpf" in TOG:
        lw_ = a.newlabel("wpf_skip")
        a(f"s_cmp_lt_u32 s{ctq}, 15")
        a(f"s_cbranch_scc1 {lw_}")
        m = c.v.mark(); ms = c.s.mark()
        vo = c.v.get("wpo"); vd_ = V_SINK; sw = c.s.get("wps")
        a(f"s_lshl_b32 s{sw}, s{rbq}, 3")
        a(f"s_add_u32 s{sw}, s{sw}, s{S_WAVE}")
        a(f"s_lshl_b32 s{sw}, s{sw}, 13")
        a(f"v_lshlrev_b32 v{vo}, 7, v{V_LANE}")
        a(f"v_add_u32 v{vo}, s{sw}, v{vo}")
        for ptr, size in ((P_W1, D*F*2), (P_WO, D*D*2), (P_W2, F*D*2)):
            srd(a, SRD_A, PTR[ptr], size)
            for k in range((size + (1 << 20) - 1) >> 20):
                a(f"s_mov_b32 s{sw}, {k << 20}")
                a(f"buffer_load_dword v{vd_}, v{vo}, s[{SRD_A}:{SRD_A+3}], s{sw} offen")
        a.label(lw_)
        c.v.reset(m); c.s.reset(ms)
    phase_att(c, jj, rbw, ctw, ctf)
    a(f"s_cmp_ge_u32 s{S_WAVE}, 4")
    a(f"s_cbranch_scc1 {lrest}")
    c.bar = []
    l2 = a.newlabel("c_nowo"); l3 = a.newlabel("c_end")
    a(f"s_cmp_ge_u32 s{jj}, 5")
    a(f"s_cbranch_scc1 {l2}")
    phase_wo_compute(c, rbw, ctw)
    a.label(l2)
    a(f"s_cmp_ge_u32 s{jj}, 7")
    a(f"s_cbranch_scc1 {l3}")
    phase_f1_compute(c, rbw, ctf)
    a(f"s_cmp_ge_u32 s{jj}, 5")
    a(f"s_cbranch_scc1 {l3}")
    phase_f2_compute(c, rbw, ctw)
    a.label(l3)
    c.stamp(63)
    prof_store(c, 0)
    a("s_endpgm")
    bar_compute = list(c.bar)
    a.label(lrest)
    c.bar = []
    lB = a.newlabel("l_classB"); lend = a.newlabel("l_end")
    a(f"s_cmp_ge_u32 s{jj}, 7")
    a(f"s_cbranch_scc1 {lend}")
    a(f"s_cmp_ge_u32 s{jj}, 5")
    a(f"s_cbranch_scc1 {lB}")
    vm, sm = c.v.mark(), c.s.mark()
    g = wo_loader_prefetch(c, rbw, ctw)
    wo_loader_main(c, g)
    c.stamp(15)
    c.v.reset(vm); c.s.reset(sm)
    g = f1_loader_prefetch(c, rbw, ctf)
    c.stamp(16)
    f1_loader_main(c, g)
    c.stamp(20)
    c.v.reset(vm); c.s.reset(sm)
    g = f2_loader_prefetch(c, rbw, ctw)
    c.stamp(21)
    f2_loader_main(c, g)
    c.stamp(25)
    c.v.reset(vm); c.s.reset(sm)
    assert c.bar == bar_compute, (c.bar, bar_compute)
    lg = a.newlabel("nogen")
    a("s_cmp_lg_u32 s2, 0")
    a(f"s_cbranch_scc1 {lg}")
    a(f"s_cmp_lg_u32 s{S_WAVE}, 4")
    a(f"s_cbranch_scc1 {lg}")
    va = c.v.get("ga"); vb = c.v.get("gb"); smk = c.s.get("gm", 2, 2); scn = c.s.get("gc", 4, 2)
    a(f"s_mov_b64 s[{smk}:{smk+1}], -1")
    for r in range(4):
        a(f"v_lshrrev_b32 v{va}, 4, v{V_LANE}")
        a(f"v_add_u32 v{va}, {FL_ATT + 4*r}, v{va}")
        a(f"v_lshlrev_b32 v{va}, 8, v{va}")
        a(f"v_and_b32 v{vb}, 15, v{V_LANE}")
        a(f"v_lshl_add_u32 v{va}, v{vb}, 2, v{va}")
        poll(c, va, smk, vb, scn)
    a(f"v_add_u32 v{vb}, 1, v{V_GEN}")
    a(f"v_mov_b32 v{va}, {FL_GEN*256}")
    a("s_mov_b64 exec, 1")
    a(f"buffer_store_dword v{vb}, v{va}, s[{SRD_F}:{SRD_F+3}], 0 offen sc1")
    a("s_mov_b64 exec, -1")
    a.label(lg)
    c.v.reset(vm); c.s.reset(sm)
    a(f"s_branch {lend}")
    a.label(lB)
    c.bar = []
    g = f1_loader_prefetch(c, rbw, ctf, resident=True)
    f1_loader_main(c, g)
    assert c.bar == [b for b in bar_compute if b.startswith("f")], c.bar
    c.v.reset(vm); c.s.reset(sm)
    a.label(lend)
    c.stamp(63)
    prof_store(c, 1)
    a.label(done)
    a("s_endpgm")
    a.label(f"{name}_code_end")
    return dict(name=name, grid=256, block=512, lds=LDS_TOTAL, vgpr=c.v.high, sgpr=c.s.high)


def build(path):
    a = Asm(); body = Asm()
    name = KNAME + "_kernel"
    info = gen_kernel(body, name)
    hdr = open("cdna_kernels/" + KNAME + ".s.ref").read().split("; Override launch")[0]
    a.raw(hdr.rstrip())
    a.raw(f"; @launch grid=({info['grid']},1,1) block=({info['block']},1,1) lds={info['lds']}")
    a.raw('.amdgcn_target "amdgcn-amd-amdhsa--gfx950"')
    a.lines += body.lines
    vg = 256
    kernel_desc(a, name, vgpr=vg, sgpr=102)
    open(path, "w").write(a.text())
    return info


if __name__ == "__main__":
    if "prof" in sys.argv: PROF = True
    for x in sys.argv:
        if x.startswith("tag="): PROFTAG = x[4:]
        if x == "rt": REALTIME = True
        if x.startswith("tog="): TOG.update(x[4:].split(","))
    print(build(sys.argv[1] if len(sys.argv) > 1 else "k2.s"))
```

```python
import sys, struct, math
from lib2 import *

KNAME = "sequential_preLN__sliding_block__dense_activation_squared_relu__prompt"
S, D, NQKV, F = 2048, 640, 1920, 1728
QK_OFF = 0;                 QK_SZ = 160 * 32768
VT_OFF = QK_OFF + QK_SZ;    VT_SZ = 256 * 10240
O_OFF = VT_OFF + VT_SZ;     O_SZ = 80 * 32768
H_OFF = O_OFF + O_SZ;       H_SZ = 80 * 32768
H1_OFF = H_OFF + H_SZ;      H1_SZ = 216 * 32768
PX_SZ = 16 * 10 * 128 * 16
PW_SZ = 16 * 10 * 128 * 8
ST_OFF = H1_OFF + H1_SZ
ST_SZ = 2 * (PX_SZ + PW_SZ)
FL_OFF = ST_OFF + ST_SZ
FL_QKV, FL_ATT, FL_WO, FL_F1, FL_SA1, FL_SB1, FL_SA2, FL_SB2, FL_GEN = 0, 16, 32, 48, 64, 80, 96, 112, 128
FL_SZ = 129 * 256
PROF_OFF = 32 << 20
ONES = 0x3F803F80
XBASE = 4096
WBASE = 75776
LDS_TOTAL = WBASE + 81920
CNT_OFF = 3072 + 768
SPIN_MAX = 400000

PROF = False
PROFTAG = 'q'
REALTIME = False
TOG = set()
DBGMAP = None
DBGWG = 0
P_X, P_WQKV, P_WO, P_BX, P_W1, P_B1, P_W2, P_B2, P_OUT, P_DBG, P_WS = range(11)
PTR = {P_X: 4, P_WQKV: 6, P_WO: 8, P_W1: 12, P_B1: 14, P_W2: 16, P_B2: 18, P_OUT: 20, P_WS: 22}
S_WAVE, S_XCD, S_J = 24, 25, 26
SRD_A, SRD_B, SRD_C, SRD_D, SRD_E, SRD_F = 28, 32, 36, 40, 44, 48
V_LANE, V_GEN, V_PROF = 1, 2, 3
V_SINK = 255


def fbits(x):
    return struct.unpack("<I", struct.pack("<f", x))[0]


class Ctx:
    def __init__(self, a):
        self.a = a
        self.v = Alloc('v', 4, 255)
        self.s = Alloc('s', 52, 100)
        self.lane = V_LANE
        self.swave = S_WAVE
        self.bar = []
        self.nstamp = 0

    def barrier(self, tag):
        self.bar.append(tag)
        self.a("s_barrier")

    def stamp(self, idx):
        if not PROF: return
        if DBGMAP is not None:
            if idx not in DBGMAP: return
            idx = DBGMAP[idx]
        a = self.a
        a("s_waitcnt lgkmcnt(0)")
        a("s_memrealtime s[100:101]" if REALTIME else "s_memtime s[100:101]")
        a("s_waitcnt lgkmcnt(0)")
        a(f"v_writelane_b32 v{V_PROF}, s100, {idx}")


def flag_line(c, sdst, line_base, s_idx):
    c.a(f"s_add_u32 s{sdst}, s{s_idx}, {line_base}")
    c.a(f"s_lshl_b32 s{sdst}, s{sdst}, 8")


def poll(c, vaddr, smask, vtmp, scnt, nloads=1, vaddr2=None, vtmp2=None):
    a = c.a
    lp = a.newlabel("poll"); ld = a.newlabel("polled")
    a("s_waitcnt vmcnt(0)")
    a(f"s_mov_b32 s{scnt}, {SPIN_MAX}")
    a(f"s_mov_b64 exec, s[{smask}:{smask+1}]")
    a.label(lp)
    a(f"buffer_load_dword v{vtmp}, v{vaddr}, s[{SRD_F}:{SRD_F+3}], 0 offen sc1")
    if vaddr2 is not None:
        a(f"buffer_load_dword v{vtmp2}, v{vaddr2}, s[{SRD_F}:{SRD_F+3}], 0 offen sc1")
    a("s_waitcnt vmcnt(0)")
    a(f"v_subrev_u32 v{vtmp}, v{V_GEN}, v{vtmp}")
    if vaddr2 is not None:
        a(f"v_subrev_u32 v{vtmp2}, v{V_GEN}, v{vtmp2}")
        a(f"v_cmp_ne_u32 vcc, 1, v{vtmp2}")
        a(f"s_mov_b64 s[{scnt+2}:{scnt+3}], vcc")
    a(f"v_cmp_ne_u32 vcc, 1, v{vtmp}")
    if vaddr2 is not None:
        a(f"s_or_b64 vcc, vcc, s[{scnt+2}:{scnt+3}]")
    a("s_cmp_eq_u64 vcc, 0")
    a(f"s_cbranch_scc1 {ld}")
    a(f"s_sub_u32 s{scnt}, s{scnt}, 1")
    a(f"s_cmp_eq_u32 s{scnt}, 0")
    a(f"s_cbranch_scc1 {ld}")
    a("s_sleep 1")
    a(f"s_branch {lp}")
    a.label(ld)
    a("s_mov_b64 exec, -1")


def publish(c, cnt_idx, narrive, s_flagoff, v0, v1):
    a = c.a
    ls = a.newlabel("nopub")
    a("s_waitcnt vmcnt(0)")
    a(f"v_mov_b32 v{v0}, {CNT_OFF + 4*cnt_idx}")
    a(f"v_mov_b32 v{v1}, 1")
    a("s_mov_b64 exec, 1")
    a(f"ds_add_rtn_u32 v{v1}, v{v0}, v{v1}")
    a("s_waitcnt lgkmcnt(0)")
    a(f"v_cmp_eq_u32 vcc, {narrive-1}, v{v1}")
    a("s_cmp_eq_u64 vcc, 0")
    a(f"s_cbranch_scc1 {ls}")
    a(f"v_add_u32 v{v1}, 1, v{V_GEN}")
    a(f"v_mov_b32 v{v0}, s{s_flagoff}")
    a(f"buffer_store_dword v{v1}, v{v0}, s[{SRD_F}:{SRD_F+3}], 0 offen sc1")
    a.label(ls)
    a("s_mov_b64 exec, -1")


class Gemm:
    def __init__(self, c, BN, xmode, nst, NX, NW, stats=False, rotate=False, xsc="", LA=None):
        self.LA = LA if LA is not None else (1 if BN == 128 else 2)
        self.c, self.BN, self.xmode, self.nst, self.NX, self.NW = c, BN, xmode, nst, NX, NW
        self.stats, self.rotate, self.xsc = stats, rotate, xsc
        self.WSLOT = 64 * BN * 2
        self.wper = 65536 // self.WSLOT
        self.nwb = (NW + self.wper - 1) // self.wper
        self.NT_T = 2 if BN == 128 else 1
        self.ops = []

    def loader_setup(self, srdX, srdW, s_tok0, s_col0b, wpitch, s_sigma=None, w_only=False):
        c, a = self.c, self.c.a
        self.srdX, self.srdW, self.wpitch = srdX, srdW, wpitch
        lane = c.lane
        lw = c.s.get("lw")
        a(f"s_sub_u32 s{lw}, s{c.swave}, 4")
        t0 = c.v.get("lt0"); t1 = c.v.get("lt1"); t2 = c.v.get("lt2")
        stmp = c.s.get("ltmp")
        self.soff = c.s.get("soff")
        vw = self.vw = c.v.get("lvw")
        if self.BN == 128:
            a(f"v_lshrrev_b32 v{t0}, 4, v{lane}")
            a(f"v_and_b32 v{t1}, 15, v{lane}")
            a(f"v_lshlrev_b32 v{t2}, 2, v{t0}")
            a(f"v_xor_b32 v{t1}, v{t1}, v{t2}")
        else:
            a(f"v_lshrrev_b32 v{t0}, 3, v{lane}")
            a(f"v_and_b32 v{t1}, 7, v{lane}")
            a(f"v_bfe_u32 v{t2}, v{lane}, 4, 1")
            a(f"v_lshlrev_b32 v{t2}, 2, v{t2}")
            a(f"v_xor_b32 v{t1}, v{t1}, v{t2}")
        a(f"s_lshl_b32 s{stmp}, s{lw}, 4")
        a(f"v_add_u32 v{t0}, s{stmp}, v{t0}")
        a(f"v_mul_u32_u24 v{t0}, {wpitch}, v{t0}")
        a(f"v_lshl_add_u32 v{t0}, v{t1}, 4, v{t0}")
        a(f"v_add_u32 v{vw}, s{s_col0b}, v{t0}")
        self.sww = c.s.get("sww")
        a(f"s_lshl_b32 s{self.sww}, s{lw}, {12 if self.BN == 128 else 11}")
        self.swx = c.s.get("swx")
        a(f"s_lshl_b32 s{self.swx}, s{lw}, 12")
        if self.xmode == 'T8':
            vx = self.vx = [c.v.get("lvx")]
            a(f"v_add_u32 v{t0}, s{s_tok0}, v{lane}")
            a(f"v_lshlrev_b32 v{t0}, 4, v{t0}")
            a(f"s_lshl_b32 s{stmp}, s{lw}, 16")
            a(f"v_add_u32 v{vx[0]}, s{stmp}, v{t0}")
        else:
            vx = self.vx = [c.v.get("lvx0"), c.v.get("lvx1")]
            self.row_goff(vx, s_tok0, lw, None, t0, t1, t2, stmp)
        self.xstride = 8 * 32768 if self.xmode == 'T8' else 128
        self.wstride = 64 * wpitch
        if self.rotate:
            self.sxk = c.s.get("sxk"); self.swk = c.s.get("swk")
            a(f"s_mul_i32 s{self.sxk}, s{s_sigma}, {self.xstride}")
            a(f"s_mul_i32 s{self.swk}, s{s_sigma}, {self.wstride}")

    def row_goff(self, vq, s_tok0, s_w, s_colb, t0, t1, t2, stmp):
        c, a = self.c, self.c.a
        lane = c.lane
        a(f"v_lshrrev_b32 v{t0}, 3, v{lane}")
        a(f"s_lshl_b32 s{stmp}, s{s_w}, 5")
        a(f"s_add_u32 s{stmp}, s{stmp}, s{s_tok0}")
        a(f"v_add_u32 v{t0}, s{stmp}, v{t0}")
        a(f"v_mul_u32_u24 v{t0}, {D*2}, v{t0}")
        if s_colb is not None:
            a(f"v_add_u32 v{t0}, s{s_colb}, v{t0}")
        a(f"v_and_b32 v{t1}, 7, v{lane}")
        a(f"v_lshrrev_b32 v{t2}, 4, v{lane}")
        a(f"v_xor_b32 v{t1}, v{t1}, v{t2}")
        a(f"v_lshl_add_u32 v{vq[0]}, v{t1}, 4, v{t0}")
        a(f"v_xor_b32 v{t1}, 4, v{t1}")
        a(f"v_lshl_add_u32 v{vq[1]}, v{t1}, 4, v{t0}")

    def _advance(self, sreg, stride):
        a = self.c.a
        a(f"s_add_u32 s{sreg}, s{sreg}, {stride}")
        a(f"s_cmp_ge_u32 s{sreg}, {stride * self.nst}")
        a(f"s_cselect_b32 s{self.soff}, {stride * self.nst}, 0")
        a(f"s_sub_u32 s{sreg}, s{sreg}, s{self.soff}")

    def issue_x(self, st):
        a = self.c.a
        sb = XBASE + (st % self.NX) * 16384
        for j in range(4):
            a(f"s_add_u32 m0, s{self.swx}, {sb + j*1024}")
            off = ((j >> 1) * 32768 + (j & 1) * 1024) if self.xmode == 'T8' else j * 8 * D * 2
            if self.rotate:
                a(f"s_add_u32 s{self.soff}, s{self.sxk}, {off}")
            else:
                a(f"s_mov_b32 s{self.soff}, {st * self.xstride + off}")
            vx = self.vx[0] if self.xmode == 'T8' else self.vx[j & 1]
            a(f"buffer_load_dwordx4 v{vx}, s[{self.srdX}:{self.srdX+3}], s{self.soff} offen {self.xsc} lds")
            self.ops.append(('x', st))
        if self.rotate: self._advance(self.sxk, self.xstride)

    def issue_w(self, st):
        a = self.c.a
        sb = WBASE + (st % self.NW) * self.WSLOT
        nw, rows = (4, 4) if self.BN == 128 else (2, 8)
        for j in range(nw):
            a(f"s_add_u32 m0, s{self.sww}, {sb + j*1024}")
            off = j * rows * self.wpitch
            if self.rotate:
                a(f"s_add_u32 s{self.soff}, s{self.swk}, {off}")
            else:
                a(f"s_mov_b32 s{self.soff}, {st * self.wstride + off}")
            a(f"buffer_load_dwordx4 v{self.vw}, s[{self.srdW}:{self.srdW+3}], s{self.soff} offen lds")
            self.ops.append(('w', st))
        if self.rotate: self._advance(self.swk, self.wstride)

    def wait_stage(self, st):
        idx = [i for i, o in enumerate(self.ops) if o[1] == st and o[0] in 'xw']
        last = max(idx)
        n = len(self.ops) - 1 - last
        self.c.a(f"s_waitcnt vmcnt({min(n, 63)})")

    def prefetch_w(self):
        for st in range(min(self.NW, self.nst)):
            self.issue_w(st)
        self.nw_issued = min(self.NW, self.nst)

    def loader_main(self, tag, both_at_start=False, extra=None):
        c = self.c
        nst, NX, NW = self.nst, self.NX, self.NW
        if both_at_start:
            for st in range(2):
                self.issue_w(st); self.issue_x(st)
            nxi, nwi = 2, 2
        else:
            nwi = self.nw_issued
            for st in range(2):
                self.issue_x(st)
            nxi = 2
        for st in range(nst):
            if extra is not None and extra[2] == st:
                c.a("s_waitcnt vmcnt(0)")
            else:
                self.wait_stage(st)
            c.barrier(f"{tag}B{st}")
            if PROF and tag == PROFTAG and st < 12: c.stamp(41 + st)
            while nxi < nst and nxi - NX < st:
                if nwi < nst and nwi <= nxi and nwi - NW < st:
                    self.issue_w(nwi); nwi += 1
                self.issue_x(nxi); nxi += 1
            while nwi < nst and nwi - NW < st:
                self.issue_w(nwi); nwi += 1
            if extra is not None and extra[0] == st:
                assert nxi == nst and nwi == nst
                extra[1]()
        if extra is not None and extra[2] == 'end':
            c.a("s_waitcnt vmcnt(0)")
        c.barrier(f"{tag}Bend")

    def stats_lds(self):
        return XBASE + (6 % self.NX) * 16384, WBASE + (6 % self.NW) * self.WSLOT

    def stats_dma(self, srdS, px_off, pw_off, s_rb, s_ct):
        c, a = self.c, self.c.a
        XS, WS = self.stats_lds()
        v = c.v.get("sdv"); sp = c.s.get("sdp"); sq = c.s.get("sdq"); lw = c.s.get("sdw")
        a(f"s_sub_u32 s{lw}, s{c.swave}, 4")
        a(f"s_lshl_b32 s{lw}, s{lw}, 10")
        a(f"v_lshl_add_u32 v{v}, v{c.lane}, 4, s{lw}")
        a(f"s_mul_i32 s{sp}, s{s_rb}, {10*128*16}")
        a(f"s_add_u32 s{sp}, s{sp}, {px_off}")
        a(f"s_mul_i32 s{sq}, s{s_ct}, {10*128*8}")
        a(f"s_add_u32 s{sq}, s{sq}, {pw_off}")
        def fn():
            for i in range(5):
                dst = XS + 4096 * i if i < 4 else WS
                a(f"s_add_u32 m0, s{lw}, {dst}")
                a(f"s_add_u32 s{self.soff}, s{sp}, {4096*i}")
                a(f"buffer_load_dwordx4 v{v}, s[{srdS}:{srdS+3}], s{self.soff} offen sc1 lds")
            lab = a.newlabel("sd_skip")
            for i in range(3):
                if i == 2:
                    a(f"s_cmp_ge_u32 s{lw}, 2048")
                    a(f"s_cbranch_scc1 {lab}")
                a(f"s_add_u32 m0, s{lw}, {WS + 4096 + 4096*i}")
                a(f"s_add_u32 s{self.soff}, s{sq}, {4096*i}")
                a(f"buffer_load_dwordx4 v{v}, s[{srdS}:{srdS+3}], s{self.soff} offen sc1 lds")
            a.label(lab)
        return (7, fn, 9)

    def compute_setup(self):
        c, a = self.c, self.c.a
        lane = c.lane
        BN = self.BN
        t0 = c.v.get("ct0"); t1 = c.v.get("ct1"); t2 = c.v.get("ct2"); t3 = c.v.get("ct3")
        self.tmp = [t0, t1, t2, t3]
        self.vt = c.v.get("vt"); self.vh = c.v.get("vh")
        a(f"v_and_b32 v{self.vt}, 31, v{lane}")
        a(f"v_lshrrev_b32 v{self.vh}, 5, v{lane}")
        self.s_tt = [c.s.get(f"s_tt{i}") for i in range(self.NT_T)]
        self.s_ft = [c.s.get(f"s_ft{i}") for i in range(2)]
        st = c.s.get("cs_tmp"); st2 = c.s.get("cs_tmp2")
        self.stmp = [st, st2]
        w = c.swave
        if BN == 128:
            a(f"s_lshr_b32 s{st}, s{w}, 1")
            a(f"s_and_b32 s{st2}, s{w}, 1")
            a(f"s_lshl_b32 s{self.s_tt[0]}, s{st}, 1")
            a(f"s_add_u32 s{self.s_tt[0]}, s{self.s_tt[0]}, s{st2}")
            a(f"s_xor_b32 s{self.s_tt[1]}, s{self.s_tt[0]}, 1")
            a(f"s_lshl_b32 s{self.s_ft[0]}, s{st2}, 1")
            a(f"s_add_u32 s{self.s_ft[0]}, s{self.s_ft[0]}, s{st}")
            a(f"s_xor_b32 s{self.s_ft[1]}, s{self.s_ft[0]}, 1")
        else:
            a(f"s_mov_b32 s{self.s_tt[0]}, s{w}")
            a(f"s_mov_b32 s{self.s_ft[0]}, 0")
            a(f"s_mov_b32 s{self.s_ft[1]}, 1")
        self.ax = {}
        for tt in range(self.NT_T):
            if self.xmode == 'T8':
                r = c.v.get(f"ax{tt}")
                a(f"s_lshl_b32 s{st}, s{self.s_tt[tt]}, 9")
                a(f"s_add_u32 s{st}, s{st}, {XBASE}")
                a(f"v_lshlrev_b32 v{t0}, 4, v{self.vt}")
                a(f"v_lshl_add_u32 v{t0}, v{self.vh}, 11, v{t0}")
                a(f"v_add_u32 v{r}, s{st}, v{t0}")
                for s in range(4):
                    self.ax[(tt, s)] = (r, s * 4096)
            else:
                for s in range(4):
                    r = c.v.get(f"ax{tt}_{s}")
                    a(f"s_lshl_b32 s{st}, s{self.s_tt[tt]}, 12")
                    a(f"s_add_u32 s{st}, s{st}, {XBASE}")
                    a(f"v_bfe_u32 v{t0}, v{self.vt}, 1, 3")
                    a(f"v_add_u32 v{t1}, {2*s}, v{self.vh}")
                    a(f"v_xor_b32 v{t0}, v{t0}, v{t1}")
                    a(f"v_lshlrev_b32 v{t0}, 4, v{t0}")
                    a(f"v_lshl_add_u32 v{t0}, v{self.vt}, 7, v{t0}")
                    a(f"v_add_u32 v{r}, s{st}, v{t0}")
                    self.ax[(tt, s)] = (r, 0)
        self.aw = {}
        rowb = BN * 2
        for ft in range(2):
            r = [c.v.get(f"aw{ft}_{b}") for b in range(self.nwb)]
            a(f"v_bfe_u32 v{t0}, v{lane}, 2, 2")
            if BN == 128:
                a(f"v_xor_b32 v{t1}, s{self.s_ft[ft]}, v{t0}")
            else:
                a(f"v_lshrrev_b32 v{t1}, 1, v{t0}")
                a(f"v_xor_b32 v{t1}, s{self.s_ft[ft]}, v{t1}")
            a(f"v_lshlrev_b32 v{t1}, 2, v{t1}")
            a(f"v_bfe_u32 v{t2}, v{lane}, 4, 1")
            a(f"v_lshl_add_u32 v{t1}, v{t2}, 1, v{t1}")
            a(f"v_bfe_u32 v{t2}, v{lane}, 1, 1")
            a(f"v_add_u32 v{t1}, v{t1}, v{t2}")
            a(f"v_lshlrev_b32 v{t1}, 4, v{t1}")
            a(f"v_and_b32 v{t2}, 1, v{lane}")
            a(f"v_lshl_add_u32 v{t1}, v{t2}, 3, v{t1}")
            a(f"v_lshl_add_u32 v{t0}, v{self.vh}, 3, v{t0}")
            a(f"v_mul_u32_u24 v{t0}, {rowb}, v{t0}")
            a(f"v_add_u32 v{t0}, v{t0}, v{t1}")
            a(f"v_add_u32 v{r[0]}, {WBASE}, v{t0}")
            for b in range(1, self.nwb):
                a(f"v_add_u32 v{r[b]}, {b*self.wper*self.WSLOT}, v{r[0]}")
            self.aw[ft] = r
        self.XA = [[c.v.get(f"xa{s}{tt}", 4, 2) for tt in range(self.NT_T)] for s in range(self.LA + 1)]
        self.WA = [[c.v.get(f"wa{s}{ft}", 4, 2) for ft in range(2)] for s in range(self.LA + 1)]
        self.ACC = [[c.v.get(f"acc{tt}{ft}", 16, 2) for ft in range(2)] for tt in range(self.NT_T)]
        if self.stats:
            self.xs = [c.v.get("xs0"), c.v.get("xs1")]
            self.xq = [c.v.get("xq0"), c.v.get("xq1")]
            self.cs = [c.v.get("cs0"), c.v.get("cs1")]
            self.sones = c.s.get("ones")
            a(f"s_mov_b32 s{self.sones}, {ONES:#x}")
            for r in self.xs + self.xq + self.cs:
                a(f"v_mov_b32 v{r}, 0")

    def reads(self, q):
        st, s = divmod(q, 4)
        setn = q % (self.LA + 1)
        out = []
        rowb = self.BN * 2
        xo = (st % self.NX) * 16384
        wslot = st % self.NW
        wb, wo = wslot // self.wper, (wslot % self.wper) * self.WSLOT
        for tt in range(self.NT_T):
            r, off = self.ax[(tt, s)]
            out.append(f"ds_read_b128 {vr(self.XA[setn][tt],4)}, v{r} offset:{xo + off}")
        for ft in range(2):
            for u in range(2):
                out.append(f"ds_read_b64_tr_b16 {vr(self.WA[setn][ft] + 2*u, 2)}, v{self.aw[ft][wb]} offset:{wo + (16*s + 4*u)*rowb}")
        return out

    def mainloop(self, tag, orient, hooks=None, pre=None, fillers=None):
        c, a = self.c, self.c.a
        hooks = hooks or {}; pre = pre or {}; fillers = fillers or {}
        Q = self.nst * 4
        LA = self.LA
        nset = LA + 1
        c.barrier(f"{tag}B0")
        for q0 in range(LA):
            for r in self.reads(q0):
                a(r)
        nrd = len(self.reads(0))
        for q in range(Q):
            setn = q % nset
            nxt = q + LA
            opens_stage = nxt < Q and nxt % 4 == 0
            last_of_ring = (q == Q - LA)
            if opens_stage or last_of_ring:
                a("s_waitcnt lgkmcnt(0)")
                c.barrier(f"{tag}B{nxt//4}" if nxt < Q else f"{tag}Bend")
            else:
                pending = min(LA - 1, Q - 1 - q)
                a(f"s_waitcnt lgkmcnt({min(15, pending * nrd)})")
            if q in pre: pre[q]()
            rd = self.reads(nxt) if nxt < Q else []
            mf = []
            for tt in range(self.NT_T):
                for ft in range(2):
                    acc = vr(self.ACC[tt][ft], 16)
                    cc = "0" if q == 0 else acc
                    x, w = vr(self.XA[setn][tt], 4), vr(self.WA[setn][ft], 4)
                    if orient == 'TN':
                        mf.append(f"v_mfma_f32_32x32x16_bf16 {acc}, {w}, {x}, {cc}")
                    else:
                        mf.append(f"v_mfma_f32_32x32x16_bf16 {acc}, {x}, {w}, {cc}")
            dots = []
            if self.stats and q < 4:
                for j in range(4):
                    x = self.XA[setn][0] + j
                    dots.append(f"v_dot2c_f32_bf16 v{self.xs[j&1]}, s{self.sones}, v{x}")
                    dots.append(f"v_dot2c_f32_bf16 v{self.xq[j&1]}, v{x}, v{x}")
                    dots.append(f"v_dot2c_f32_bf16 v{self.cs[j&1]}, s{self.sones}, v{self.WA[setn][0]+j}")
            nm = len(mf)
            fill = [[] for _ in range(nm)]
            half = (len(rd) + 1) // 2
            fill[0] += rd[:half]; fill[1] += rd[half:]
            fl = fillers.get(q, [])
            if fl:
                wts = [1, 1] + [3] * (nm - 2) if nm > 2 else [1] * nm
                tot = sum(wts); pos = 0
                for i in range(nm):
                    n = len(fl) - pos if i == nm - 1 else (len(fl) * wts[i] + tot - 1) // tot
                    fill[i] += fl[pos:pos + n]; pos = min(len(fl), pos + n)
            if dots:
                fill[nm - 1] += dots
            for i, (m, f) in enumerate(zip(mf, fill)):
                a(m)
                for x in f:
                    a(x)
                if i == nm - 1 and q in hooks:
                    hooks[q]()
            if PROF and tag == PROFTAG and q % 4 == 3 and q // 4 < 12:
                c.stamp(27 + q // 4)

    def stats_setup(self, srdS, px_off, pw_off, s_rb, s_ct, s_sigma):
        c, a = self.c, self.c.a
        self.srdS = srdS
        t0, t1, t2, t3 = self.tmp
        st, st2 = self.stmp
        vt, vh = self.vt, self.vh
        BIG = 0x40000000
        self.vpx = c.v.get("vpx"); self.vpw = c.v.get("vpw")
        a(f"s_mul_i32 s{st}, s{s_rb}, 10")
        a(f"s_add_u32 s{st}, s{st}, s{s_sigma}")
        a(f"s_lshl_b32 s{st}, s{st}, 2")
        a(f"s_add_u32 s{st}, s{st}, s{self.s_tt[0]}")
        a(f"s_lshl_b32 s{st}, s{st}, 9")
        a(f"s_add_u32 s{st}, s{st}, {px_off}")
        a(f"s_cmp_lt_u32 s{s_ct}, 10")
        a(f"s_cselect_b32 s{st2}, 0, {BIG}")
        a(f"s_add_u32 s{st}, s{st}, s{st2}")
        a(f"v_lshl_add_u32 v{t0}, v{vt}, 4, s{st}")
        a(f"v_lshl_add_u32 v{self.vpx}, v{vh}, 3, v{t0}")
        a(f"s_mul_i32 s{st}, s{s_ct}, 10")
        a(f"s_add_u32 s{st}, s{st}, s{s_sigma}")
        a(f"s_lshl_b32 s{st}, s{st}, 2")
        a(f"s_add_u32 s{st}, s{st}, s{self.s_ft[0]}")
        a(f"s_lshl_b32 s{st}, s{st}, 8")
        a(f"s_add_u32 s{st}, s{st}, {pw_off}")
        a(f"s_cmp_lt_u32 s{s_rb}, 10")
        a(f"s_cselect_b32 s{st2}, 0, {BIG}")
        a(f"s_add_u32 s{st}, s{st}, s{st2}")
        a(f"v_lshl_add_u32 v{t0}, v{vt}, 3, s{st}")
        a(f"v_lshl_add_u32 v{self.vpw}, v{vh}, 30, v{t0}")
        self.vgx = c.v.get("vgx"); self.vgw = c.v.get("vgw")
        a(f"s_mul_i32 s{st}, s{s_rb}, {10*128*16}")
        a(f"s_add_u32 s{st}, s{st}, {px_off}")
        a(f"v_mov_b32 v{t0}, s{self.s_tt[0]}")
        a(f"v_xor_b32 v{t0}, v{t0}, v{vh}")
        a(f"v_lshl_add_u32 v{t0}, v{t0}, 5, v{vt}")
        a(f"v_lshl_add_u32 v{self.vgx}, v{t0}, 4, s{st}")
        a(f"s_mul_i32 s{st}, s{s_ct}, {10*128*8}")
        a(f"s_add_u32 s{st}, s{st}, {pw_off}")
        a(f"v_mov_b32 v{t0}, s{self.s_ft[0]}")
        a(f"v_xor_b32 v{t0}, v{t0}, v{vh}")
        a(f"v_lshl_add_u32 v{t0}, v{t0}, 5, v{vt}")
        a(f"v_lshl_add_u32 v{self.vgw}, v{t0}, 3, s{st}")
        XS, WS = self.stats_lds()
        self.vlx = c.v.get("vlx"); self.vlx2 = c.v.get("vlx2"); self.vlw = c.v.get("vlw")
        a(f"v_mov_b32 v{t0}, s{self.s_tt[0]}")
        a(f"v_xor_b32 v{t0}, v{t0}, v{vh}")
        a(f"v_lshl_add_u32 v{t0}, v{t0}, 5, v{vt}")
        a(f"v_lshlrev_b32 v{t0}, 4, v{t0}")
        a(f"v_add_u32 v{self.vlx}, {XS}, v{t0}")
        a(f"v_add_u32 v{self.vlx2}, {WS}, v{t0}")
        a(f"v_mov_b32 v{t0}, s{self.s_ft[0]}")
        a(f"v_xor_b32 v{t0}, v{t0}, v{vh}")
        a(f"v_lshl_add_u32 v{t0}, v{t0}, 5, v{vt}")
        a(f"v_lshlrev_b32 v{t0}, 3, v{t0}")
        a(f"v_add_u32 v{self.vlw}, {WS + 4096}, v{t0}")
        self.GX = c.v.get("gx", 40, 2); self.GW = c.v.get("gw", 20, 2)
        self.vtag = c.v.get("vtag"); self.vbadlo = c.v.get("vlo"); self.vbadhi = c.v.get("vhi")
        self.PK = c.v.get("pk", 4, 2)
        self.sg = c.s.get("sg"); self.scnt = c.s.get("scnt")

    def gather_loads(self):
        a = self.c.a
        srdS = self.srdS
        for z in range(10):
            a(f"s_mov_b32 s{self.sg}, {z*2048}")
            a(f"buffer_load_dwordx4 {vr(self.GX+4*z,4)}, v{self.vgx}, s[{srdS}:{srdS+3}], s{self.sg} offen sc1")
            a(f"s_mov_b32 s{self.sg}, {z*1024}")
            a(f"buffer_load_dwordx2 {vr(self.GW+2*z,2)}, v{self.vgw}, s[{srdS}:{srdS+3}], s{self.sg} offen sc1")

    def finish_list(self, eps=1e-5):
        GX, GW = self.GX, self.GW
        lo, hi = self.vbadlo, self.vbadhi
        L = []
        tags = [GX + 4*z + 1 for z in range(10)] + [GX + 4*z + 3 for z in range(10)] + [GW + 2*z + 1 for z in range(10)]
        L.append(f"v_min_u32 v{lo}, v{tags[0]}, v{tags[1]}")
        L.append(f"v_max_u32 v{hi}, v{tags[0]}, v{tags[1]}")
        rest = tags[2:]
        adds = []
        for z in range(1, 10):
            adds.append(f"v_add_f32 v{GX}, v{GX}, v{GX+4*z}")
            adds.append(f"v_add_f32 v{GX+2}, v{GX+2}, v{GX+4*z+2}")
            adds.append(f"v_add_f32 v{GW}, v{GW}, v{GW+2*z}")
        chk = []
        for i in range(0, len(rest), 2):
            chk.append(f"v_min3_u32 v{lo}, v{rest[i]}, v{rest[i+1]}, v{lo}")
            chk.append(f"v_max3_u32 v{hi}, v{rest[i]}, v{rest[i+1]}, v{hi}")
        while adds or chk:
            if adds: L.append(adds.pop(0))
            if chk: L.append(chk.pop(0))
        L.append(f"v_mul_f32 v{GX}, {fbits(1.0/D):#x}, v{GX}")
        L.append(f"v_mul_f32 v{GX+2}, {fbits(1.0/D):#x}, v{GX+2}")
        L.append(f"v_fma_f32 v{GX+2}, -v{GX}, v{GX}, v{GX+2}")
        L.append(f"v_max_f32 v{GX+2}, 0, v{GX+2}")
        L.append(f"v_add_f32 v{GX+2}, {fbits(eps):#x}, v{GX+2}")
        L.append(f"v_rsq_f32 v{GX+2}, v{GX+2}")
        L.append(f"v_xor_b32 v{lo}, v{lo}, v{self.vtag}")
        L.append(f"v_xor_b32 v{hi}, v{hi}, v{self.vtag}")
        L.append(f"v_mul_f32 v{GX}, v{GX}, v{GX+2}")
        L.append(f"v_or_b32 v{lo}, v{lo}, v{hi}")
        L.append(f"v_sub_f32 v{GX}, 0, v{GX}")
        return L

    def stats_plan(self):
        c, a = self.c, self.c.a
        t0, t1, t2, t3 = self.tmp
        xs, xq, cs = self.xs, self.xq, self.cs
        srdS = self.srdS
        PK = self.PK
        def publish_partials():
            a("s_waitcnt vmcnt(0)")
            a(f"v_add_u32 v{self.vtag}, 1, v{V_GEN}")
            a(f"v_add_f32 v{xs[0]}, v{xs[0]}, v{xs[1]}")
            a(f"v_add_f32 v{xq[0]}, v{xq[0]}, v{xq[1]}")
            a(f"v_add_f32 v{cs[0]}, v{cs[0]}, v{cs[1]}")
            a(f"v_mov_b32 v{t0}, v{xs[0]}")
            a(f"v_mov_b32 v{t1}, v{xq[0]}")
            a(f"v_mov_b32 v{t2}, v{cs[0]}")
            a("s_nop 1")
            a(f"v_permlane32_swap_b32 v{t0}, v{xs[0]}")
            a(f"v_permlane32_swap_b32 v{t1}, v{xq[0]}")
            a(f"v_permlane32_swap_b32 v{t2}, v{cs[0]}")
            a(f"v_cmp_eq_u32 vcc, 0, v{self.vh}")
            a(f"v_mov_b32 v{PK+1}, v{self.vtag}")
            a(f"v_mov_b32 v{PK+3}, v{self.vtag}")
            a(f"v_add_f32 v{xs[0]}, v{xs[0]}, v{t0}")
            a(f"v_add_f32 v{xq[0]}, v{xq[0]}, v{t1}")
            a(f"v_add_f32 v{PK+2}, v{cs[0]}, v{t2}")
            a(f"v_cndmask_b32 v{PK}, v{xq[0]}, v{xs[0]}, vcc")
            a(f"buffer_store_dwordx2 {vr(PK+2,2)}, v{self.vpw}, s[{srdS}:{srdS+3}], 0 offen sc1")
            a(f"buffer_store_dwordx2 {vr(PK,2)}, v{self.vpx}, s[{srdS}:{srdS+3}], 0 offen sc1")
        Q = self.nst * 4
        L = self.finish_list()
        n = (len(L) + 2) // 3
        fillers = {Q - 3 + i: L[i*n:(i+1)*n] for i in range(3)}
        fillers[Q - 5] = [f"ds_read_b128 {vr(self.GX+4*z,4)}, v{self.vlx if z < 8 else self.vlx2} offset:{(z % 8)*2048}" for z in range(10)]
        fillers[Q - 4] = [f"ds_read_b64 {vr(self.GW+2*z,2)}, v{self.vlw} offset:{z*1024}" for z in range(10)]
        hooks = {4: publish_partials}
        return hooks, {}, fillers

    def stats_check(self):
        c, a = self.c, self.c.a
        lo = self.vbadlo
        lok = a.newlabel("st_ok"); lp = a.newlabel("st_retry")
        if "forceretry" in TOG: a(f"v_mov_b32 v{lo}, 1")
        a(f"v_cmp_ne_u32 vcc, 0, v{lo}")
        a("s_cmp_eq_u64 vcc, 0")
        a(f"s_cbranch_scc1 {lok}")
        a(f"s_mov_b32 s{self.scnt}, {SPIN_MAX // 8}")
        a.label(lp)
        self.gather_loads()
        a("s_waitcnt vmcnt(0)")
        for l in self.finish_list():
            if l.startswith("v_xor_b32 v%d," % lo): a("s_nop 0")
            a(l)
        a(f"v_cmp_ne_u32 vcc, 0, v{lo}")
        a("s_cmp_eq_u64 vcc, 0")
        a(f"s_cbranch_scc1 {lok}")
        a(f"s_sub_u32 s{self.scnt}, s{self.scnt}, 1")
        a(f"s_cmp_lg_u32 s{self.scnt}, 0")
        a(f"s_cbranch_scc1 {lp}")
        a.label(lok)


def both_halves(a, src, d0, d1):
    a(f"v_mov_b32 v{d0}, v{src}")
    a(f"v_mov_b32 v{d1}, v{src}")
    a("s_nop 1")
    a(f"v_permlane32_swap_b32 v{d0}, v{d1}")


def swap_pack_store(a, vals, P, addr, srd_, soffs, sc="sc1"):
    for g in range(4):
        a(f"v_cvt_pk_bf16_f32 v{P+2*g}, v{vals+4*g}, v{vals+4*g+1}")
        a(f"v_cvt_pk_bf16_f32 v{P+2*g+1}, v{vals+4*g+2}, v{vals+4*g+3}")
    a("s_nop 1")
    for g in (0, 2):
        a(f"v_permlane32_swap_b32 v{P+2*g}, v{P+2*g+2}")
        a(f"v_permlane32_swap_b32 v{P+2*g+1}, v{P+2*g+3}")
    for i, g in enumerate((0, 2)):
        a(f"buffer_store_dwordx4 {vr(P+2*g,4)}, v{addr}, s[{srd_}:{srd_+3}], s{soffs[i]} offen {sc}")


def map_gemm(c, nhalf, s_rb, s_ct, t):
    a = c.a
    a(f"s_lshr_b32 s{s_rb}, s{S_XCD}, 1")
    a(f"s_lshl_b32 s{s_rb}, s{s_rb}, 2")
    a(f"s_and_b32 s{t}, s{S_J}, 3")
    a(f"s_add_u32 s{s_rb}, s{s_rb}, s{t}")
    a(f"s_and_b32 s{t}, s{S_XCD}, 1")
    a(f"s_mul_i32 s{t}, s{t}, {nhalf}")
    a(f"s_lshr_b32 s{s_ct}, s{S_J}, 2")
    a(f"s_add_u32 s{s_ct}, s{s_ct}, s{t}")


def sigma_of(c, s_sig, s_rb, s_ct, t):
    a = c.a
    a(f"s_add_u32 s{s_sig}, s{s_rb}, s{s_ct}")
    a(f"s_mul_i32 s{t}, s{s_sig}, 26")
    a(f"s_lshr_b32 s{t}, s{t}, 8")
    a(f"s_mul_i32 s{t}, s{t}, 10")
    a(f"s_sub_u32 s{s_sig}, s{s_sig}, s{t}")
    if "nosig" in sys.argv: a(f"s_mov_b32 s{s_sig}, 0")


def ws_srd(a, s, off, size):
    srd(a, s, PTR[P_WS], size, off)


def wave0_poll(c, line_base, s_idx, nwords, first_line_delta=0):
    a = c.a
    lab = a.newlabel("nopoll")
    m = c.v.mark(); ms = c.s.mark()
    va = c.v.get("pa"); vtmp = c.v.get("pt"); st = c.s.get("pst"); sm = c.s.get("pm", 2, 2); sc = c.s.get("pc", 4, 2)
    a(f"s_cmp_lg_u32 s{S_WAVE}, 0")
    a(f"s_cbranch_scc1 {lab}")
    flag_line(c, st, line_base, s_idx)
    a(f"v_lshl_add_u32 v{va}, v{c.lane}, 2, s{st}")
    a(f"s_mov_b32 s{sm}, {(1 << nwords) - 1:#x}")
    a(f"s_mov_b32 s{sm+1}, 0")
    poll(c, va, sm, vtmp, sc)
    a.label(lab)
    c.v.reset(m); c.s.reset(ms)


def phase_qkv_compute(c, s_rb, s_ct):
    a = c.a
    vm, sm = c.v.mark(), c.s.mark()
    s_tok0 = c.s.get("tok0"); s_sig = c.s.get("sig"); t = c.s.get("t")
    a(f"s_lshl_b32 s{s_tok0}, s{s_rb}, 7")
    sigma_of(c, s_sig, s_rb, s_ct, t)
    sQK, sVT, sST = SRD_A, SRD_B, SRD_C
    ws_srd(a, sQK, QK_OFF, QK_SZ); ws_srd(a, sVT, VT_OFF, VT_SZ); ws_srd(a, sST, ST_OFF, ST_SZ)
    g = Gemm(c, 128, 'row', 10, 4, 4, stats=True, rotate=True)
    g.compute_setup()
    g.stats_setup(sST, 0, PX_SZ, s_rb, s_ct, s_sig)
    CSV = g.GX + 4; NMV = g.GX + 20; TP = g.GW + 2; P = g.GW + 10
    vR = [c.v.get("vR0", 2, 2), c.v.get("vR1", 2, 2)]
    vN = [c.v.get("vN0", 2, 2), c.v.get("vN1", 2, 2)]
    vad = c.v.get("vad"); vad2 = c.v.get("vad2"); vl = c.v.get("vl")
    so = [c.s.get("so0"), c.s.get("so1")]
    t0, t1, t2v, t3 = g.tmp
    st = g.stmp[0]
    s_priv = c.s.get("priv")
    a(f"s_mul_i32 s{s_priv}, s{S_WAVE}, 768")
    lnt = a.newlabel("qkv_nt"); lend = a.newlabel("qkv_end")
    a(f"s_cmp_ge_u32 s{s_ct}, 10")
    a(f"s_cbranch_scc1 {lnt}")
    bar0 = list(c.bar)
    c.stamp(1)
    g.mainloop("q", 'TN', *g.stats_plan())
    c.stamp(2)
    g.stats_check()
    a(f"s_cmp_lt_u32 s{s_ct}, 5")
    a(f"s_cselect_b32 s{st}, {fbits(20 ** -0.5 * math.log2(math.e)):#x}, 1.0")
    a(f"v_mul_f32 v{g.GX}, s{st}, v{g.GX}")
    a(f"v_mul_f32 v{g.GX+2}, s{st}, v{g.GX+2}")
    both_halves(a, g.GX + 2, vR[0], vR[1])
    both_halves(a, g.GX, vN[0], vN[1])
    a(f"v_lshl_add_u32 v{vl}, v{c.lane}, 2, s{s_priv}")
    a(f"ds_write_b32 v{vl}, v{g.GW}")
    a(f"v_lshl_add_u32 v{vl}, v{g.vh}, 4, s{s_priv}")
    a("s_waitcnt lgkmcnt(0)")
    for ft in range(2):
        for gg in range(4):
            a(f"ds_read_b128 {vr(CSV+4*gg,4)}, v{vl} offset:{128*ft+32*gg}")
        a("s_waitcnt lgkmcnt(0)")
        for tt in range(2):
            acc = g.ACC[tt][ft]
            for i in range(0, 16, 2):
                a(f"v_pk_mul_f32 {vr(TP+i%8,2)}, {vr(CSV+i,2)}, {vr(vN[tt],2)} op_sel_hi:[1,0]")
                if i >= 4:
                    j = i - 4
                    a(f"v_pk_fma_f32 {vr(acc+j,2)}, {vr(acc+j,2)}, {vr(vR[tt],2)}, {vr(TP+j%8,2)} op_sel_hi:[1,0,1]")
            for j in (12, 14):
                a(f"v_pk_fma_f32 {vr(acc+j,2)}, {vr(acc+j,2)}, {vr(vR[tt],2)}, {vr(TP+j%8,2)} op_sel_hi:[1,0,1]")
            a(f"s_lshl_b32 s{st}, s{g.s_tt[tt]}, 5")
            a(f"s_add_u32 s{st}, s{st}, s{s_tok0}")
            a(f"v_add_u32 v{vad}, s{st}, v{g.vt}")
            a(f"v_lshlrev_b32 v{vad}, 4, v{vad}")
            a(f"v_lshl_add_u32 v{vad}, v{g.vh}, 15, v{vad}")
            a(f"s_lshl_b32 s{so[0]}, s{s_ct}, 2")
            a(f"s_add_u32 s{so[0]}, s{so[0]}, s{g.s_ft[ft]}")
            a(f"s_lshl_b32 s{so[0]}, s{so[0]}, 17")
            a(f"s_add_u32 s{so[1]}, s{so[0]}, {2*32768}")
            swap_pack_store(a, acc, P, vad, sQK, so)
            a("s_nop 1")
    a(f"s_branch {lend}")
    barT = list(c.bar)
    c.bar = list(bar0)
    a.label(lnt)
    c.stamp(1)
    g.mainloop("q", 'NT', *g.stats_plan())
    c.stamp(2)
    g.stats_check()
    vC = vR
    both_halves(a, g.GW, vC[0], vC[1])
    a(f"v_lshl_add_u32 v{vl}, v{c.lane}, 2, s{s_priv}")
    a(f"ds_write_b32 v{vl}, v{g.GX+2}")
    a(f"ds_write_b32 v{vl}, v{g.GX} offset:256")
    a(f"v_lshl_add_u32 v{vl}, v{g.vh}, 4, s{s_priv}")
    a("s_waitcnt lgkmcnt(0)")
    for tt in range(2):
        for gg in range(4):
            a(f"ds_read_b128 {vr(CSV+4*gg,4)}, v{vl} offset:{128*tt+32*gg}")
            a(f"ds_read_b128 {vr(NMV+4*gg,4)}, v{vl} offset:{256+128*tt+32*gg}")
        a("s_waitcnt lgkmcnt(0)")
        for ft in range(2):
            acc = g.ACC[tt][ft]
            for i in range(0, 16, 2):
                a(f"v_pk_mul_f32 {vr(TP+i%8,2)}, {vr(NMV+i,2)}, {vr(vC[ft],2)} op_sel_hi:[1,0]")
                if i >= 4:
                    j = i - 4
                    a(f"v_pk_fma_f32 {vr(acc+j,2)}, {vr(acc+j,2)}, {vr(CSV+j,2)}, {vr(TP+j%8,2)}")
            for j in (12, 14):
                a(f"v_pk_fma_f32 {vr(acc+j,2)}, {vr(acc+j,2)}, {vr(CSV+j,2)}, {vr(TP+j%8,2)}")
            a(f"s_sub_u32 s{st}, s{s_ct}, 10")
            a(f"s_lshl_b32 s{st}, s{st}, 2")
            a(f"s_add_u32 s{st}, s{st}, s{g.s_ft[ft]}")
            a(f"s_lshl_b32 s{st}, s{st}, 5")
            a(f"v_add_u32 v{vad}, s{st}, v{g.vt}")
            a(f"v_lshlrev_b32 v{vad}, 4, v{vad}")
            a(f"v_mul_u32_u24 v{vad2}, 10240, v{g.vh}")
            a(f"v_add_u32 v{vad}, v{vad}, v{vad2}")
            a(f"s_lshl_b32 s{st}, s{g.s_tt[tt]}, 2")
            a(f"s_lshr_b32 s{so[0]}, s{s_tok0}, 3")
            a(f"s_add_u32 s{so[0]}, s{so[0]}, s{st}")
            a(f"s_mul_i32 s{so[0]}, s{so[0]}, 10240")
            a(f"s_add_u32 s{so[1]}, s{so[0]}, {2*10240}")
            swap_pack_store(a, acc, P, vad, sVT, so)
            a("s_nop 1")
    assert c.bar == barT
    a.label(lend)
    c.stamp(3)
    flag_line(c, st, FL_QKV, s_rb)
    a(f"s_lshl_b32 s{t}, s{s_ct}, 2")
    a(f"s_add_u32 s{st}, s{st}, s{t}")
    publish(c, 0, 4, st, t0, t1)
    c.stamp(4)
    c.v.reset(vm); c.s.reset(sm)


def phase_qkv_loader(c, s_rb, s_ct):
    a = c.a
    vm, sm = c.v.mark(), c.s.mark()
    s_tok0 = c.s.get("tok0"); s_colb = c.s.get("colb"); s_sig = c.s.get("sig"); t = c.s.get("t")
    a(f"s_lshl_b32 s{s_tok0}, s{s_rb}, 7")
    a(f"s_lshl_b32 s{s_colb}, s{s_ct}, 8")
    sigma_of(c, s_sig, s_rb, s_ct, t)
    srd(a, SRD_A, PTR[P_X], S * D * 2)
    srd(a, SRD_B, PTR[P_WQKV], D * NQKV * 2)
    g = Gemm(c, 128, 'row', 10, 4, 4, rotate=True)
    g.loader_setup(SRD_A, SRD_B, s_tok0, s_colb, NQKV * 2, s_sig)
    ws_srd(a, SRD_C, ST_OFF, ST_SZ)
    ex = g.stats_dma(SRD_C, 0, PX_SZ, s_rb, s_ct)
    c.stamp(1)
    g.loader_main("q", both_at_start=True, extra=ex)
    c.stamp(2)
    c.v.reset(vm); c.s.reset(sm)


def phase_att(c, s_jj, rbw, ctw, ctf):
    a = c.a
    vm, sm = c.v.mark(), c.s.mark()
    KOFF, QOFF, VOFF = XBASE, XBASE + 30720, XBASE + 40960
    lane = c.lane
    w = S_WAVE
    s_rb = c.s.get("rb"); s_p = c.s.get("p"); t = c.s.get("t"); t2 = c.s.get("t2")
    a(f"s_and_b32 s{s_rb}, s{S_J}, 15")
    a(f"s_lshr_b32 s{t2}, s{S_J}, 4")
    a(f"s_lshl_b32 s{s_p}, s{S_XCD}, 1")
    a(f"s_add_u32 s{s_p}, s{s_p}, s{t2}")
    sQK, sVT, sO = SRD_C, SRD_D, SRD_E
    ws_srd(a, sQK, QK_OFF, QK_SZ); ws_srd(a, sVT, VT_OFF, VT_SZ); ws_srd(a, sO, O_OFF, O_SZ)
    v0_, v1_, v2_, v3_ = [c.v.get(f"t{i}") for i in range(4)]
    vkq = c.v.get("vkq"); vv = [c.v.get(f"vv{i}") for i in range(4)]
    s_col8 = c.s.get("col8"); s_ldsb = c.s.get("ldsb"); s_gp = c.s.get("gp"); s_off = c.s.get("off"); s_voff = c.s.get("voff")
    s_qt = c.s.get("qt"); s_hs = c.s.get("hs"); s_g0 = c.s.get("g0")
    s_vm = c.s.get("vmask", 2, 2); s_hm = c.s.get("hm", 2, 2)
    smk = c.s.mark()
    s_tokb = c.s.get("tokb"); s_t80 = c.s.get("t80")
    a(f"s_lshl_b32 s{s_tokb}, s{s_rb}, 7")
    a(f"s_lshl_b32 s{t}, s{w}, 6")
    a(f"s_add_u32 s{s_tokb}, s{s_tokb}, s{t}")
    a(f"s_cmp_lt_u32 s{w}, 6")
    a(f"s_cselect_b32 s{t}, 0, 128")
    a(f"s_add_u32 s{t}, s{t}, 256")
    a(f"s_sub_u32 s{s_tokb}, s{s_tokb}, s{t}")
    a(f"s_mul_i32 s{s_col8}, s{s_p}, 5")
    a(f"s_cmp_lt_u32 s{w}, 6")
    a(f"s_cselect_b32 s{t}, 80, 0")
    a(f"s_add_u32 s{s_col8}, s{s_col8}, s{t}")
    a(f"s_lshl_b32 s{s_ldsb}, s{w}, 10")
    a(f"s_cmp_lt_u32 s{w}, 6")
    a(f"s_cselect_b32 s{t}, 0, {QOFF - 6*1024 - KOFF}")
    a(f"s_add_u32 s{s_ldsb}, s{s_ldsb}, s{t}")
    a(f"s_add_u32 s{s_ldsb}, s{s_ldsb}, {KOFF}")
    a(f"s_cmp_lt_u32 s{w}, 6")
    a(f"s_cselect_b32 s{s_gp}, 4096, 0")
    a(f"s_add_u32 s{s_gp}, s{s_gp}, 2048")
    a(f"v_add_u32 v{vkq}, s{s_tokb}, v{lane}")
    a(f"v_max_i32 v{vkq}, 0, v{vkq}")
    a(f"v_lshlrev_b32 v{vkq}, 4, v{vkq}")
    a(f"s_lshl_b32 s{s_col8}, s{s_col8}, 15")
    a(f"s_lshl_b32 s{s_t80}, s{s_rb}, 4")
    a(f"s_sub_u32 s{s_t80}, s{s_t80}, 32")
    a(f"s_mul_i32 s{s_voff}, s{s_p}, 640")
    for i in range(4):
        a(f"s_lshl_b32 s{t}, s{w}, 6")
        a(f"s_add_u32 s{t}, s{t}, {512*i}")
        a(f"v_add_u32 v{v0_}, s{t}, v{lane}")
        a(f"v_mul_u32_u24 v{v1_}, 52429, v{v0_}")
        a(f"v_lshrrev_b32 v{v1_}, 21, v{v1_}")
        a(f"v_mul_u32_u24 v{v2_}, 40, v{v1_}")
        a(f"v_sub_u32 v{v2_}, v{v0_}, v{v2_}")
        a(f"v_add_u32 v{v1_}, s{s_t80}, v{v1_}")
        a(f"v_max_i32 v{v1_}, 0, v{v1_}")
        a(f"v_mul_u32_u24 v{v1_}, 10240, v{v1_}")
        a(f"v_lshl_add_u32 v{vv[i]}, v{v2_}, 4, v{v1_}")
    a(f"s_and_b32 s{s_qt}, s{w}, 3")
    a(f"s_lshr_b32 s{s_hs}, s{w}, 2")
    vt = c.v.get("vt"); vh = c.v.get("vh")
    a(f"v_and_b32 v{vt}, 31, v{lane}")
    a(f"v_lshrrev_b32 v{vh}, 5, v{lane}")
    aQ1 = c.v.get("aQ1"); aQ2 = c.v.get("aQ2"); aK1 = c.v.get("aK1"); aK2 = c.v.get("aK2"); aV = c.v.get("aV")
    a(f"s_mul_i32 s{s_g0}, s{s_hs}, 3")
    a(f"s_lshl_b32 s{t}, s{s_qt}, 9")
    a(f"v_lshl_add_u32 v{v0_}, v{vt}, 4, s{t}")
    a(f"v_add_u32 v{v1_}, s{s_g0}, v{vh}")
    a(f"v_lshl_add_u32 v{aQ1}, v{v1_}, 11, v{v0_}")
    a(f"v_add_u32 v{aQ1}, {QOFF}, v{aQ1}")
    a(f"v_add_u32 v{aQ2}, {QOFF + 2*2048}, v{v0_}")
    a(f"v_and_b32 v{v0_}, 0x13, v{vt}")
    a(f"v_bfe_u32 v{v2_}, v{vt}, 2, 1")
    a(f"v_lshl_or_b32 v{v0_}, v{v2_}, 3, v{v0_}")
    a(f"v_bfe_u32 v{v2_}, v{vt}, 3, 1")
    a(f"v_lshl_or_b32 v{v0_}, v{v2_}, 2, v{v0_}")
    a(f"v_lshl_add_u32 v{v0_}, v{v0_}, 4, s{t}")
    a(f"v_mul_u32_u24 v{v1_}, 6144, v{v1_}")
    a(f"v_add_u32 v{aK1}, v{v1_}, v{v0_}")
    a(f"v_add_u32 v{aK1}, {KOFF}, v{aK1}")
    a(f"v_add_u32 v{aK2}, {KOFF + 2*6144}, v{v0_}")
    a(f"s_lshl_b32 s{t}, s{s_hs}, 4")
    a(f"v_add_u32 v{v0_}, s{t}, v{vt}")
    a(f"v_lshlrev_b32 v{v0_}, 4, v{v0_}")
    a(f"s_lshl_b32 s{t}, s{s_qt}, 2")
    a(f"v_add_u32 v{v1_}, s{t}, v{vh}")
    a(f"v_mul_u32_u24 v{v1_}, 640, v{v1_}")
    a(f"v_add3_u32 v{aV}, v{v0_}, v{v1_}, 0")
    a(f"v_add_u32 v{aV}, {VOFF}, v{aV}")
    a(f"s_lshl_b32 s{t}, s{s_hs}, 2")
    a(f"v_subrev_u32 v{v0_}, s{t}, v{vt}")
    a(f"v_cmp_gt_u32 s[{s_vm}:{s_vm+1}], 20, v{v0_}")
    a(f"v_cmp_eq_u32 s[{s_hm}:{s_hm+1}], s{s_hs}, v{vh}")
    vd = c.v.get("vd")
    a(f"v_lshlrev_b32 v{v0_}, 3, v{vh}")
    a(f"v_sub_u32 v{vd}, v{vt}, v{v0_}")
    Q1 = c.v.get("Q1", 4, 2); Q2 = c.v.get("Q2", 4, 2)
    NK = 4
    K1r = [c.v.get(f"K1{i}", 4, 2) for i in range(NK)]; K2r = [c.v.get(f"K2{i}", 4, 2) for i in range(NK)]
    K1 = [K1r[i % NK] for i in range(9)]; K2 = [K2r[i % NK] for i in range(9)]
    VF = [c.v.get(f"VF{i}", 4, 2) for i in range(4)]
    O = c.v.get("O", 16, 2)
    SB = [c.v.get(f"S{i}", 16, 2) for i in range(3)]
    NEGM = c.v.get("negm", 16, 2)
    Z0 = c.v.get("z0", 16, 2); Z8 = c.v.get("z8", 16, 2)
    vneg = c.v.get("neg"); vmx = [c.v.get(f"m{i}") for i in range(4)]
    a(f"v_mov_b32 v{vneg}, {fbits(-1e30):#x}")
    for i in range(4):
        for j in range(4):
            a(f"v_mov_b32 v{VF[i]+j}, {ONES:#x}")
    vpf = c.v.get("vpf"); sPF = SRD_B
    s_src = c.s.get("psrc", 10); s_pd = c.s.get("pd"); s_dt = [c.s.get("pdt0"), c.s.get("pdt1")]
    lB = a.newlabel("pfB"); lE = a.newlabel("pfE"); lC = a.newlabel("pfC")
    a(f"s_cmp_ge_u32 s{s_jj}, 5")
    a(f"s_cbranch_scc1 {lB}")
    srd(a, sPF, PTR[P_WO], D * D * 2)
    a(f"v_lshrrev_b32 v{v0_}, 3, v{lane}")
    a(f"v_and_b32 v{v1_}, 7, v{lane}")
    a(f"v_bfe_u32 v{v2_}, v{lane}, 4, 1")
    a(f"v_lshlrev_b32 v{v2_}, 2, v{v2_}")
    a(f"v_xor_b32 v{v1_}, v{v1_}, v{v2_}")
    a(f"s_lshl_b32 s{t}, s{w}, 3")
    a(f"v_add_u32 v{v0_}, s{t}, v{v0_}")
    a(f"v_mul_u32_u24 v{v0_}, {D*2}, v{v0_}")
    a(f"v_lshl_add_u32 v{v0_}, v{v1_}, 4, v{v0_}")
    a(f"s_lshl_b32 s{t}, s{ctw}, 7")
    a(f"v_add_u32 v{vpf}, s{t}, v{v0_}")
    for n in range(10):
        a(f"s_mov_b32 s{s_src+n}, {n*64*D*2}")
    a(f"s_lshl_b32 s{s_pd}, s{w}, 10")
    a(f"s_add_u32 s{s_pd}, s{s_pd}, {WBASE}")
    a(f"s_mov_b32 s{s_dt[0]}, 8192"); a(f"s_mov_b32 s{s_dt[1]}, 8192")
    a(f"s_branch {lE}")
    a.label(lB)
    srd(a, sPF, PTR[P_W1], D * F * 2)
    a(f"s_cmp_ge_u32 s{s_jj}, 7")
    a(f"s_cselect_b32 s{sPF+2}, 0, s{sPF+2}")
    a(f"v_lshrrev_b32 v{v0_}, 4, v{lane}")
    a(f"v_and_b32 v{v1_}, 15, v{lane}")
    a(f"v_lshlrev_b32 v{v2_}, 2, v{v0_}")
    a(f"v_xor_b32 v{v1_}, v{v1_}, v{v2_}")
    a(f"s_lshl_b32 s{t}, s{w}, 3")
    a(f"v_add_u32 v{v0_}, s{t}, v{v0_}")
    a(f"v_mul_u32_u24 v{v0_}, {F*2}, v{v0_}")
    a(f"v_lshl_add_u32 v{v0_}, v{v1_}, 4, v{v0_}")
    a(f"s_lshl_b32 s{t}, s{ctf}, 8")
    a(f"v_add_u32 v{vpf}, s{t}, v{v0_}")
    sigma_of(c, s_pd, rbw, ctf, t)
    for st_ in range(5):
        a(f"s_add_u32 s{t}, s{s_pd}, {st_}")
        a(f"s_cmp_ge_u32 s{t}, 10")
        a(f"s_cselect_b32 s{t2}, 10, 0")
        a(f"s_sub_u32 s{t}, s{t}, s{t2}")
        a(f"s_mul_i32 s{s_src+2*st_}, s{t}, {64*F*2}")
        a(f"s_add_u32 s{s_src+2*st_+1}, s{s_src+2*st_}, {4*F*2}")
    a(f"s_lshl_b32 s{s_pd}, s{w}, 11")
    a(f"s_add_u32 s{s_pd}, s{s_pd}, {WBASE}")
    a(f"s_mov_b32 s{s_dt[0]}, 1024"); a(f"s_mov_b32 s{s_dt[1]}, {16384 - 1024}")
    a.label(lE)
    def prefetch_piece(n):
        if "nopf" in TOG: return
        if n == 0:
            a(f"s_mov_b32 m0, s{s_pd}")
            a("s_nop 0")
        a(f"buffer_load_dwordx4 v{vpf}, s[{sPF}:{sPF+3}], s{s_src+n} offen lds")
        if n < 9: a(f"s_add_u32 m0, m0, s{s_dt[n&1]}")
    lab = a.newlabel("att_nopoll")
    smk2 = c.s.mark()
    sm_ = c.s.get("pm", 2, 2); sc_ = c.s.get("pc", 4, 2)
    a(f"s_cmp_lg_u32 s{w}, 0")
    a(f"s_cbranch_scc1 {lab}")
    a(f"v_lshrrev_b32 v{v0_}, 4, v{lane}")
    a(f"v_add_u32 v{v0_}, s{s_rb}, v{v0_}")
    a(f"v_subrev_u32 v{v0_}, 2, v{v0_}")
    a(f"v_and_b32 v{v1_}, 15, v{lane}")
    a(f"v_cmp_le_i32 s[{sm_}:{sm_+1}], 0, v{v0_}")
    a(f"v_cmp_gt_u32 s[{sc_}:{sc_+1}], 15, v{v1_}")
    a(f"v_cmp_gt_u32 vcc, 48, v{lane}")
    a(f"v_add_u32 v{v0_}, {FL_QKV}, v{v0_}")
    a(f"v_lshlrev_b32 v{v0_}, 8, v{v0_}")
    a(f"v_lshl_add_u32 v{v0_}, v{v1_}, 2, v{v0_}")
    a(f"s_and_b64 s[{sm_}:{sm_+1}], s[{sm_}:{sm_+1}], s[{sc_}:{sc_+1}]")
    a(f"s_and_b64 s[{sm_}:{sm_+1}], s[{sm_}:{sm_+1}], vcc")
    poll(c, v0_, sm_, v2_, sc_)
    a.label(lab)
    c.stamp(5)
    c.barrier("aP")
    c.stamp(6)
    for G in range(5):
        a(f"s_mov_b32 m0, s{s_ldsb}")
        a(f"s_add_u32 s{s_off}, s{s_col8}, {G*32768}")
        a(f"buffer_load_dwordx4 v{vkq}, s[{sQK}:{sQK+3}], s{s_off} offen sc1 lds")
        a(f"s_add_u32 s{s_ldsb}, s{s_ldsb}, s{s_gp}")
    c.s.reset(smk2)
    s_mk = c.s.get("mk", 4, 2)
    s_g = s_col8
    a(f"s_lshl_b32 s{s_g}, s{s_rb}, 2")
    a(f"s_add_u32 s{s_g}, s{s_g}, s{s_qt}")
    def mkcmp(i):
        g_, r_ = divmod(i, 4)
        cr = 16 * (g_ >> 1) + 4 * (g_ & 1) + r_
        a(f"v_cmp_le_i32 s[{s_mk+2*(i&1)}:{s_mk+2*(i&1)+1}], {cr}, v{vd}")
    mkcmp(0); mkcmp(1)
    a("s_nop 0")
    for i in range(16):
        mk = f"s[{s_mk+2*(i&1)}:{s_mk+2*(i&1)+1}]"
        a(f"v_cndmask_b32 v{Z0+i}, 0, v{vneg}, {mk}")
        a(f"v_cndmask_b32 v{Z8+i}, v{vneg}, 0, {mk}")
        if i + 2 < 16: mkcmp(i + 2)
    a("s_waitcnt vmcnt(0)")
    c.barrier("aK")
    c.stamp(7)
    lv = a.newlabel("vskip")
    for i in range(4):
        if i == 3:
            a(f"s_cmp_ge_u32 s{w}, 6")
            a(f"s_cbranch_scc1 {lv}")
        a(f"s_lshl_b32 s{t}, s{w}, 10")
        a(f"s_add_u32 m0, s{t}, {VOFF + 8192*i}")
        a("s_nop 0")
        a(f"buffer_load_dwordx4 v{vv[i]}, s[{sVT}:{sVT+3}], s{s_voff} offen sc1 lds")
    a.label(lv)
    a(f"ds_read_b128 {vr(Q1,4)}, v{aQ1}")
    a(f"ds_read_b128 {vr(Q2,4)}, v{aQ2}")
    def kread(i):
        a(f"ds_read_b128 {vr(K1[i],4)}, v{aK1} offset:{i*512}")
        a(f"ds_read_b128 {vr(K2[i],4)}, v{aK2} offset:{i*512}")
    for i in range(3): kread(i)
    a(f"v_cmp_eq_u32 vcc, 0, v{vh}")
    a(f"s_cmp_eq_u32 s{s_hs}, 0")
    a(f"s_cselect_b64 s[{s_mk}:{s_mk+1}], vcc, 0")
    a(f"s_cselect_b64 s[{s_mk+2}:{s_mk+3}], 0, vcc")
    a("s_waitcnt lgkmcnt(6)")
    a(f"v_cndmask_b32 v{Q2}, 0, v{Q2}, s[{s_mk}:{s_mk+1}]")
    a(f"v_cndmask_b32 v{Q2+1}, 0, v{Q2+1}, s[{s_mk}:{s_mk+1}]")
    a(f"v_cndmask_b32 v{Q2+2}, 0, v{Q2+2}, s[{s_mk+2}:{s_mk+3}]")
    a(f"v_cndmask_b32 v{Q2+3}, 0, v{Q2+3}, s[{s_mk+2}:{s_mk+3}]")

    fixups = []
    def fix(i):
        if "nofix" in TOG or i == 8: return
        S_ = SB[i % 3]
        lab = a.newlabel("fixo"); back = a.newlabel("fixb")
        a(f"s_cmp_lt_u32 s{s_g}, {8 - i}")
        a(f"s_cbranch_scc1 {lab}")
        a.label(back)
        fixups.append((lab, back, S_))
    def cinit(i, plain):
        return vr(Z0, 16) if i == 0 else (vr(Z8, 16) if i == 8 else plain)
    done_at = {}
    PB = [c.v.get("PB0", 8, 2), c.v.get("PB1", 8, 2)]
    def qk1(i, cinit):
        a(f"v_mfma_f32_32x32x16_bf16 {vr(SB[i%3],16)}, {vr(K1[i],4)}, {vr(Q1,4)}, {cinit}")
    def qk2(i):
        a(f"v_mfma_f32_32x32x16_bf16 {vr(SB[i%3],16)}, {vr(K2[i],4)}, {vr(Q2,4)}, {vr(SB[i%3],16)}")
        done_at[i] = a.pos()
    def maxops(i):
        S_ = SB[i % 3]
        if i == 0:
            return [f"v_max3_f32 v{vmx[k]}, v{S_+4*k}, v{S_+4*k+1}, v{S_+4*k+2}" for k in range(4)] + \
                   [f"v_max_f32 v{vmx[k]}, v{vmx[k]}, v{S_+4*k+3}" for k in range(4)]
        return [f"v_max3_f32 v{vmx[k%4]}, v{S_+2*k}, v{S_+2*k+1}, v{vmx[k%4]}" for k in range(8)]
    for i in range(11):
        ops = []
        if i < 9:
            if i + 3 < 9:
                kread(i + 3)
                a("s_waitcnt lgkmcnt(6)")
            else:
                a(f"s_waitcnt lgkmcnt({2 * (8 - i)})")
            qk1(i, cinit(i, "0"))
        if i >= 2:
            a.need(done_at[i - 2], 12)
            fix(i - 2)
            ops = maxops(i - 2)
        for o in ops[:4]: a(o)
        if i < 9: qk2(i)
        for o in ops[4:]: a(o)
        if PROFTAG == 'a' and i < 9: c.stamp(41 + i)
    for i in range(4): kread(i)
    a(f"v_max3_f32 v{vmx[0]}, v{vmx[0]}, v{vmx[1]}, v{vmx[2]}")
    a(f"v_max_f32 v{vmx[0]}, v{vmx[0]}, v{vmx[3]}")
    a(f"v_mov_b32 v{vmx[1]}, v{vmx[0]}")
    a("s_nop 1")
    a(f"v_permlane32_swap_b32 v{vmx[0]}, v{vmx[1]}")
    a("s_nop 1")
    a(f"v_max_f32 v{vmx[0]}, v{vmx[0]}, v{vmx[1]}")
    for j in range(16):
        a(f"v_sub_f32 v{Z0+j}, v{Z0+j}, v{vmx[0]}")
    for j in range(16):
        a(f"v_sub_f32 v{NEGM+j}, 0, v{vmx[0]}")
    for j in range(16):
        a(f"v_sub_f32 v{Z8+j}, v{Z8+j}, v{vmx[0]}")
    c.stamp(9)
    negm = vr(NEGM, 16)
    a("s_waitcnt lgkmcnt(0)")
    qk1(0, cinit(0, negm)); qk1(1, negm); qk2(0); qk2(1)
    a("s_waitcnt vmcnt(0)")
    c.barrier("aV")
    def vread(i):
        a(f"s_mov_b64 exec, s[{s_vm}:{s_vm+1}]")
        for tt in range(2):
            a(f"ds_read_b128 {vr(VF[(2*i+tt)%4],4)}, v{aV} offset:{(4*i+2*tt)*640}")
        a("s_mov_b64 exec, -1")
    def pv(i, tt):
        if "nopv" in TOG: return
        cc = "0" if (i == 0 and tt == 0) else vr(O, 16)
        a(f"v_mfma_f32_32x32x16_bf16 {vr(O,16)}, {vr(VF[(2*i+tt)%4],4)}, {vr(PB[i&1]+4*tt,4)}, {cc}")
    for i in range(9):
        S_ = SB[i % 3]
        if i + 4 < 9: kread(i + 4)
        vread(i)
        a(f"s_waitcnt lgkmcnt({4 if i + 4 < 9 else 2})")
        a.need(done_at[i], 12)
        fix(i)
        def exps(lo):
            for j in range(lo, lo + 4):
                if "noexp" in TOG: continue
                a(f"v_exp_f32 v{S_+j}, v{S_+j}" if "expmov" not in TOG else f"v_mov_b32 v{S_+j}, v{S_+j}")
        exps(0)
        if i + 2 < 9 and "noqk" not in TOG: qk1(i + 2, cinit(i + 2, negm))
        exps(4)
        if i >= 1:
            pv(i - 1, 0)
        exps(8)
        if i + 2 < 9 and "noqk" not in TOG: qk2(i + 2)
        exps(12)
        if i >= 1: pv(i - 1, 1)
        prefetch_piece(i)
        if i == 0: a("s_nop 0")
        for j in range(8):
            if "nocvt" in TOG: continue
            a(f"v_cvt_pk_bf16_f32 v{PB[i&1]+j}, v{S_+2*j}, v{S_+2*j+1}")
        if PROFTAG == 'a': c.stamp(27 + i)
    prefetch_piece(9)
    a("s_waitcnt lgkmcnt(0)")
    a("s_nop 1")
    pv(8, 0); pv(8, 1)
    c.stamp(10)
    a("s_nop 15")
    rinv = vmx[1]
    a(f"v_rcp_f32 v{rinv}, v{O+12}")
    a("s_nop 0")
    for j in range(12):
        a(f"v_mul_f32 v{O+j}, v{O+j}, v{rinv}")
    PP = c.v.get("PP", 6, 2)
    for g in range(3):
        a(f"v_cvt_pk_bf16_f32 v{PP+2*g}, v{O+4*g}, v{O+4*g+1}")
        a(f"v_cvt_pk_bf16_f32 v{PP+2*g+1}, v{O+4*g+2}, v{O+4*g+3}")
    vad = v0_; vad2 = v1_
    a(f"s_lshl_b32 s{t}, s{s_rb}, 7")
    a(f"s_lshl_b32 s{t2}, s{s_qt}, 5")
    a(f"s_add_u32 s{t}, s{t}, s{t2}")
    a(f"v_add_u32 v{vad}, s{t}, v{vt}")
    a(f"v_lshlrev_b32 v{vad}, 4, v{vad}")
    a(f"v_lshl_add_u32 v{vad2}, v{vh}, 3, v{vad}")
    a(f"v_lshl_add_u32 v{vad}, v{vh}, 15, v{vad}")
    a(f"s_mul_i32 s{t}, s{s_p}, 5")
    a(f"s_add_u32 s{t2}, s{t}, 2")
    a(f"s_lshl_b32 s{t2}, s{t2}, 15")
    a(f"s_add_u32 s{t}, s{t}, s{s_g0}")
    a(f"s_lshl_b32 s{t}, s{t}, 15")
    lb = a.newlabel("headB"); le = a.newlabel("headE")
    a(f"s_cmp_eq_u32 s{s_hs}, 1")
    a(f"s_cbranch_scc1 {lb}")
    a(f"v_permlane32_swap_b32 v{PP}, v{PP+2}")
    a(f"v_permlane32_swap_b32 v{PP+1}, v{PP+3}")
    a(f"buffer_store_dwordx4 {vr(PP,4)}, v{vad}, s[{sO}:{sO+3}], s{t} offen sc1")
    a(f"s_mov_b64 exec, s[{s_hm}:{s_hm+1}]")
    a(f"buffer_store_dwordx2 {vr(PP+4,2)}, v{vad2}, s[{sO}:{sO+3}], s{t2} offen sc1")
    a(f"s_branch {le}")
    a.label(lb)
    a(f"v_permlane32_swap_b32 v{PP+2}, v{PP+4}")
    a(f"v_permlane32_swap_b32 v{PP+3}, v{PP+5}")
    a(f"buffer_store_dwordx4 {vr(PP+2,4)}, v{vad}, s[{sO}:{sO+3}], s{t} offen sc1")
    a(f"s_mov_b64 exec, s[{s_hm}:{s_hm+1}]")
    a(f"buffer_store_dwordx2 {vr(PP,2)}, v{vad2}, s[{sO}:{sO+3}], s{t2} offen sc1")
    a.label(le)
    a("s_mov_b64 exec, -1")
    c.stamp(11)
    flag_line(c, t, FL_ATT, s_rb)
    a(f"s_lshl_b32 s{t2}, s{s_p}, 2")
    a(f"s_add_u32 s{t}, s{t}, s{t2}")
    publish(c, 1, 8, t, v2_, v3_)
    c.stamp(12)
    lskip = a.newlabel("att_done")
    a(f"s_branch {lskip}")
    for lab, back, S_ in fixups:
        a.label(lab)
        for j in range(16):
            a(f"v_mov_b32 v{S_+j}, v{vneg}")
        a(f"s_branch {back}")
    a.label(lskip)
    c.v.reset(vm); c.s.reset(sm)


def row_tile_addr(c, g, base, regs):
    a = c.a
    t0, t1 = g.tmp[0], g.tmp[1]
    st = g.stmp[0]
    a(f"s_lshl_b32 s{st}, s{c.swave}, 12")
    a(f"s_add_u32 s{st}, s{st}, {base}")
    a(f"v_lshl_add_u32 v{t0}, v{g.vt}, 7, s{st}")
    a(f"v_lshl_add_u32 v{t0}, v{g.vh}, 3, v{t0}")
    a(f"v_bfe_u32 v{t1}, v{g.vt}, 1, 3")
    for k in range(8):
        a(f"v_xor_b32 v{regs+k}, {k}, v{t1}")
        a(f"v_lshl_add_u32 v{regs+k}, v{regs+k}, 4, v{t0}")


RES_SLOT = XBASE + 2 * 16384


def wo_weights_loader(c, s_ct):
    a = c.a
    s_colb = c.s.get("colb"); s_tok0 = c.s.get("tok0"); s_rb = c.s.get("rb"); t = c.s.get("t")
    return s_colb


def phase_wo_compute(c, s_rb, s_ct):
    a = c.a
    vm, sm = c.v.mark(), c.s.mark()
    s_tok0 = c.s.get("tok0"); t = c.s.get("t")
    a(f"s_lshl_b32 s{s_tok0}, s{s_rb}, 7")
    sH = SRD_A
    ws_srd(a, sH, H_OFF, H_SZ)
    g = Gemm(c, 64, 'T8', 10, 4, 10)
    g.compute_setup()
    st, st2 = g.stmp
    ra = c.v.get("ra", 8)
    row_tile_addr(c, g, RES_SLOT, ra)
    R = c.v.get("R", 16, 2); P = c.v.get("P", 8, 2); vad = c.v.get("vad")
    so = [c.s.get("so0"), c.s.get("so1")]
    a(f"s_lshl_b32 s{st}, s{c.swave}, 5")
    a(f"s_add_u32 s{st}, s{st}, s{s_tok0}")
    a(f"v_add_u32 v{vad}, s{st}, v{g.vt}")
    a(f"v_lshlrev_b32 v{vad}, 4, v{vad}")
    a(f"v_lshl_add_u32 v{vad}, v{g.vh}, 15, v{vad}")
    wave0_poll(c, FL_ATT, s_rb, 16)
    c.stamp(13)
    c.barrier("wP")
    c.stamp(14)
    g.mainloop("w", 'TN')
    c.stamp(15)
    for k in range(8):
        a(f"ds_read_b64 {vr(R+2*k,2)}, v{ra+k}")
    a("s_nop 7")
    a("s_waitcnt lgkmcnt(0)")
    t0, t1 = g.tmp[0], g.tmp[1]
    for ft in range(2):
        acc = g.ACC[0][ft]
        for gg in range(4):
            for d in range(2):
                r = R + 2 * (4 * ft + gg) + d
                a(f"v_lshlrev_b32 v{t0}, 16, v{r}")
                a(f"v_and_b32 v{t1}, 0xffff0000, v{r}")
                a(f"v_add_f32 v{acc+4*gg+2*d}, v{acc+4*gg+2*d}, v{t0}")
                a(f"v_add_f32 v{acc+4*gg+2*d+1}, v{acc+4*gg+2*d+1}, v{t1}")
        a(f"s_lshl_b32 s{so[0]}, s{s_ct}, 3")
        a(f"s_add_u32 s{so[0]}, s{so[0]}, {4*ft}")
        a(f"s_lshl_b32 s{so[0]}, s{so[0]}, 15")
        a(f"s_add_u32 s{so[1]}, s{so[0]}, {2*32768}")
        swap_pack_store(a, acc, P, vad, sH, so)
        a("s_nop 1")
    c.stamp(16)
    flag_line(c, st, FL_WO, s_rb)
    a(f"s_lshl_b32 s{t}, s{s_ct}, 2")
    a(f"s_add_u32 s{st}, s{st}, s{t}")
    publish(c, 2, 4, st, t0, t1)
    c.barrier("wS")
    c.stamp(17)
    c.v.reset(vm); c.s.reset(sm)


class Loader:
    pass


def wo_loader_prefetch(c, s_rb, s_ct):
    a = c.a
    s_tok0 = c.s.get("tok0"); s_colb = c.s.get("colb")
    a(f"s_lshl_b32 s{s_tok0}, s{s_rb}, 7")
    a(f"s_lshl_b32 s{s_colb}, s{s_ct}, 7")
    srd(a, SRD_B, PTR[P_WO], D * D * 2)
    g = Gemm(c, 64, 'T8', 10, 4, 10, xsc="sc1")
    g.loader_setup(SRD_A, SRD_B, s_tok0, s_colb, D * 2)
    g.nw_issued = 10
    g.s_tok0, g.s_colb = s_tok0, s_colb
    return g


def wo_loader_main(c, g):
    a = c.a
    ws_srd(a, SRD_A, O_OFF, O_SZ)
    srd(a, SRD_C, PTR[P_X], S * D * 2)
    vq = [c.v.get("vq0"), c.v.get("vq1")]
    t0 = c.v.get("x0"); t1 = c.v.get("x1"); t2 = c.v.get("x2"); st = c.s.get("xs"); lw = c.s.get("xlw")
    a(f"s_sub_u32 s{lw}, s{S_WAVE}, 4")
    g.row_goff(vq, g.s_tok0, lw, g.s_colb, t0, t1, t2, st)
    def residual():
        for q in range(4):
            a(f"s_add_u32 m0, s{g.swx}, {RES_SLOT + q*1024}")
            a(f"s_mov_b32 s{g.soff}, {q*8*D*2}")
            a(f"buffer_load_dwordx4 v{vq[q&1]}, s[{SRD_C}:{SRD_C+3}], s{g.soff} offen lds")
            g.ops.append(('r', -1))
    c.barrier("wP")
    g.loader_main("w", extra=(7, residual, 'end'))
    c.barrier("wS")


def phase_f1_compute(c, s_rb, s_ct):
    a = c.a
    vm, sm = c.v.mark(), c.s.mark()
    s_tok0 = c.s.get("tok0"); s_colb = c.s.get("colb"); s_sig = c.s.get("sig"); t = c.s.get("t")
    a(f"s_lshl_b32 s{s_tok0}, s{s_rb}, 7")
    a(f"s_lshl_b32 s{s_colb}, s{s_ct}, 8")
    sigma_of(c, s_sig, s_rb, s_ct, t)
    sB, sH1, sST = SRD_A, SRD_B, SRD_C
    srd(a, sB, PTR[P_B1], F * 2)
    ws_srd(a, sH1, H1_OFF, H1_SZ); ws_srd(a, sST, ST_OFF, ST_SZ)
    g = Gemm(c, 128, 'T8', 10, 4, 5, stats=True, rotate=True)
    g.compute_setup()
    g.stats_setup(sST, PX_SZ + PW_SZ, 2 * PX_SZ + PW_SZ, s_rb, s_ct, s_sig)
    P = c.v.get("P", 8, 2); BR = c.v.get("br", 16, 2); CSV = g.GX + 4; BV = g.GX + 20
    vR = [c.v.get("vR0", 2, 2), c.v.get("vR1", 2, 2)]; vN = [c.v.get("vN0", 2, 2), c.v.get("vN1", 2, 2)]
    TP = g.GW + 2
    vad = c.v.get("vad"); vb = c.v.get("vb"); vl = c.v.get("vl")
    so = [c.s.get("so0"), c.s.get("so1")]
    t0, t1, t2v, t3 = g.tmp
    st = g.stmp[0]
    s_priv = c.s.get("priv")
    a(f"s_mul_i32 s{s_priv}, s{S_WAVE}, 768")
    for ft in range(2):
        a(f"s_lshl_b32 s{st}, s{g.s_ft[ft]}, 6")
        a(f"s_add_u32 s{st}, s{st}, s{s_colb}")
        a(f"v_lshl_add_u32 v{vb}, v{g.vh}, 3, s{st}")
        for gg in range(4):
            a(f"buffer_load_dwordx2 {vr(BR+8*ft+2*gg,2)}, v{vb}, s[{sB}:{sB+3}], 0 offen offset:{16*gg}")
    wave0_poll(c, FL_WO, s_rb, 10)
    c.stamp(18)
    c.barrier("fP")
    c.stamp(19)
    g.mainloop("f", 'TN', *g.stats_plan())
    c.stamp(20)
    g.stats_check()
    both_halves(a, g.GX + 2, vR[0], vR[1])
    both_halves(a, g.GX, vN[0], vN[1])
    a(f"v_lshl_add_u32 v{vl}, v{c.lane}, 2, s{s_priv}")
    a(f"ds_write_b32 v{vl}, v{g.GW}")
    a(f"v_lshl_add_u32 v{vl}, v{g.vh}, 4, s{s_priv}")
    a("s_waitcnt lgkmcnt(0)")
    for ft in range(2):
        for gg in range(4):
            a(f"ds_read_b128 {vr(CSV+4*gg,4)}, v{vl} offset:{128*ft+32*gg}")
        for k in range(8):
            a(f"v_lshlrev_b32 v{BV+2*k}, 16, v{BR+8*ft+k}")
            a(f"v_and_b32 v{BV+2*k+1}, 0xffff0000, v{BR+8*ft+k}")
        a("s_waitcnt lgkmcnt(0)")
        for tt in range(2):
            acc = g.ACC[tt][ft]
            for i in range(0, 16, 2):
                a(f"v_pk_fma_f32 {vr(TP+i,2)}, {vr(CSV+i,2)}, {vr(vN[tt],2)}, {vr(BV+i,2)} op_sel_hi:[1,0,1]")
            for i in range(0, 16, 2):
                a(f"v_pk_fma_f32 {vr(acc+i,2)}, {vr(acc+i,2)}, {vr(vR[tt],2)}, {vr(TP+i,2)} op_sel_hi:[1,0,1]")
            for i in range(16):
                a(f"v_max_f32 v{acc+i}, 0, v{acc+i}")
            for i in range(0, 16, 2):
                a(f"v_pk_mul_f32 {vr(acc+i,2)}, {vr(acc+i,2)}, {vr(acc+i,2)}")
            a(f"s_lshl_b32 s{st}, s{g.s_tt[tt]}, 5")
            a(f"s_add_u32 s{st}, s{st}, s{s_tok0}")
            a(f"v_add_u32 v{vad}, s{st}, v{g.vt}")
            a(f"v_lshlrev_b32 v{vad}, 4, v{vad}")
            a(f"v_lshl_add_u32 v{vad}, v{g.vh}, 15, v{vad}")
            a(f"s_lshl_b32 s{so[0]}, s{s_ct}, 2")
            a(f"s_add_u32 s{so[0]}, s{so[0]}, s{g.s_ft[ft]}")
            a(f"s_lshl_b32 s{so[0]}, s{so[0]}, 17")
            a(f"s_add_u32 s{so[1]}, s{so[0]}, {2*32768}")
            swap_pack_store(a, acc, P, vad, sH1, so)
            a("s_nop 1")
    c.stamp(21)
    flag_line(c, st, FL_F1, s_rb)
    a(f"s_lshl_b32 s{t}, s{s_ct}, 2")
    a(f"s_add_u32 s{st}, s{st}, s{t}")
    publish(c, 3, 4, st, t0, t1)
    c.barrier("fS")
    c.stamp(22)
    c.v.reset(vm); c.s.reset(sm)


def f1_loader_prefetch(c, s_rb, s_ct, resident=False):
    a = c.a
    s_tok0 = c.s.get("tok0"); s_colb = c.s.get("colb"); s_sig = c.s.get("sig"); t = c.s.get("t")
    a(f"s_lshl_b32 s{s_tok0}, s{s_rb}, 7")
    a(f"s_lshl_b32 s{s_colb}, s{s_ct}, 8")
    sigma_of(c, s_sig, s_rb, s_ct, t)
    srd(a, SRD_B, PTR[P_W1], D * F * 2)
    g = Gemm(c, 128, 'T8', 10, 4, 5, rotate=True, xsc="sc1")
    g.loader_setup(SRD_A, SRD_B, s_tok0, s_colb, F * 2, s_sig)
    if resident:
        g.nw_issued = 5
        for _ in range(5): g._advance(g.swk, g.wstride)
    else:
        g.prefetch_w()
    g.s_rb, g.s_ct = s_rb, s_ct
    return g


def f1_loader_main(c, g):
    ws_srd(c.a, SRD_A, H_OFF, H_SZ)
    ws_srd(c.a, SRD_C, ST_OFF, ST_SZ)
    ex = g.stats_dma(SRD_C, PX_SZ + PW_SZ, 2 * PX_SZ + PW_SZ, g.s_rb, g.s_ct)
    c.barrier("fP")
    g.loader_main("f", extra=ex)
    c.barrier("fS")


def phase_f2_compute(c, s_rb, s_ct):
    a = c.a
    vm, sm = c.v.mark(), c.s.mark()
    s_tok0 = c.s.get("tok0"); s_colb = c.s.get("colb")
    a(f"s_lshl_b32 s{s_tok0}, s{s_rb}, 7")
    a(f"s_lshl_b32 s{s_colb}, s{s_ct}, 7")
    sB, sH, sOut = SRD_A, SRD_B, SRD_C
    srd(a, sB, PTR[P_B2], D * 2)
    ws_srd(a, sH, H_OFF, H_SZ)
    srd(a, sOut, PTR[P_OUT], S * D * 2)
    g = Gemm(c, 64, 'T8', 27, 4, 10)
    OUTB = XBASE
    g.compute_setup()
    st, st2 = g.stmp
    t0, t1, t2 = g.tmp[0], g.tmp[1], g.tmp[2]
    R = c.v.get("R", 16, 2); B = c.v.get("B", 16, 2); P = c.v.get("P", 16, 2); vad = c.v.get("vad"); vb = c.v.get("vb")
    a(f"s_lshl_b32 s{st}, s{c.swave}, 5")
    a(f"s_add_u32 s{st}, s{st}, s{s_tok0}")
    a(f"v_add_u32 v{vad}, s{st}, v{g.vt}")
    a(f"v_lshlrev_b32 v{vad}, 4, v{vad}")
    a(f"v_lshl_add_u32 v{vad}, v{g.vh}, 3, v{vad}")
    a(f"v_lshl_add_u32 v{vb}, v{g.vh}, 3, s{s_colb}")
    for k in range(8):
        a(f"s_lshl_b32 s{st}, s{s_ct}, 3")
        a(f"s_add_u32 s{st}, s{st}, {k}")
        a(f"s_lshl_b32 s{st}, s{st}, 15")
        a(f"buffer_load_dwordx2 {vr(R+2*k,2)}, v{vad}, s[{sH}:{sH+3}], s{st} offen sc1")
        a(f"buffer_load_dwordx2 {vr(B+2*k,2)}, v{vb}, s[{sB}:{sB+3}], 0 offen offset:{16*k}")
    ra = c.v.get("ra", 8)
    row_tile_addr(c, g, OUTB, ra)
    vq = [c.v.get("vq0"), c.v.get("vq1")]
    g.row_goff(vq, s_tok0, c.swave, s_colb, t0, t1, t2, st)
    vl = c.v.get("vl")
    a(f"s_lshl_b32 s{st}, s{c.swave}, 12")
    a(f"s_add_u32 s{st}, s{st}, {OUTB}")
    a(f"v_lshl_add_u32 v{vl}, v{c.lane}, 4, s{st}")
    wave0_poll(c, FL_F1, s_rb, 14)
    c.stamp(23)
    c.barrier("gP")
    c.stamp(24)
    g.mainloop("g", 'TN')
    c.stamp(25)
    a("s_waitcnt vmcnt(0)")
    a("s_nop 11")
    for ft in range(2):
        acc = g.ACC[0][ft]
        for gg in range(4):
            k = 4 * ft + gg
            for d in range(2):
                i = 4 * gg + 2 * d
                a(f"v_lshlrev_b32 v{t0}, 16, v{R+2*k+d}")
                a(f"v_and_b32 v{t1}, 0xffff0000, v{R+2*k+d}")
                a(f"v_add_f32 v{acc+i}, v{acc+i}, v{t0}")
                a(f"v_add_f32 v{acc+i+1}, v{acc+i+1}, v{t1}")
                a(f"v_lshlrev_b32 v{t0}, 16, v{B+2*k+d}")
                a(f"v_and_b32 v{t1}, 0xffff0000, v{B+2*k+d}")
                a(f"v_add_f32 v{acc+i}, v{acc+i}, v{t0}")
                a(f"v_add_f32 v{acc+i+1}, v{acc+i+1}, v{t1}")
                a(f"v_cvt_pk_bf16_f32 v{P+2*k+d}, v{acc+i}, v{acc+i+1}")
            a(f"ds_write_b64 v{ra+k}, {vr(P+2*k,2)}")
    a("s_waitcnt lgkmcnt(0)")
    for q in range(4):
        a(f"ds_read_b128 {vr(R+4*q,4)}, v{vl} offset:{q*1024}")
    for q in range(4):
        a(f"s_waitcnt lgkmcnt({3-q})")
        a(f"s_mov_b32 s{st2}, {q*8*D*2}")
        a(f"buffer_store_dwordx4 {vr(R+4*q,4)}, v{vq[q&1]}, s[{sOut}:{sOut+3}], s{st2} offen")
    c.stamp(26)
    c.v.reset(vm); c.s.reset(sm)


def f2_loader_prefetch(c, s_rb, s_ct):
    a = c.a
    s_tok0 = c.s.get("tok0"); s_colb = c.s.get("colb")
    a(f"s_lshl_b32 s{s_tok0}, s{s_rb}, 7")
    a(f"s_lshl_b32 s{s_colb}, s{s_ct}, 7")
    srd(a, SRD_B, PTR[P_W2], F * D * 2)
    g = Gemm(c, 64, 'T8', 27, 4, 10, xsc="sc1")
    g.loader_setup(SRD_A, SRD_B, s_tok0, s_colb, D * 2)
    g.prefetch_w()
    return g


def f2_loader_main(c, g):
    ws_srd(c.a, SRD_A, H1_OFF, H1_SZ)
    c.barrier("gP")
    g.loader_main("g")


def prof_store(c, role):
    if not PROF: return
    a = c.a
    if DBGMAP is not None:
        if role != 0: return
        lab = a.newlabel("prof_skip")
        a(f"s_cmp_lg_u32 s{S_WAVE}, 0")
        a(f"s_cbranch_scc1 {lab}")
        a(f"s_cmp_lg_u32 s2, {DBGWG}")
        a(f"s_cbranch_scc1 {lab}")
        a("s_load_dwordx2 s[96:97], s[0:1], 72")
        a("s_waitcnt lgkmcnt(0)")
        srd(a, SRD_A, 96, 256)
        a(f"v_lshlrev_b32 v4, 2, v{V_LANE}")
        a("s_mov_b64 exec, 0xffff")
        a(f"buffer_store_dword v{V_PROF}, v4, s[{SRD_A}:{SRD_A+3}], 0 offen")
        a("s_mov_b64 exec, -1")
        a.label(lab)
        return
    lab = a.newlabel("prof_skip")
    a(f"s_cmp_lg_u32 s{S_WAVE}, {4*role}")
    a(f"s_cbranch_scc1 {lab}")
    ws_srd(a, SRD_A, PROF_OFF, 1 << 20)
    a(f"s_lshl_b32 s96, s2, 9")
    a(f"s_add_u32 s96, s96, {256*role}")
    a(f"v_lshl_add_u32 v4, v{V_LANE}, 2, s96")
    a(f"buffer_store_dword v{V_PROF}, v4, s[{SRD_A}:{SRD_A+3}], 0 offen")
    a.label(lab)


def gen_kernel(a, name):
    c = Ctx(a)
    kernel_begin(a, name)
    done = f"{name}_done"
    a("s_cmp_ge_u32 s2, 256")
    a(f"s_cbranch_scc1 {done}")
    a("s_load_dwordx16 s[4:19], s[0:1], 0")
    a("s_load_dwordx2 s[20:21], s[0:1], 64")
    a("s_load_dwordx2 s[22:23], s[0:1], 80")
    if PROF: a(f"v_mov_b32 v{V_PROF}, 0")
    a(f"v_lshrrev_b32 v{V_LANE}, 6, v0")
    a(f"s_and_b32 s{S_XCD}, s2, 7")
    a(f"v_readfirstlane_b32 s{S_WAVE}, v{V_LANE}")
    a(f"s_lshr_b32 s{S_J}, s2, 3")
    a(f"v_and_b32 v{V_LANE}, 63, v0")
    a("s_waitcnt lgkmcnt(0)")
    for tg in TOG:
        if tg.startswith("poison"):
            pat = int(tg[6:], 16)
            for r in range(4, 255): a(f"v_mov_b32 v{r}, {pat:#x}")
            for r in range(27, 100): a(f"s_mov_b32 s{r}, {pat:#x}")
            a("s_mov_b32 m0, 0"); a(f"s_mov_b64 vcc, -1")
            a(f"s_mul_i32 s28, s{S_WAVE}, 20480")
            a(f"v_lshl_add_u32 v4, v{V_LANE}, 4, s28")
            for k in range(20):
                a(f"ds_write_b128 v4, v[8:11] offset:{k*1024}")
            a("s_waitcnt lgkmcnt(0)")
            a("s_barrier")
            a(f"v_mov_b32 v4, {pat:#x}"); a(f"s_mov_b32 s28, {pat:#x}")
    c.stamp(0)
    if PROF and DBGMAP is None:
        a("s_memrealtime s[100:101]")
        a("s_waitcnt lgkmcnt(0)")
        a(f"v_writelane_b32 v{V_PROF}, s100, 61")
    ws_srd(a, SRD_F, FL_OFF, FL_SZ)
    a(f"v_mov_b32 v{V_GEN}, {FL_GEN*256}")
    a(f"buffer_load_dword v{V_GEN}, v{V_GEN}, s[{SRD_F}:{SRD_F+3}], 0 offen sc1")
    if "cpf" in TOG:
        lp = a.newlabel("code_here")
        sp = c.s.get("pcb", 2, 2)
        m = c.v.mark()
        vo = c.v.get("cpo"); vd_ = V_SINK
        skip = a.newlabel("cpf_skip")
        a(f"s_cmp_lg_u32 s{S_WAVE}, 3")
        a(f"s_cbranch_scc1 {skip}")
        a(f"s_getpc_b64 s[{sp}:{sp+1}]")
        a.label(lp)
        a(f"v_lshlrev_b32 v{vo}, 7, v{V_LANE}")
        for k in range(9):
            a(f"v_cmp_gt_u32 vcc, {name}_code_end-{lp}, v{vo}")
            a(f"s_and_saveexec_b64 s[{SRD_A}:{SRD_A+1}], vcc")
            lk = a.newlabel("cpf_k")
            a(f"s_cbranch_execz {lk}")
            a(f"global_load_dword v{vd_}, v{vo}, s[{sp}:{sp+1}]")
            a.label(lk)
            a(f"s_mov_b64 exec, -1")
            a(f"v_add_u32 v{vo}, 8192, v{vo}")
        a.label(skip)
        c.v.reset(m)
    rbq = c.s.get("rbq"); ctq = c.s.get("ctq"); rbw = c.s.get("rbw"); ctw = c.s.get("ctw"); ctf = c.s.get("ctf"); t = c.s.get("gt")
    map_gemm(c, 8, rbq, ctq, t)
    map_gemm(c, 5, rbw, ctw, t)
    map_gemm(c, 7, rbw, ctf, t)
    jj = c.s.get("jj")
    a(f"s_lshr_b32 s{jj}, s{S_J}, 2")
    lz = a.newlabel("nocnt")
    a(f"s_cmp_lg_u32 s{S_WAVE}, 0")
    a(f"s_cbranch_scc1 {lz}")
    a(f"v_lshlrev_b32 v4, 2, v{V_LANE}")
    a(f"v_add_u32 v4, {CNT_OFF}, v4")
    a("v_mov_b32 v5, 0")
    a("s_mov_b64 exec, 0xff")
    a("ds_write_b32 v4, v5")
    a("s_mov_b64 exec, -1")
    a("s_waitcnt lgkmcnt(0)")
    a.label(lz)
    lload = f"{name}_loader"; latt = f"{name}_att"; lrest = f"{name}_lrest"
    a(f"s_cmp_ge_u32 s{S_WAVE}, 4")
    a(f"s_cbranch_scc1 {lload}")
    c.bar = []
    a(f"s_cmp_ge_u32 s{ctq}, 15")
    a(f"s_cbranch_scc1 {latt}")
    phase_qkv_compute(c, rbq, ctq)
    a(f"s_branch {latt}")
    bq = list(c.bar)
    a.label(lload)
    c.bar = []
    a(f"s_cmp_ge_u32 s{ctq}, 15")
    a(f"s_cbranch_scc1 {latt}")
    phase_qkv_loader(c, rbq, ctq)
    assert c.bar == bq, (c.bar, bq)
    a.label(latt)
    if "wpf" in TOG:
        lw_ = a.newlabel("wpf_skip")
        a(f"s_cmp_lt_u32 s{ctq}, 15")
        a(f"s_cbranch_scc1 {lw_}")
        m = c.v.mark(); ms = c.s.mark()
        vo = c.v.get("wpo"); vd_ = V_SINK; sw = c.s.get("wps")
        a(f"s_lshl_b32 s{sw}, s{rbq}, 3")
        a(f"s_add_u32 s{sw}, s{sw}, s{S_WAVE}")
        a(f"s_lshl_b32 s{sw}, s{sw}, 13")
        a(f"v_lshlrev_b32 v{vo}, 7, v{V_LANE}")
        a(f"v_add_u32 v{vo}, s{sw}, v{vo}")
        for ptr, size in ((P_W1, D*F*2), (P_WO, D*D*2), (P_W2, F*D*2)):
            srd(a, SRD_A, PTR[ptr], size)
            for k in range((size + (1 << 20) - 1) >> 20):
                a(f"s_mov_b32 s{sw}, {k << 20}")
                a(f"buffer_load_dword v{vd_}, v{vo}, s[{SRD_A}:{SRD_A+3}], s{sw} offen")
        a.label(lw_)
        c.v.reset(m); c.s.reset(ms)
    phase_att(c, jj, rbw, ctw, ctf)
    a(f"s_cmp_ge_u32 s{S_WAVE}, 4")
    a(f"s_cbranch_scc1 {lrest}")
    c.bar = []
    l2 = a.newlabel("c_nowo"); l3 = a.newlabel("c_end")
    a(f"s_cmp_ge_u32 s{jj}, 5")
    a(f"s_cbranch_scc1 {l2}")
    phase_wo_compute(c, rbw, ctw)
    a.label(l2)
    a(f"s_cmp_ge_u32 s{jj}, 7")
    a(f"s_cbranch_scc1 {l3}")
    phase_f1_compute(c, rbw, ctf)
    a(f"s_cmp_ge_u32 s{jj}, 5")
    a(f"s_cbranch_scc1 {l3}")
    phase_f2_compute(c, rbw, ctw)
    a.label(l3)
    c.stamp(63)
    prof_store(c, 0)
    a("s_endpgm")
    bar_compute = list(c.bar)
    a.label(lrest)
    c.bar = []
    lB = a.newlabel("l_classB"); lend = a.newlabel("l_end")
    a(f"s_cmp_ge_u32 s{jj}, 7")
    a(f"s_cbranch_scc1 {lend}")
    a(f"s_cmp_ge_u32 s{jj}, 5")
    a(f"s_cbranch_scc1 {lB}")
    vm, sm = c.v.mark(), c.s.mark()
    g = wo_loader_prefetch(c, rbw, ctw)
    wo_loader_main(c, g)
    c.stamp(15)
    c.v.reset(vm); c.s.reset(sm)
    g = f1_loader_prefetch(c, rbw, ctf)
    c.stamp(16)
    f1_loader_main(c, g)
    c.stamp(20)
    c.v.reset(vm); c.s.reset(sm)
    g = f2_loader_prefetch(c, rbw, ctw)
    c.stamp(21)
    f2_loader_main(c, g)
    c.stamp(25)
    c.v.reset(vm); c.s.reset(sm)
    assert c.bar == bar_compute, (c.bar, bar_compute)
    lg = a.newlabel("nogen")
    a("s_cmp_lg_u32 s2, 0")
    a(f"s_cbranch_scc1 {lg}")
    a(f"s_cmp_lg_u32 s{S_WAVE}, 4")
    a(f"s_cbranch_scc1 {lg}")
    va = c.v.get("ga"); vb = c.v.get("gb"); smk = c.s.get("gm", 2, 2); scn = c.s.get("gc", 4, 2)
    a(f"s_mov_b64 s[{smk}:{smk+1}], -1")
    for r in range(4):
        a(f"v_lshrrev_b32 v{va}, 4, v{V_LANE}")
        a(f"v_add_u32 v{va}, {FL_ATT + 4*r}, v{va}")
        a(f"v_lshlrev_b32 v{va}, 8, v{va}")
        a(f"v_and_b32 v{vb}, 15, v{V_LANE}")
        a(f"v_lshl_add_u32 v{va}, v{vb}, 2, v{va}")
        poll(c, va, smk, vb, scn)
    a(f"v_add_u32 v{vb}, 1, v{V_GEN}")
    a(f"v_mov_b32 v{va}, {FL_GEN*256}")
    a("s_mov_b64 exec, 1")
    a(f"buffer_store_dword v{vb}, v{va}, s[{SRD_F}:{SRD_F+3}], 0 offen sc1")
    a("s_mov_b64 exec, -1")
    a.label(lg)
    c.v.reset(vm); c.s.reset(sm)
    a(f"s_branch {lend}")
    a.label(lB)
    c.bar = []
    g = f1_loader_prefetch(c, rbw, ctf, resident=True)
    f1_loader_main(c, g)
    assert c.bar == [b for b in bar_compute if b.startswith("f")], c.bar
    c.v.reset(vm); c.s.reset(sm)
    a.label(lend)
    c.stamp(63)
    prof_store(c, 1)
    a.label(done)
    a("s_endpgm")
    a.label(f"{name}_code_end")
    return dict(name=name, grid=256, block=512, lds=LDS_TOTAL, vgpr=c.v.high, sgpr=c.s.high)


def build(path):
    a = Asm(); body = Asm()
    name = KNAME + "_kernel"
    info = gen_kernel(body, name)
    hdr = open("cdna_kernels/" + KNAME + ".s.ref").read().split("; Override launch")[0]
    a.raw(hdr.rstrip())
    a.raw(f"; @launch grid=({info['grid']},1,1) block=({info['block']},1,1) lds={info['lds']}")
    a.raw('.amdgcn_target "amdgcn-amd-amdhsa--gfx950"')
    a.lines += body.lines
    vg = 256
    kernel_desc(a, name, vgpr=vg, sgpr=102)
    open(path, "w").write(a.text())
    return info


if __name__ == "__main__":
    if "prof" in sys.argv: PROF = True
    for x in sys.argv:
        if x.startswith("tag="): PROFTAG = x[4:]
        if x == "rt": REALTIME = True
        if x.startswith("dbg"):
            DBGMAP = {k: i for i, k in enumerate([0, 1, 2, 4, 6, 7, 12, 14, 15, 17, 19, 20, 22, 24, 25, 26])}
            DBGWG = int(x[3:] or 0)
        if x.startswith("tog="): TOG.update(x[4:].split(","))
    print(build(sys.argv[1] if len(sys.argv) > 1 else "k2.s"))
```
